```python
import torch

def _softmax(x, axis=-1):
    return torch.softmax(x, dim=axis)
def _gelu(x):
    return torch.nn.functional.gelu(x, approximate="tanh")
def _silu(x):
    return torch.nn.functional.silu(x)
def _sigmoid(x):
    return torch.sigmoid(x)
def _layernorm(x, axis=-1, eps=1e-5):
    m = x.mean(dim=axis, keepdim=True)
    v = x.var(dim=axis, keepdim=True, unbiased=False)
    return (x - m) / torch.sqrt(v + eps)
def _scatter_add(tgt, idx, src, axis=0):
    return tgt.clone().index_add_(axis, idx, src)
def _segment_sum(src, seg, n):
    out = torch.zeros((n,) + src.shape[1:], dtype=src.dtype)
    return out.index_add_(0, seg, src)
def _pad(x, pw):
    flat = tuple(v for pair in reversed(pw) for v in pair)
    return torch.nn.functional.pad(x, flat)

kernel_name = 'standalone__paged_block_table_kv_radixattention__sampling'

def setup_inputs():

    _w = (lambda a: (lambda t: t.to(torch.bfloat16) if t.is_floating_point() else t)(torch.as_tensor(a)))
    B, H, Hkv, Dh = 8, 32, 32, 192
    Lk = 4096
    bs = 16
    nb = max(2, Lk // bs)
    P = max(1, nb // 2)
    n_phys = P + B * (nb - P)
    shared = torch.arange(P, dtype=torch.int64)
    priv = P + torch.arange(B * (nb - P), dtype=torch.int64).reshape(B, nb - P)
    bt = torch.cat([torch.tile(shared[None, :], (B, 1)), priv], dim=1)
    ctx = nb * bs - (torch.arange(1, B + 1, dtype=torch.int64) * 2654435761) % max(1, (nb * bs - P * bs) // 2)
    return {
        "q": _w((lambda *s: torch.randn(*s, dtype=torch.bfloat16) * 0.8)(B, H, Dh)),
        "k_cache": _w((lambda *s: torch.randn(*s, dtype=torch.bfloat16) * 0.8)(n_phys, bs, Hkv, Dh)),
        "v_cache": _w((lambda *s: torch.randn(*s, dtype=torch.bfloat16) * 0.05)(n_phys, bs, Hkv, Dh)),
        "block_table": _w(bt.to(torch.int64)),
        "ctx_lens": _w(torch.as_tensor(ctx).to(torch.int64)),
    }

def reference(q, k_cache, v_cache, block_table, ctx_lens):
    B, H, Dh = q.shape
    n_phys, bs, Hkv, _ = k_cache.shape
    nb = block_table.shape[1]
    Lk = nb * bs
    rep = H // Hkv
    k = k_cache[block_table].reshape(B, Lk, Hkv, Dh)
    v = v_cache[block_table].reshape(B, Lk, Hkv, Dh)
    k = (lambda x, n, axis: torch.repeat_interleave(x, n, dim=axis))(k, rep, axis=2)
    v = (lambda x, n, axis: torch.repeat_interleave(x, n, dim=axis))(v, rep, axis=2)
    scores = torch.einsum("bhd,bkhd->bhk", q, k) * (Dh ** -0.5)
    pos = torch.arange(Lk)
    valid = pos[None, :] < ctx_lens[:, None]
    scores = torch.where(valid[:, None, :], scores, -1e9)
    p = _softmax(scores, axis=-1)
    return torch.einsum("bhk,bkhd->bhd", p, v)
```

```python
import sys, struct, math
NAME = "standalone__paged_block_table_kv_radixattention__sampling"
KV_BYTES = 1152*196608
def f2u(x): return struct.unpack('<I', struct.pack('<f', x))[0]
C2 = (192 ** -0.5) * math.log2(math.e)

class Cfg:
    D = 3
    STRIDE = 4
    STAMPS = False
    NSM = True
cfg = Cfg()
for a in sys.argv[2:]:
    k, v = a.split('=')
    setattr(cfg, k, eval(v))
D = cfg.D
NSEG = 32
ML_OFF = 0
O_OFF = 65536
WS_USED = O_OFF + NSEG*32*8*768
OOB = 0xF0000000

out = []
def e(s): out.append("    " + s)
def lab(s): out.append(s + ":")
def raw(s): out.append(s)

hdr = open('cdna_kernels/%s.s.ref' % NAME).read().split('\n')
for l in hdr:
    if l.startswith('; Override') or l.startswith('; grid=') or l.startswith('; @launch'): continue
    if not l.startswith(';'): break
    raw(l)
LDS_BYTES = 8192 + 256
raw(f"; @launch kernel={NAME}_kernel grid=(256,1,1) block=(256,1,1) lds={LDS_BYTES}")
raw(f"; @launch kernel=combine_kernel grid=(256,1,1) block=(64,1,1) lds=0")
raw('.amdgcn_target "amdgcn-amd-amdhsa--gfx950"')
raw('.text')

raw(f".globl {NAME}_kernel\n.p2align 8\n.type {NAME}_kernel,@function")
lab(f"{NAME}_kernel")
sQ, sK, sV, sBT, sCTX, sOUT, sDBG, sWS = 4, 6, 8, 10, 12, 14, 16, 18
SRDK, SRDV, SRDW = 20, 24, 28
sC = 32
sVAL = 40
sNL = 56
sEQ = 72
sWAVE, sHOFF, sSEG, sN, sE0, sCNT, sI, sT0, sT1, sT2, sHEAD = 86, 87, 88, 89, 90, 91, 92, 93, 94, 95, 96
sST = 98
sREC = 40
sMK = 48
sA = 50
sJ16 = 58
sO = 60
sC2, sSELLO, sSELHI = 64, 65, 66
vLANE, vC, vG = 1, 2, 3
vOK, vOV4, vOV2, vCTXM, vLIST, vM, vMC, vL, vNINF, vLIM, vMX, vA, vB = 4, 5, 6, 7, 8, 9, 10, 11, 12, 13, 14, 15, 42
vQ = 16
vC1, vC2 = 28, 32
vS = 36
vP = 40
vX = 44
vO = 48
vT = 96
vV = 120
NV = vV + 24*D
ACC = (NV + 3)//4*4
NFV = ACC + 24*D
pT = 48
pM = 56
pJX, pA, pB, pCNT = 64, 65, 66, 67

def pr(a): return f"s[{a}:{a+1}]"

e("s_cmp_ge_u32 s2, 256")
e("s_cbranch_scc1 A_end")
if cfg.STAMPS: e(f"s_memrealtime {pr(sST)}")
e("s_load_dwordx16 s[4:19], s[0:1], 0")
e(f"v_and_b32 v{vLANE}, 63, v0")
e(f"v_lshrrev_b32 v{vA}, 6, v0")
e(f"v_and_b32 v{vC}, 15, v0")
e(f"v_readfirstlane_b32 s{sWAVE}, v{vA}")
e(f"v_lshrrev_b32 v{vG}, 4, v{vLANE}")
e(f"v_lshlrev_b32 v{pA}, 2, v0")
e(f"v_add_u32 v{pB}, 4096, v{pA}")
if cfg.NSM:
    e(f"s_and_b32 s{sHEAD}, s2, 7")
    e(f"s_lshr_b32 s{sSEG}, s2, 3")
else:
    e(f"s_lshr_b32 s{sHEAD}, s2, 5")
    e(f"s_and_b32 s{sSEG}, s2, 31")
e(f"s_lshl_b32 s{sHEAD}, s{sHEAD}, 2")
e(f"s_add_u32 s{sHEAD}, s{sHEAD}, s{sWAVE}")
e(f"s_mul_i32 s{sHOFF}, s{sHEAD}, 384")
e(f"v_and_b32 v{vX}, 7, v{vC}")
e(f"v_mul_u32_u24 v{vX+1}, 12288, v{vX}")
e(f"v_lshl_add_u32 v{vX+1}, v{vG}, 5, v{vX+1}")
e(f"v_lshrrev_b32 v{vX+2}, 3, v{vC}")
e(f"v_lshl_add_u32 v{vX+1}, v{vX+2}, 4, v{vX+1}")
e(f"v_add_u32 v{vX+1}, s{sHOFF}, v{vX+1}")
e(f"v_lshlrev_b32 v{vX}, 2, v{vX}")
e("s_waitcnt lgkmcnt(0)")
for b in range(8):
    e(f"global_load_dword v{pT+b}, v{pA if b < 4 else pB}, {pr(sBT)} offset:{(b & 3)*1024}")
e(f"s_load_dwordx8 s[{sC}:{sC+7}], {pr(sCTX)}, 0")
e(f"global_load_dword v{vCTXM}, v{vX}, {pr(sCTX)}")
for s in range(3):
    e(f"global_load_dwordx4 v[{vQ+4*s}:{vQ+4*s+3}], v{vX+1}, {pr(sQ)} offset:{128*s}")
for srd, base, size in ((SRDK, sK, KV_BYTES), (SRDV, sV, KV_BYTES), (SRDW, sWS, WS_USED)):
    e(f"s_mov_b32 s{srd}, s{base}")
    e(f"s_and_b32 s{srd+1}, s{base+1}, 0xffff")
    e(f"s_mov_b32 s{srd+2}, {size}")
    e(f"s_mov_b32 s{srd+3}, 0x20000")
e(f"v_lshrrev_b32 v{vOK}, 1, v{vC}")
e(f"v_mul_u32_u24 v{vOK}, 12288, v{vOK}")
e(f"v_lshl_add_u32 v{vOK}, v{vG}, 5, v{vOK}")
e(f"v_and_b32 v{vA}, 1, v{vC}")
e(f"v_lshl_add_u32 v{vOK}, v{vA}, 4, v{vOK}")
e(f"v_mul_u32_u24 v{vA}, 24576, v{vG}")
e(f"v_lshl_add_u32 v{vOV4}, v{vC}, 4, v{vA}")
e(f"v_lshl_add_u32 v{vOV2}, v{vC}, 3, v{vA}")
e(f"v_lshlrev_b32 v{pJX}, 16, v0")
e(f"v_lshlrev_b32 v{pA}, 4, v0")
e("s_waitcnt lgkmcnt(0)")
for b in range(8):
    e(f"s_cmp_lt_i32 s{sC+b}, 1")
    e(f"s_cselect_b32 s{sC+b}, 0x1000, s{sC+b}")
for b in range(8):
    e(f"v_cmp_gt_i32_e64 {pr(sVAL+2*b)}, s{sC+b}, v{pA}")
for b in range(1, 8):
    e(f"s_mov_b64 {pr(sNL+2*b)}, 0")
for b in range(8):
    e(f"v_mov_b32 v{pM+b}, 0")
e("s_waitcnt vmcnt(4)")
for b in range(8):
    e(f"v_cndmask_b32_e64 v{pT+b}, {-(b+1)}, v{pT+b}, {pr(sVAL+2*b)}")
for b in range(7):
    hi = list(range(7, b, -1))
    for k, b2 in enumerate(hi):
        e(f"v_cmp_eq_u32_e64 {pr(sEQ+2*k)}, v{pT+b}, v{pT+b2}")
    if len(hi) < 3: e(f"s_nop {2-len(hi)}")
    for k, b2 in enumerate(hi):
        e(f"v_addc_co_u32_e64 v{pM+b}, vcc, v{pM+b}, v{pM+b}, {pr(sEQ+2*k)}")
        e(f"s_or_b64 {pr(sNL+2*b2)}, {pr(sNL+2*b2)}, {pr(sEQ+2*k)}")
for b in range(8):
    e(f"v_lshl_or_b32 v{pM+b}, v{pM+b}, 1, 1")
    e(f"v_lshlrev_b32 v{pM+b}, {24+b}, v{pM+b}")
    e(f"v_or3_b32 v{pT+b}, v{pT+b}, v{pJX}, v{pM+b}")
    if b: e(f"s_andn2_b64 {pr(sVAL+2*b)}, {pr(sVAL+2*b)}, {pr(sNL+2*b)}")
e(f"v_mov_b32 v{pCNT}, 0")
for b in range(8):
    e(f"s_bcnt1_i32_b64 s{sT0}, {pr(sVAL+2*b)}")
    e(f"v_writelane_b32 v{pCNT}, s{sT0}, {b}")
e(f"s_lshl_b32 s{sT0}, s{sWAVE}, 2")
e(f"s_add_u32 s{sT0}, s{sT0}, 8192")
e(f"v_lshl_add_u32 v{pA}, v{vLANE}, 4, s{sT0}")
e(f"s_mov_b64 exec, 0xff")
e(f"ds_write_b32 v{pA}, v{pCNT}")
e(f"s_mov_b64 exec, -1")
for b in range(8):
    e(f"v_mbcnt_lo_u32_b32 v{pM+b}, s{sVAL+2*b}, 0")
    e(f"v_mbcnt_hi_u32_b32 v{pM+b}, s{sVAL+2*b+1}, v{pM+b}")
e(f"v_and_b32 v{pA}, 31, v{vLANE}")
e(f"v_lshlrev_b32 v{pA}, 2, v{pA}")
e("s_waitcnt lgkmcnt(0)")
e("s_barrier")
e(f"ds_read_b32 v{pCNT}, v{pA} offset:8192")
e("s_waitcnt lgkmcnt(0)")
e(f"v_mov_b32 v{pB}, v{pCNT}")
for sh in (1, 2, 4, 8):
    e("s_nop 1")
    e(f"v_add_u32_dpp v{pB}, v{pB}, v{pB} row_shr:{sh} row_mask:0xf bank_mask:0xf bound_ctrl:0")
e("s_nop 1")
e(f"v_add_u32_dpp v{pB}, v{pB}, v{pB} row_bcast:15 row_mask:0xa bank_mask:0xf")
e("s_nop 1")
e(f"v_readlane_b32 s{sN}, v{pB}, 31")
e(f"v_sub_u32 v{pB}, v{pB}, v{pCNT}")
e(f"s_mov_b32 s{sT1}, s{sWAVE}")
for b in range(8):
    e(f"v_readlane_b32 s{sEQ+b}, v{pB}, s{sT1}")
    e(f"s_add_u32 s{sT1}, s{sT1}, 4")
e("s_nop 1")
for b in range(8):
    e(f"v_add_lshl_u32 v{pM+b}, v{pM+b}, s{sEQ+b}, 2")
for b in range(8):
    e(f"s_mov_b64 exec, {pr(sVAL+2*b)}")
    e(f"ds_write_b32 v{pM+b}, v{pT+b}")
e(f"s_mov_b64 exec, -1")
ST = cfg.STRIDE
lst = ST.bit_length()-1
lsup = 5 - lst
e(f"s_lshr_b32 s{sT0}, s{sSEG}, {lst}")
e(f"s_and_b32 s{sT1}, s{sSEG}, {ST-1}")
e(f"s_mul_i32 s{sE0}, s{sT0}, s{sN}")
e(f"s_add_u32 s{sT2}, s{sE0}, s{sN}")
e(f"s_lshr_b32 s{sE0}, s{sE0}, {lsup}")
e(f"s_lshr_b32 s{sT2}, s{sT2}, {lsup}")
e(f"s_add_u32 s{sE0}, s{sE0}, s{sT1}")
e(f"s_sub_i32 s{sCNT}, s{sT2}, s{sE0}")
e(f"s_add_i32 s{sCNT}, s{sCNT}, {ST-1}")
e(f"s_ashr_i32 s{sCNT}, s{sCNT}, {lst}")
e(f"s_max_i32 s{sCNT}, s{sCNT}, 0")
e(f"v_lshlrev_b32 v{pA}, {lst}, v{vLANE}")
e(f"v_add_lshl_u32 v{pA}, v{pA}, s{sE0}, 2")
e(f"v_min_u32 v{pA}, 8188, v{pA}")
e("s_waitcnt lgkmcnt(0)")
e("s_barrier")
e(f"ds_read_b32 v{vLIST}, v{pA}")
e("s_waitcnt vmcnt(0)")
e(f"v_cmp_gt_i32 vcc, 1, v{vCTXM}")
e(f"v_mov_b32 v{vA}, 0x1000")
e(f"v_lshlrev_b32 v{vB}, 1, v{vG}")
e(f"v_cndmask_b32 v{vCTXM}, v{vCTXM}, v{vA}, vcc")
for i in range(12):
    e(f"v_cndmask_b32_e64 v{vQ+i}, v{vQ+i}, 0, vcc")
e(f"v_sub_u32 v{vCTXM}, v{vCTXM}, v{vB}")
e(f"s_mov_b32 s{sC2}, 0x{f2u(C2):08x}")
e(f"s_mov_b32 s{sSELLO}, 0x05040100")
e(f"s_mov_b32 s{sSELHI}, 0x07060302")
e("s_waitcnt lgkmcnt(0)")

def next_rec(st, idx_expr_setup):
    e(f"v_readlane_b32 s{sREC+st}, v{vLIST}, s{sT0}")
    e("s_nop 1")
    e(f"s_and_b32 s{sT1}, s{sREC+st}, 0xffff")
    e(f"s_mul_i32 s{sT1}, s{sT1}, 196608")
    e(f"s_add_u32 s{sT1}, s{sT1}, s{sHOFF}")
    e(f"s_cmp_lt_u32 s{sT0}, s{sCNT}")
    e(f"s_cselect_b32 s{sO}, s{sT1}, 0x{OOB:x}")
    e(f"s_add_u32 s{sO+1}, s{sO}, 12288")
    e(f"s_add_u32 s{sO+2}, s{sO}, {8*12288}")
    e(f"s_add_u32 s{sO+3}, s{sO}, {9*12288}")
def k_loads(st):
    for u in range(2):
        for s in range(3):
            r = st*24 + u*12 + s*4
            e(f"buffer_load_dwordx4 a[{r}:{r+3}], v{vOK}, s[{SRDK}:{SRDK+3}], s{sO+2*u} offen offset:{128*s} nt")
def v_loads(st):
    for i in range(4):
        r = vV + st*24 + i*4
        e(f"buffer_load_dwordx4 v[{r}:{r+3}], v{vOV4}, s[{SRDV}:{SRDV+3}], s{sO+i} offen nt")
        r = vV + st*24 + 16 + i*2
        e(f"buffer_load_dwordx2 v[{r}:{r+1}], v{vOV2}, s[{SRDV}:{SRDV+3}], s{sO+i} offen offset:256 nt")

for st in range(D):
    e(f"s_mov_b32 s{sT0}, {st}")
    next_rec(st, None)
    k_loads(st)
    v_loads(st)
e(f"v_mov_b32 v{vM}, 0x{f2u(-3e38):08x}")
e(f"v_mul_f32 v{vMC}, s{sC2}, v{vM}")
e(f"v_mov_b32 v{vL}, 0")
e(f"v_mov_b32 v{vNINF}, 0xff800000")
for i in range(48):
    e(f"v_mov_b32 v{vO+i}, 0")
e(f"s_mov_b32 s{sI}, 0")
e(f"s_cmp_eq_u32 s{sCNT}, 0")
e("s_cbranch_scc1 A_done")
lab("A_loop")
for st in range(D):
    e(f"s_bfe_u32 s{sJ16}, s{sREC+st}, 0x80010")
    e(f"s_lshl_b32 s{sJ16}, s{sJ16}, 4")
    e(f"s_lshr_b32 s{sMK}, s{sREC+st}, 24")
    e(f"s_mul_i32 s{sMK}, s{sMK}, 0x10001")
    e(f"s_mov_b32 s{sMK+1}, s{sMK}")
    e(f"s_add_u32 s{sT0}, s{sI}, {D}")
    next_rec(st, None)
    e(f"v_subrev_u32 v{vLIM}, s{sJ16}, v{vCTXM}")
    e(f"v_cndmask_b32_e64 v{vLIM}, 0, v{vLIM}, {pr(sMK)}")
    for i, o in enumerate((0, 1, 8, 9)):
        e(f"v_cmp_lt_i32_e64 {pr(sA+2*i)}, {o}, v{vLIM}")
    e(f"s_waitcnt vmcnt({8+(D-1)*14})")
    for s in range(3):
        for u, c in ((0, vC1), (1, vC2)):
            r = st*24 + u*12 + s*4
            src = "0" if s == 0 else f"v[{c}:{c+3}]"
            e(f"v_mfma_f32_16x16x32_bf16 v[{c}:{c+3}], a[{r}:{r+3}], v[{vQ+4*s}:{vQ+4*s+3}], {src}")
    k_loads(st)
    e("s_nop 2")
    for i, (c, r) in enumerate(((vC1, 0), (vC1, 2), (vC2, 0), (vC2, 2))):
        e(f"v_add_f32_dpp v{vS+i}, v{c+r+1}, v{c+r} row_ror:8 row_mask:0xf bank_mask:0xf")
    for i in range(4):
        e(f"v_cndmask_b32_e64 v{vS+i}, v{vNINF}, v{vS+i}, {pr(sA+2*i)}")
    e(f"v_max3_f32 v{vMX}, v{vS}, v{vS+1}, v{vS+2}")
    e(f"v_max_f32 v{vMX}, v{vMX}, v{vS+3}")
    e(f"v_cmp_gt_f32 vcc, v{vMX}, v{vM}")
    e(f"s_cbranch_vccnz A_slow{st}")
    lab(f"A_back{st}")
    for i in range(4):
        e(f"v_fma_f32 v{vX+i}, v{vS+i}, s{sC2}, -v{vMC}")
    for i in range(4):
        e(f"v_exp_f32 v{vX+i}, v{vX+i}")
    e(f"s_waitcnt vmcnt({6+(D-1)*14})")
    vb = vV + st*24
    def perm(t):
        if t < 8:
            q, hsel = t >> 1, t & 1
            regs = [vb + i*4 + q for i in range(4)]
        else:
            q, hsel = (t-8) >> 1, t & 1
            regs = [vb + 16 + i*2 + q for i in range(4)]
        sel = sSELHI if hsel else sSELLO
        e(f"v_perm_b32 v{vT+2*t}, v{regs[1]}, v{regs[0]}, s{sel}")
        e(f"v_perm_b32 v{vT+2*t+1}, v{regs[3]}, v{regs[2]}, s{sel}")
    e(f"v_cvt_pk_bf16_f32 v{vP}, v{vX}, v{vX+1}")
    e(f"v_cvt_pk_bf16_f32 v{vP+1}, v{vX+2}, v{vX+3}")
    for t in range(12): perm(t)
    v_loads(st)
    e(f"v_add_f32 v{vX}, v{vX}, v{vX+1}")
    e(f"v_add_f32 v{vX+2}, v{vX+2}, v{vX+3}")
    for t in range(12):
        e(f"v_mfma_f32_16x16x16_bf16 v[{vO+4*t}:{vO+4*t+3}], v[{vT+2*t}:{vT+2*t+1}], v[{vP}:{vP+1}], v[{vO+4*t}:{vO+4*t+3}]")
    e(f"v_add_f32 v{vL}, v{vL}, v{vX}")
    e(f"v_add_f32 v{vL}, v{vL}, v{vX+2}")
    e(f"s_add_u32 s{sI}, s{sI}, 1")
    e(f"s_cmp_ge_u32 s{sI}, s{sCNT}")
    if st < D-1:
        e("s_cbranch_scc1 A_done")
    else:
        e("s_cbranch_scc0 A_loop")
lab("A_done")
def xreduce(op, reg):
    for sw in ("v_permlane32_swap_b32", "v_permlane16_swap_b32"):
        e(f"v_mov_b32 v{vA}, v{reg}")
        e(f"v_mov_b32 v{vB}, v{reg}")
        e("s_nop 1")
        e(f"{sw} v{vA}, v{vB}")
        e("s_nop 1")
        e(f"{op} v{reg}, v{vA}, v{vB}")
xreduce("v_add_f32", vL)
e(f"s_lshl_b32 s{sT0}, s{sHEAD}, 11")
e(f"s_lshl_b32 s{sT1}, s{sSEG}, 3")
e(f"s_add_u32 s{sT0}, s{sT0}, s{sT1}")
e(f"v_lshlrev_b32 v{vX}, 8, v{vC}")
assert vL == vMC + 1 and vMC % 2 == 0
e("s_mov_b64 exec, 0xff")
e(f"buffer_store_dwordx2 v[{vMC}:{vMC+1}], v{vX}, s[{SRDW}:{SRDW+3}], s{sT0} offen")
e("s_mov_b64 exec, -1")
e(f"s_lshl_b32 s{sT0}, s{sSEG}, 5")
e(f"s_add_u32 s{sT0}, s{sT0}, s{sHEAD}")
e(f"s_mul_i32 s{sT0}, s{sT0}, {8*768}")
e(f"s_add_u32 s{sT0}, s{sT0}, {O_OFF}")
e(f"v_mul_u32_u24 v{vX}, 768, v{vC}")
e(f"v_lshl_add_u32 v{vX}, v{vG}, 4, v{vX}")
e(f"v_cmp_lt_f32 vcc, 0, v{vL}")
e(f"s_and_b64 exec, exec, vcc")
e("s_cbranch_execz A_fin")
for t in range(12):
    e(f"buffer_store_dwordx4 v[{vO+4*t}:{vO+4*t+3}], v{vX}, s[{SRDW}:{SRDW+3}], s{sT0} offen offset:{64*t}")
lab("A_fin")
if cfg.STAMPS:
    e("s_mov_b64 exec, -1")
    e("s_waitcnt vmcnt(0)")
    e("s_barrier")
    e(f"s_memrealtime {pr(sST+2)}")
    e(f"s_cmp_lg_u32 s{sWAVE}, 0")
    e("s_cbranch_scc1 A_end")
    e("s_waitcnt lgkmcnt(0)")
    e(f"s_add_u32 s{sWS}, s{sWS}, 0x20000000")
    e(f"s_addc_u32 s{sWS+1}, s{sWS+1}, 0")
    e(f"s_lshl_b32 s{sT0}, s2, 4")
    e(f"v_mov_b32 v{vX}, s{sT0}")
    for i in range(4): e(f"v_mov_b32 v{vS+i}, s{sST+i}")
    e("s_mov_b64 exec, 1")
    e(f"global_store_dwordx4 v{vX}, v[{vS}:{vS+3}], {pr(sWS)}")
lab("A_end")
e("s_endpgm")
for st in range(D):
    lab(f"A_slow{st}")
    xreduce("v_max_f32", vMX)
    e(f"v_max_f32 v{vM}, v{vM}, v{vMX}")
    e(f"v_mul_f32 v{vA}, s{sC2}, v{vM}")
    e(f"v_sub_f32 v{vB}, v{vMC}, v{vA}")
    e(f"v_exp_f32 v{vB}, v{vB}")
    e(f"v_mov_b32 v{vMC}, v{vA}")
    e(f"v_mul_f32 v{vL}, v{vL}, v{vB}")
    assert vB % 2 == 0
    for i in range(24):
        e(f"v_pk_mul_f32 v[{vO+2*i}:{vO+2*i+1}], v[{vO+2*i}:{vO+2*i+1}], v[{vB}:{vB+1}] op_sel_hi:[1,0]")
    e(f"s_branch A_back{st}")

raw(".globl combine_kernel\n.p2align 8\n.type combine_kernel,@function")
lab("combine_kernel")
e("s_cmp_ge_u32 s2, 256")
e("s_cbranch_scc1 B_end")
e("s_load_dwordx2 s[4:5], s[0:1], 40")
e("s_load_dwordx2 s[6:7], s[0:1], 56")
e("s_lshl_b32 s20, s2, 8")
e("v_lshlrev_b32 v1, 3, v0")
e("v_mov_b32 v2, 0x7f000000")
e("v_cmp_gt_u32 vcc, 32, v0")
e("v_lshlrev_b32 v3, 4, v0")
e("s_nop 0")
e("v_cndmask_b32 v1, v2, v1, vcc")
e("v_cmp_gt_u32 vcc, 48, v0")
e(f"s_mul_i32 s21, s2, 768")
e(f"s_add_u32 s21, s21, {O_OFF}")
e("v_cndmask_b32 v3, v2, v3, vcc")
e("s_waitcnt lgkmcnt(0)")
e("s_mov_b32 s8, s6\n    s_and_b32 s9, s7, 0xffff\n    s_mov_b32 s10, %d\n    s_mov_b32 s11, 0x20000" % WS_USED)
e("buffer_load_dwordx2 v[4:5], v1, s[8:11], s20 offen")
e("s_mov_b32 s12, s4\n    s_and_b32 s13, s5, 0xffff\n    s_mov_b32 s14, 98304\n    s_mov_b32 s15, 0x20000")
e("v_lshrrev_b32 v6, 2, v0")
e("v_and_b32 v7, 3, v0")
e("v_lshl_add_u32 v8, v7, 5, v6")
e("v_lshlrev_b32 v9, 4, v7")
e("v_add3_u32 v9, v9, v6, 64")
e("v_add_u32 v9, 56, v9")
e("v_cmp_gt_u32 vcc, 8, v6")
e("v_mov_b32 v10, 8")
e("v_mov_b32 v11, 16")
e("v_cndmask_b32 v8, v9, v8, vcc")
e("v_cndmask_b32 v10, v10, v11, vcc")
e("v_lshlrev_b32 v8, 1, v8")
e("v_add_u32 v9, v8, v10")
e("v_add_u32 v11, v9, v10")
e("v_add_u32 v10, v11, v10")
e("s_and_b32 s22, s2, 7")
e("s_lshr_b32 s23, s2, 3")
e("s_lshl_b32 s22, s22, 5")
e("s_add_u32 s22, s22, s23")
e("s_mul_i32 s22, s22, 384")
e("s_waitcnt vmcnt(0)")
e("v_cmp_lt_f32 vcc, 0, v5")
e(f"v_mov_b32 v12, 0x{f2u(-3e38):08x}")
e("s_nop 0")
e("s_mov_b32 s24, vcc_lo")
e("v_cndmask_b32 v4, v12, v4, vcc")
for s in range(32):
    e(f"s_bitcmp1_b32 s24, {s}")
    e(f"s_cselect_b32 s25, s21, 0x{OOB:x}")
    e(f"buffer_load_dwordx4 v[{16+4*s}:{19+4*s}], v3, s[8:11], s25 offen")
    e(f"s_add_u32 s21, s21, {32*8*768}")
e("v_mov_b32 v12, v4")
for sh in (8, 4, 2, 1):
    e("s_nop 1")
    e(f"v_max_f32_dpp v12, v12, v12 row_ror:{sh} row_mask:0xf bank_mask:0xf")
e("s_nop 1")
e("v_readlane_b32 s26, v12, 0")
e("v_readlane_b32 s27, v12, 16")
e("s_nop 1")
e("v_mov_b32 v12, s26")
e("v_max_f32 v12, s27, v12")
e("v_sub_f32 v13, v4, v12")
e("v_exp_f32 v13, v13")
e("s_nop 0")
e("v_mul_f32 v14, v13, v5")
for sh in (8, 4, 2, 1):
    e("s_nop 1")
    e(f"v_add_f32_dpp v14, v14, v14 row_ror:{sh} row_mask:0xf bank_mask:0xf")
e("s_nop 1")
e("v_readlane_b32 s26, v14, 0")
e("v_readlane_b32 s27, v14, 16")
e("s_nop 1")
e("v_mov_b32 v14, s26")
e("v_add_f32 v14, s27, v14")
e("v_rcp_f32 v14, v14")
e("s_nop 0")
e("v_mul_f32 v13, v13, v14")
for i in range(4): e(f"v_mov_b32 v{144+i}, 0")
for s in range(32):
    e(f"v_readlane_b32 s{32+s}, v13, {s}")
for s in range(32):
    e(f"s_waitcnt vmcnt({31-s})")
    for i in range(4):
        e(f"v_fmac_f32 v{144+i}, s{32+s}, v{16+4*s+i}")
e("v_cvt_pk_bf16_f32 v4, v144, v145")
e("v_cvt_pk_bf16_f32 v5, v146, v147")
e("v_cmp_gt_u32 vcc, 48, v0")
e("s_and_b64 exec, exec, vcc")
e("buffer_store_short v4, v8, s[12:15], s22 offen")
e("buffer_store_short_d16_hi v4, v9, s[12:15], s22 offen")
e("buffer_store_short v5, v11, s[12:15], s22 offen")
e("buffer_store_short_d16_hi v5, v10, s[12:15], s22 offen")
lab("B_end")
e("s_endpgm")

raw('.section .rodata,"a"')
for name, nfv, acc, nsg in ((f"{NAME}_kernel", NFV, ACC, 102), ("combine_kernel", 148, 148, 72)):
    raw(f""".p2align 6
.amdhsa_kernel {name}
  .amdhsa_next_free_vgpr {nfv}
  .amdhsa_next_free_sgpr {nsg}
  .amdhsa_accum_offset {acc}
  .amdhsa_group_segment_fixed_size 0
  .amdhsa_kernarg_size 64
  .amdhsa_user_sgpr_count 2
  .amdhsa_user_sgpr_kernarg_segment_ptr 1
  .amdhsa_system_sgpr_workgroup_id_x 1
.end_amdhsa_kernel""")
open(sys.argv[1], 'w').write("\n".join(out) + "\n")
```

```python
import sys, struct, math
NAME = "standalone__paged_block_table_kv_radixattention__sampling"
KV_BYTES = 1152*196608
def f2u(x): return struct.unpack('<I', struct.pack('<f', x))[0]
C2 = (192 ** -0.5) * math.log2(math.e)

class Cfg:
    D = 3
    STRIDE = 4
    STAMPS = False
    NSM = True
    KF = 'nt'
    VF = 'nt'
cfg = Cfg()
for a in sys.argv[2:]:
    k, v = a.split('=')
    setattr(cfg, k, eval(v))
D = cfg.D
NSEG = 32
ML_OFF = 0
O_OFF = 65536
WS_USED = O_OFF + NSEG*32*8*768
OOB = 0xF0000000

out = []
def e(s): out.append("    " + s)
def lab(s): out.append(s + ":")
def raw(s): out.append(s)

hdr = open('cdna_kernels/%s.s.ref' % NAME).read().split('\n')
for l in hdr:
    if l.startswith('; Override') or l.startswith('; grid=') or l.startswith('; @launch'): continue
    if not l.startswith(';'): break
    raw(l)
LDS_BYTES = 8192 + 256
raw(f"; @launch kernel={NAME}_kernel grid=(256,1,1) block=(256,1,1) lds={LDS_BYTES}")
raw(f"; @launch kernel=combine_kernel grid=(256,1,1) block=(64,1,1) lds=0")
raw('.amdgcn_target "amdgcn-amd-amdhsa--gfx950"')
raw('.text')

raw(f".globl {NAME}_kernel\n.p2align 8\n.type {NAME}_kernel,@function")
lab(f"{NAME}_kernel")
sQ, sK, sV, sBT, sCTX, sOUT, sDBG, sWS = 4, 6, 8, 10, 12, 14, 16, 18
SRDK, SRDV, SRDW = 20, 24, 28
sC = 32
sVAL = 40
sNL = 56
sEQ = 72
sWAVE, sHOFF, sSEG, sN, sE0, sCNT, sI, sT0, sT1, sT2, sHEAD = 86, 87, 88, 89, 90, 91, 92, 93, 94, 95, 96
sST = 98
sREC = 40
sMK = 48
sA = 50
sJ16 = 58
sO = 60
sC2, sSELLO, sSELHI = 64, 65, 66
vLANE, vC, vG = 1, 2, 3
vOK, vOV4, vOV2, vCTXM, vLIST, vM, vMC, vL, vNINF, vLIM, vMX, vA, vB = 4, 5, 6, 7, 8, 9, 10, 11, 12, 13, 14, 15, 42
vQ = 16
vC1, vC2 = 28, 32
vS = 36
vP = 40
vX = 44
vO = 48
vT = 96
vV = 120
NV = vV + 24*D
ACC = (NV + 3)//4*4
NFV = ACC + 24*D
pT = 48
pM = 56
pJX, pA, pB, pCNT = 64, 65, 66, 67

def pr(a): return f"s[{a}:{a+1}]"

e("s_cmp_ge_u32 s2, 256")
e("s_cbranch_scc1 A_end")
if cfg.STAMPS: e(f"s_memrealtime {pr(sST)}")
e("s_load_dwordx16 s[4:19], s[0:1], 0")
e(f"v_and_b32 v{vLANE}, 63, v0")
e(f"v_lshrrev_b32 v{vA}, 6, v0")
e(f"v_and_b32 v{vC}, 15, v0")
e(f"v_readfirstlane_b32 s{sWAVE}, v{vA}")
e(f"v_lshrrev_b32 v{vG}, 4, v{vLANE}")
e(f"v_lshlrev_b32 v{pA}, 2, v0")
e(f"v_add_u32 v{pB}, 4096, v{pA}")
if cfg.NSM:
    e(f"s_and_b32 s{sHEAD}, s2, 7")
    e(f"s_lshr_b32 s{sSEG}, s2, 3")
else:
    e(f"s_lshr_b32 s{sHEAD}, s2, 5")
    e(f"s_and_b32 s{sSEG}, s2, 31")
e(f"s_lshl_b32 s{sHEAD}, s{sHEAD}, 2")
e(f"s_add_u32 s{sHEAD}, s{sHEAD}, s{sWAVE}")
e(f"s_mul_i32 s{sHOFF}, s{sHEAD}, 384")
e(f"v_and_b32 v{vX}, 7, v{vC}")
e(f"v_mul_u32_u24 v{vX+1}, 12288, v{vX}")
e(f"v_lshl_add_u32 v{vX+1}, v{vG}, 5, v{vX+1}")
e(f"v_lshrrev_b32 v{vX+2}, 3, v{vC}")
e(f"v_lshl_add_u32 v{vX+1}, v{vX+2}, 4, v{vX+1}")
e(f"v_add_u32 v{vX+1}, s{sHOFF}, v{vX+1}")
e(f"v_lshlrev_b32 v{vX}, 2, v{vX}")
e("s_waitcnt lgkmcnt(0)")
for b in range(8):
    e(f"global_load_dword v{pT+b}, v{pA if b < 4 else pB}, {pr(sBT)} offset:{(b & 3)*1024}")
e(f"s_load_dwordx8 s[{sC}:{sC+7}], {pr(sCTX)}, 0")
e(f"global_load_dword v{vCTXM}, v{vX}, {pr(sCTX)}")
for s in range(3):
    e(f"global_load_dwordx4 v[{vQ+4*s}:{vQ+4*s+3}], v{vX+1}, {pr(sQ)} offset:{128*s}")
for srd, base, size in ((SRDK, sK, KV_BYTES), (SRDV, sV, KV_BYTES), (SRDW, sWS, WS_USED)):
    e(f"s_mov_b32 s{srd}, s{base}")
    e(f"s_and_b32 s{srd+1}, s{base+1}, 0xffff")
    e(f"s_mov_b32 s{srd+2}, {size}")
    e(f"s_mov_b32 s{srd+3}, 0x20000")
e(f"v_lshrrev_b32 v{vOK}, 1, v{vC}")
e(f"v_mul_u32_u24 v{vOK}, 12288, v{vOK}")
e(f"v_lshl_add_u32 v{vOK}, v{vG}, 5, v{vOK}")
e(f"v_and_b32 v{vA}, 1, v{vC}")
e(f"v_lshl_add_u32 v{vOK}, v{vA}, 4, v{vOK}")
e(f"v_mul_u32_u24 v{vA}, 24576, v{vG}")
e(f"v_lshl_add_u32 v{vOV4}, v{vC}, 4, v{vA}")
e(f"v_lshl_add_u32 v{vOV2}, v{vC}, 3, v{vA}")
e(f"v_lshlrev_b32 v{pJX}, 16, v0")
e(f"v_lshlrev_b32 v{pA}, 4, v0")
e("s_waitcnt lgkmcnt(0)")
for b in range(8):
    e(f"s_cmp_lt_i32 s{sC+b}, 1")
    e(f"s_cselect_b32 s{sC+b}, 0x1000, s{sC+b}")
for b in range(8):
    e(f"v_cmp_gt_i32_e64 {pr(sVAL+2*b)}, s{sC+b}, v{pA}")
for b in range(1, 8):
    e(f"s_mov_b64 {pr(sNL+2*b)}, 0")
for b in range(8):
    e(f"v_mov_b32 v{pM+b}, 0")
e("s_waitcnt vmcnt(4)")
for b in range(8):
    e(f"v_cndmask_b32_e64 v{pT+b}, {-(b+1)}, v{pT+b}, {pr(sVAL+2*b)}")
for b in range(7):
    hi = list(range(7, b, -1))
    for k, b2 in enumerate(hi):
        e(f"v_cmp_eq_u32_e64 {pr(sEQ+2*k)}, v{pT+b}, v{pT+b2}")
    if len(hi) < 3: e(f"s_nop {2-len(hi)}")
    for k, b2 in enumerate(hi):
        e(f"v_addc_co_u32_e64 v{pM+b}, vcc, v{pM+b}, v{pM+b}, {pr(sEQ+2*k)}")
        e(f"s_or_b64 {pr(sNL+2*b2)}, {pr(sNL+2*b2)}, {pr(sEQ+2*k)}")
for b in range(8):
    e(f"v_lshl_or_b32 v{pM+b}, v{pM+b}, 1, 1")
    e(f"v_lshlrev_b32 v{pM+b}, {24+b}, v{pM+b}")
    e(f"v_or3_b32 v{pT+b}, v{pT+b}, v{pJX}, v{pM+b}")
    if b: e(f"s_andn2_b64 {pr(sVAL+2*b)}, {pr(sVAL+2*b)}, {pr(sNL+2*b)}")
e(f"v_mov_b32 v{pCNT}, 0")
for b in range(8):
    e(f"s_bcnt1_i32_b64 s{sT0}, {pr(sVAL+2*b)}")
    e(f"v_writelane_b32 v{pCNT}, s{sT0}, {b}")
e(f"s_lshl_b32 s{sT0}, s{sWAVE}, 2")
e(f"s_add_u32 s{sT0}, s{sT0}, 8192")
e(f"v_lshl_add_u32 v{pA}, v{vLANE}, 4, s{sT0}")
e(f"s_mov_b64 exec, 0xff")
e(f"ds_write_b32 v{pA}, v{pCNT}")
e(f"s_mov_b64 exec, -1")
for b in range(8):
    e(f"v_mbcnt_lo_u32_b32 v{pM+b}, s{sVAL+2*b}, 0")
    e(f"v_mbcnt_hi_u32_b32 v{pM+b}, s{sVAL+2*b+1}, v{pM+b}")
e(f"v_and_b32 v{pA}, 31, v{vLANE}")
e(f"v_lshlrev_b32 v{pA}, 2, v{pA}")
e("s_waitcnt lgkmcnt(0)")
e("s_barrier")
e(f"ds_read_b32 v{pCNT}, v{pA} offset:8192")
e("s_waitcnt lgkmcnt(0)")
e(f"v_mov_b32 v{pB}, v{pCNT}")
for sh in (1, 2, 4, 8):
    e("s_nop 1")
    e(f"v_add_u32_dpp v{pB}, v{pB}, v{pB} row_shr:{sh} row_mask:0xf bank_mask:0xf bound_ctrl:0")
e("s_nop 1")
e(f"v_add_u32_dpp v{pB}, v{pB}, v{pB} row_bcast:15 row_mask:0xa bank_mask:0xf")
e("s_nop 1")
e(f"v_readlane_b32 s{sN}, v{pB}, 31")
e(f"v_sub_u32 v{pB}, v{pB}, v{pCNT}")
e(f"s_mov_b32 s{sT1}, s{sWAVE}")
for b in range(8):
    e(f"v_readlane_b32 s{sEQ+b}, v{pB}, s{sT1}")
    e(f"s_add_u32 s{sT1}, s{sT1}, 4")
e("s_nop 1")
for b in range(8):
    e(f"v_add_lshl_u32 v{pM+b}, v{pM+b}, s{sEQ+b}, 2")
for b in range(8):
    e(f"s_mov_b64 exec, {pr(sVAL+2*b)}")
    e(f"ds_write_b32 v{pM+b}, v{pT+b}")
e(f"s_mov_b64 exec, -1")
ST = cfg.STRIDE
lst = ST.bit_length()-1
lsup = 5 - lst
e(f"s_lshr_b32 s{sT0}, s{sSEG}, {lst}")
e(f"s_and_b32 s{sT1}, s{sSEG}, {ST-1}")
e(f"s_mul_i32 s{sE0}, s{sT0}, s{sN}")
e(f"s_add_u32 s{sT2}, s{sE0}, s{sN}")
e(f"s_lshr_b32 s{sE0}, s{sE0}, {lsup}")
e(f"s_lshr_b32 s{sT2}, s{sT2}, {lsup}")
e(f"s_add_u32 s{sE0}, s{sE0}, s{sT1}")
e(f"s_sub_i32 s{sCNT}, s{sT2}, s{sE0}")
e(f"s_add_i32 s{sCNT}, s{sCNT}, {ST-1}")
e(f"s_ashr_i32 s{sCNT}, s{sCNT}, {lst}")
e(f"s_max_i32 s{sCNT}, s{sCNT}, 0")
e(f"v_lshlrev_b32 v{pA}, {lst}, v{vLANE}")
e(f"v_add_lshl_u32 v{pA}, v{pA}, s{sE0}, 2")
e(f"v_min_u32 v{pA}, 8188, v{pA}")
e("s_waitcnt lgkmcnt(0)")
e("s_barrier")
e(f"ds_read_b32 v{vLIST}, v{pA}")
e("s_waitcnt vmcnt(0)")
e(f"v_cmp_gt_i32 vcc, 1, v{vCTXM}")
e(f"v_mov_b32 v{vA}, 0x1000")
e(f"v_lshlrev_b32 v{vB}, 1, v{vG}")
e(f"v_cndmask_b32 v{vCTXM}, v{vCTXM}, v{vA}, vcc")
for i in range(12):
    e(f"v_cndmask_b32_e64 v{vQ+i}, v{vQ+i}, 0, vcc")
e(f"v_sub_u32 v{vCTXM}, v{vCTXM}, v{vB}")
e(f"s_mov_b32 s{sC2}, 0x{f2u(C2):08x}")
e(f"s_mov_b32 s{sSELLO}, 0x05040100")
e(f"s_mov_b32 s{sSELHI}, 0x07060302")
e("s_waitcnt lgkmcnt(0)")

def next_rec(st, idx_expr_setup):
    e(f"v_readlane_b32 s{sREC+st}, v{vLIST}, s{sT0}")
    e("s_nop 1")
    e(f"s_and_b32 s{sT1}, s{sREC+st}, 0xffff")
    e(f"s_mul_i32 s{sT1}, s{sT1}, 196608")
    e(f"s_add_u32 s{sT1}, s{sT1}, s{sHOFF}")
    e(f"s_cmp_lt_u32 s{sT0}, s{sCNT}")
    e(f"s_cselect_b32 s{sO}, s{sT1}, 0x{OOB:x}")
    e(f"s_add_u32 s{sO+1}, s{sO}, 12288")
    e(f"s_add_u32 s{sO+2}, s{sO}, {8*12288}")
    e(f"s_add_u32 s{sO+3}, s{sO}, {9*12288}")
def k_loads(st):
    for u in range(2):
        for s in range(3):
            r = st*24 + u*12 + s*4
            e(f"buffer_load_dwordx4 a[{r}:{r+3}], v{vOK}, s[{SRDK}:{SRDK+3}], s{sO+2*u} offen offset:{128*s} {cfg.KF}")
def v_loads(st):
    for i in range(4):
        r = vV + st*24 + i*4
        e(f"buffer_load_dwordx4 v[{r}:{r+3}], v{vOV4}, s[{SRDV}:{SRDV+3}], s{sO+i} offen {cfg.VF}")
        r = vV + st*24 + 16 + i*2
        e(f"buffer_load_dwordx2 v[{r}:{r+1}], v{vOV2}, s[{SRDV}:{SRDV+3}], s{sO+i} offen offset:256 {cfg.VF}")

for st in range(D):
    e(f"s_mov_b32 s{sT0}, {st}")
    next_rec(st, None)
    k_loads(st)
    v_loads(st)
e(f"v_mov_b32 v{vM}, 0x{f2u(-3e38):08x}")
e(f"v_mul_f32 v{vMC}, s{sC2}, v{vM}")
e(f"v_mov_b32 v{vL}, 0")
e(f"v_mov_b32 v{vNINF}, 0xff800000")
for i in range(48):
    e(f"v_mov_b32 v{vO+i}, 0")
e(f"s_mov_b32 s{sI}, 0")
e(f"s_cmp_eq_u32 s{sCNT}, 0")
e("s_cbranch_scc1 A_done")
lab("A_loop")
for st in range(D):
    e(f"s_bfe_u32 s{sJ16}, s{sREC+st}, 0x80010")
    e(f"s_lshl_b32 s{sJ16}, s{sJ16}, 4")
    e(f"s_lshr_b32 s{sMK}, s{sREC+st}, 24")
    e(f"s_mul_i32 s{sMK}, s{sMK}, 0x10001")
    e(f"s_mov_b32 s{sMK+1}, s{sMK}")
    e(f"s_add_u32 s{sT0}, s{sI}, {D}")
    next_rec(st, None)
    e(f"v_subrev_u32 v{vLIM}, s{sJ16}, v{vCTXM}")
    e(f"v_cndmask_b32_e64 v{vLIM}, 0, v{vLIM}, {pr(sMK)}")
    for i, o in enumerate((0, 1, 8, 9)):
        e(f"v_cmp_lt_i32_e64 {pr(sA+2*i)}, {o}, v{vLIM}")
    e(f"s_waitcnt vmcnt({8+(D-1)*14})")
    for s in range(3):
        for u, c in ((0, vC1), (1, vC2)):
            r = st*24 + u*12 + s*4
            src = "0" if s == 0 else f"v[{c}:{c+3}]"
            e(f"v_mfma_f32_16x16x32_bf16 v[{c}:{c+3}], a[{r}:{r+3}], v[{vQ+4*s}:{vQ+4*s+3}], {src}")
    k_loads(st)
    e("s_nop 2")
    for i, (c, r) in enumerate(((vC1, 0), (vC1, 2), (vC2, 0), (vC2, 2))):
        e(f"v_add_f32_dpp v{vS+i}, v{c+r+1}, v{c+r} row_ror:8 row_mask:0xf bank_mask:0xf")
    for i in range(4):
        e(f"v_cndmask_b32_e64 v{vS+i}, v{vNINF}, v{vS+i}, {pr(sA+2*i)}")
    e(f"v_max3_f32 v{vMX}, v{vS}, v{vS+1}, v{vS+2}")
    e(f"v_max_f32 v{vMX}, v{vMX}, v{vS+3}")
    e(f"v_cmp_gt_f32 vcc, v{vMX}, v{vM}")
    e(f"s_cbranch_vccnz A_slow{st}")
    lab(f"A_back{st}")
    for i in range(4):
        e(f"v_fma_f32 v{vX+i}, v{vS+i}, s{sC2}, -v{vMC}")
    for i in range(4):
        e(f"v_exp_f32 v{vX+i}, v{vX+i}")
    e(f"s_waitcnt vmcnt({6+(D-1)*14})")
    vb = vV + st*24
    def perm(t):
        if t < 8:
            q, hsel = t >> 1, t & 1
            regs = [vb + i*4 + q for i in range(4)]
        else:
            q, hsel = (t-8) >> 1, t & 1
            regs = [vb + 16 + i*2 + q for i in range(4)]
        sel = sSELHI if hsel else sSELLO
        e(f"v_perm_b32 v{vT+2*t}, v{regs[1]}, v{regs[0]}, s{sel}")
        e(f"v_perm_b32 v{vT+2*t+1}, v{regs[3]}, v{regs[2]}, s{sel}")
    e(f"v_cvt_pk_bf16_f32 v{vP}, v{vX}, v{vX+1}")
    e(f"v_cvt_pk_bf16_f32 v{vP+1}, v{vX+2}, v{vX+3}")
    for t in range(12): perm(t)
    v_loads(st)
    e(f"v_add_f32 v{vX}, v{vX}, v{vX+1}")
    e(f"v_add_f32 v{vX+2}, v{vX+2}, v{vX+3}")
    for t in range(12):
        e(f"v_mfma_f32_16x16x16_bf16 v[{vO+4*t}:{vO+4*t+3}], v[{vT+2*t}:{vT+2*t+1}], v[{vP}:{vP+1}], v[{vO+4*t}:{vO+4*t+3}]")
    e(f"v_add_f32 v{vL}, v{vL}, v{vX}")
    e(f"v_add_f32 v{vL}, v{vL}, v{vX+2}")
    e(f"s_add_u32 s{sI}, s{sI}, 1")
    e(f"s_cmp_ge_u32 s{sI}, s{sCNT}")
    if st < D-1:
        e("s_cbranch_scc1 A_done")
    else:
        e("s_cbranch_scc0 A_loop")
lab("A_done")
def xreduce(op, reg):
    for sw in ("v_permlane32_swap_b32", "v_permlane16_swap_b32"):
        e(f"v_mov_b32 v{vA}, v{reg}")
        e(f"v_mov_b32 v{vB}, v{reg}")
        e("s_nop 1")
        e(f"{sw} v{vA}, v{vB}")
        e("s_nop 1")
        e(f"{op} v{reg}, v{vA}, v{vB}")
xreduce("v_add_f32", vL)
e(f"s_lshl_b32 s{sT0}, s{sHEAD}, 11")
e(f"s_lshl_b32 s{sT1}, s{sSEG}, 3")
e(f"s_add_u32 s{sT0}, s{sT0}, s{sT1}")
e(f"v_lshlrev_b32 v{vX}, 8, v{vC}")
assert vL == vMC + 1 and vMC % 2 == 0
e("s_mov_b64 exec, 0xff")
e(f"buffer_store_dwordx2 v[{vMC}:{vMC+1}], v{vX}, s[{SRDW}:{SRDW+3}], s{sT0} offen")
e("s_mov_b64 exec, -1")
e(f"s_lshl_b32 s{sT0}, s{sSEG}, 5")
e(f"s_add_u32 s{sT0}, s{sT0}, s{sHEAD}")
e(f"s_mul_i32 s{sT0}, s{sT0}, {8*768}")
e(f"s_add_u32 s{sT0}, s{sT0}, {O_OFF}")
e(f"v_mul_u32_u24 v{vX}, 768, v{vC}")
e(f"v_lshl_add_u32 v{vX}, v{vG}, 4, v{vX}")
e(f"v_cmp_lt_f32 vcc, 0, v{vL}")
e(f"s_and_b64 exec, exec, vcc")
e("s_cbranch_execz A_fin")
for t in range(12):
    e(f"buffer_store_dwordx4 v[{vO+4*t}:{vO+4*t+3}], v{vX}, s[{SRDW}:{SRDW+3}], s{sT0} offen offset:{64*t}")
lab("A_fin")
if cfg.STAMPS:
    e("s_mov_b64 exec, -1")
    e("s_waitcnt vmcnt(0)")
    e("s_barrier")
    e(f"s_memrealtime {pr(sST+2)}")
    e(f"s_cmp_lg_u32 s{sWAVE}, 0")
    e("s_cbranch_scc1 A_end")
    e("s_waitcnt lgkmcnt(0)")
    e(f"s_add_u32 s{sWS}, s{sWS}, 0x20000000")
    e(f"s_addc_u32 s{sWS+1}, s{sWS+1}, 0")
    e(f"s_lshl_b32 s{sT0}, s2, 4")
    e(f"v_mov_b32 v{vX}, s{sT0}")
    for i in range(4): e(f"v_mov_b32 v{vS+i}, s{sST+i}")
    e("s_mov_b64 exec, 1")
    e(f"global_store_dwordx4 v{vX}, v[{vS}:{vS+3}], {pr(sWS)}")
lab("A_end")
e("s_endpgm")
for st in range(D):
    lab(f"A_slow{st}")
    xreduce("v_max_f32", vMX)
    e(f"v_max_f32 v{vM}, v{vM}, v{vMX}")
    e(f"v_mul_f32 v{vA}, s{sC2}, v{vM}")
    e(f"v_sub_f32 v{vB}, v{vMC}, v{vA}")
    e(f"v_exp_f32 v{vB}, v{vB}")
    e(f"v_mov_b32 v{vMC}, v{vA}")
    e(f"v_mul_f32 v{vL}, v{vL}, v{vB}")
    assert vB % 2 == 0
    for i in range(24):
        e(f"v_pk_mul_f32 v[{vO+2*i}:{vO+2*i+1}], v[{vO+2*i}:{vO+2*i+1}], v[{vB}:{vB+1}] op_sel_hi:[1,0]")
    e(f"s_branch A_back{st}")

raw(".globl combine_kernel\n.p2align 8\n.type combine_kernel,@function")
lab("combine_kernel")
e("s_cmp_ge_u32 s2, 256")
e("s_cbranch_scc1 B_end")
e("s_load_dwordx2 s[4:5], s[0:1], 40")
e("s_load_dwordx2 s[6:7], s[0:1], 56")
e("s_lshl_b32 s20, s2, 8")
e("v_lshlrev_b32 v1, 3, v0")
e("v_mov_b32 v2, 0x7f000000")
e("v_cmp_gt_u32 vcc, 32, v0")
e("v_lshlrev_b32 v3, 4, v0")
e("s_nop 0")
e("v_cndmask_b32 v1, v2, v1, vcc")
e("v_cmp_gt_u32 vcc, 48, v0")
e(f"s_mul_i32 s21, s2, 768")
e(f"s_add_u32 s21, s21, {O_OFF}")
e("v_cndmask_b32 v3, v2, v3, vcc")
e("s_waitcnt lgkmcnt(0)")
e("s_mov_b32 s8, s6\n    s_and_b32 s9, s7, 0xffff\n    s_mov_b32 s10, %d\n    s_mov_b32 s11, 0x20000" % WS_USED)
e("buffer_load_dwordx2 v[4:5], v1, s[8:11], s20 offen")
e("s_mov_b32 s12, s4\n    s_and_b32 s13, s5, 0xffff\n    s_mov_b32 s14, 98304\n    s_mov_b32 s15, 0x20000")
e("v_lshrrev_b32 v6, 2, v0")
e("v_and_b32 v7, 3, v0")
e("v_lshl_add_u32 v8, v7, 5, v6")
e("v_lshlrev_b32 v9, 4, v7")
e("v_add3_u32 v9, v9, v6, 64")
e("v_add_u32 v9, 56, v9")
e("v_cmp_gt_u32 vcc, 8, v6")
e("v_mov_b32 v10, 8")
e("v_mov_b32 v11, 16")
e("v_cndmask_b32 v8, v9, v8, vcc")
e("v_cndmask_b32 v10, v10, v11, vcc")
e("v_lshlrev_b32 v8, 1, v8")
e("v_add_u32 v9, v8, v10")
e("v_add_u32 v11, v9, v10")
e("v_add_u32 v10, v11, v10")
e("s_and_b32 s22, s2, 7")
e("s_lshr_b32 s23, s2, 3")
e("s_lshl_b32 s22, s22, 5")
e("s_add_u32 s22, s22, s23")
e("s_mul_i32 s22, s22, 384")
e("s_waitcnt vmcnt(0)")
e("v_cmp_lt_f32 vcc, 0, v5")
e(f"v_mov_b32 v12, 0x{f2u(-3e38):08x}")
e("s_nop 0")
e("s_mov_b32 s24, vcc_lo")
e("v_cndmask_b32 v4, v12, v4, vcc")
for s in range(32):
    e(f"s_bitcmp1_b32 s24, {s}")
    e(f"s_cselect_b32 s25, s21, 0x{OOB:x}")
    e(f"buffer_load_dwordx4 v[{16+4*s}:{19+4*s}], v3, s[8:11], s25 offen")
    e(f"s_add_u32 s21, s21, {32*8*768}")
e("v_mov_b32 v12, v4")
for sh in (8, 4, 2, 1):
    e("s_nop 1")
    e(f"v_max_f32_dpp v12, v12, v12 row_ror:{sh} row_mask:0xf bank_mask:0xf")
e("s_nop 1")
e("v_readlane_b32 s26, v12, 0")
e("v_readlane_b32 s27, v12, 16")
e("s_nop 1")
e("v_mov_b32 v12, s26")
e("v_max_f32 v12, s27, v12")
e("v_sub_f32 v13, v4, v12")
e("v_exp_f32 v13, v13")
e("s_nop 0")
e("v_mul_f32 v14, v13, v5")
for sh in (8, 4, 2, 1):
    e("s_nop 1")
    e(f"v_add_f32_dpp v14, v14, v14 row_ror:{sh} row_mask:0xf bank_mask:0xf")
e("s_nop 1")
e("v_readlane_b32 s26, v14, 0")
e("v_readlane_b32 s27, v14, 16")
e("s_nop 1")
e("v_mov_b32 v14, s26")
e("v_add_f32 v14, s27, v14")
e("v_rcp_f32 v14, v14")
e("s_nop 0")
e("v_mul_f32 v13, v13, v14")
for i in range(4): e(f"v_mov_b32 v{144+i}, 0")
for s in range(32):
    e(f"v_readlane_b32 s{32+s}, v13, {s}")
for s in range(32):
    e(f"s_waitcnt vmcnt({31-s})")
    for i in range(4):
        e(f"v_fmac_f32 v{144+i}, s{32+s}, v{16+4*s+i}")
e("v_cvt_pk_bf16_f32 v4, v144, v145")
e("v_cvt_pk_bf16_f32 v5, v146, v147")
e("v_cmp_gt_u32 vcc, 48, v0")
e("s_and_b64 exec, exec, vcc")
e("buffer_store_short v4, v8, s[12:15], s22 offen")
e("buffer_store_short_d16_hi v4, v9, s[12:15], s22 offen")
e("buffer_store_short v5, v11, s[12:15], s22 offen")
e("buffer_store_short_d16_hi v5, v10, s[12:15], s22 offen")
lab("B_end")
e("s_endpgm")

raw('.section .rodata,"a"')
for name, nfv, acc, nsg in ((f"{NAME}_kernel", NFV, ACC, 102), ("combine_kernel", 148, 148, 72)):
    raw(f""".p2align 6
.amdhsa_kernel {name}
  .amdhsa_next_free_vgpr {nfv}
  .amdhsa_next_free_sgpr {nsg}
  .amdhsa_accum_offset {acc}
  .amdhsa_group_segment_fixed_size 0
  .amdhsa_kernarg_size 64
  .amdhsa_user_sgpr_count 2
  .amdhsa_user_sgpr_kernarg_segment_ptr 1
  .amdhsa_system_sgpr_workgroup_id_x 1
.end_amdhsa_kernel""")
open(sys.argv[1], 'w').write("\n".join(out) + "\n")
```

```python
import sys, struct, math
NAME = "standalone__paged_block_table_kv_radixattention__sampling"
KV_BYTES = 1152*196608
def f2u(x): return struct.unpack('<I', struct.pack('<f', x))[0]
C2 = (192 ** -0.5) * math.log2(math.e)

class Cfg:
    D = 3
    STRIDE = 4
    STAMPS = False
    NSM = True
    DBGST = False
    KF = 'nt'
    VF = 'nt'
cfg = Cfg()
for a in sys.argv[2:]:
    k, v = a.split('=')
    setattr(cfg, k, eval(v))
D = cfg.D
NSEG = 32
ML_OFF = 0
O_OFF = 65536
WS_USED = O_OFF + NSEG*32*8*768
OOB = 0xF0000000

out = []
def e(s): out.append("    " + s)
def lab(s): out.append(s + ":")
def raw(s): out.append(s)

hdr = open('cdna_kernels/%s.s.ref' % NAME).read().split('\n')
for l in hdr:
    if l.startswith('; Override') or l.startswith('; grid=') or l.startswith('; @launch'): continue
    if not l.startswith(';'): break
    raw(l)
LDS_BYTES = 8192 + 256
raw(f"; @launch kernel={NAME}_kernel grid=(256,1,1) block=(256,1,1) lds={LDS_BYTES}")
raw(f"; @launch kernel=combine_kernel grid=(256,1,1) block=(64,1,1) lds=0")
raw('.amdgcn_target "amdgcn-amd-amdhsa--gfx950"')
raw('.text')

raw(f".globl {NAME}_kernel\n.p2align 8\n.type {NAME}_kernel,@function")
lab(f"{NAME}_kernel")
sQ, sK, sV, sBT, sCTX, sOUT, sDBG, sWS = 4, 6, 8, 10, 12, 14, 16, 18
SRDK, SRDV, SRDW = 20, 24, 28
sC = 32
sVAL = 40
sNL = 56
sEQ = 72
sWAVE, sHOFF, sSEG, sN, sE0, sCNT, sI, sT0, sT1, sT2, sHEAD = 86, 87, 88, 89, 90, 91, 92, 93, 94, 95, 96
sST = 98
sREC = 40
sMK = 48
sA = 50
sJ16 = 58
sO = 60
sC2, sSELLO, sSELHI = 64, 65, 66
vLANE, vC, vG = 1, 2, 3
vOK, vOV4, vOV2, vCTXM, vLIST, vM, vMC, vL, vNINF, vLIM, vMX, vA, vB = 4, 5, 6, 7, 8, 9, 10, 11, 12, 13, 14, 15, 42
vQ = 16
vC1, vC2 = 28, 32
vS = 36
vP = 40
vX = 44
vO = 48
vT = 96
vV = 120
NV = vV + 24*D
ACC = (NV + 3)//4*4
NFV = ACC + 24*D
pT = 48
pM = 56
pJX, pA, pB, pCNT = 64, 65, 66, 67

def pr(a): return f"s[{a}:{a+1}]"

e("s_cmp_ge_u32 s2, 256")
e("s_cbranch_scc1 A_end")
if cfg.STAMPS or cfg.DBGST: e(f"s_memrealtime {pr(sST)}")
e("s_load_dwordx16 s[4:19], s[0:1], 0")
e(f"v_and_b32 v{vLANE}, 63, v0")
e(f"v_lshrrev_b32 v{vA}, 6, v0")
e(f"v_and_b32 v{vC}, 15, v0")
e(f"v_readfirstlane_b32 s{sWAVE}, v{vA}")
e(f"v_lshrrev_b32 v{vG}, 4, v{vLANE}")
e(f"v_lshlrev_b32 v{pA}, 2, v0")
e(f"v_add_u32 v{pB}, 4096, v{pA}")
if cfg.NSM:
    e(f"s_and_b32 s{sHEAD}, s2, 7")
    e(f"s_lshr_b32 s{sSEG}, s2, 3")
else:
    e(f"s_lshr_b32 s{sHEAD}, s2, 5")
    e(f"s_and_b32 s{sSEG}, s2, 31")
e(f"s_lshl_b32 s{sHEAD}, s{sHEAD}, 2")
e(f"s_add_u32 s{sHEAD}, s{sHEAD}, s{sWAVE}")
e(f"s_mul_i32 s{sHOFF}, s{sHEAD}, 384")
e(f"v_and_b32 v{vX}, 7, v{vC}")
e(f"v_mul_u32_u24 v{vX+1}, 12288, v{vX}")
e(f"v_lshl_add_u32 v{vX+1}, v{vG}, 5, v{vX+1}")
e(f"v_lshrrev_b32 v{vX+2}, 3, v{vC}")
e(f"v_lshl_add_u32 v{vX+1}, v{vX+2}, 4, v{vX+1}")
e(f"v_add_u32 v{vX+1}, s{sHOFF}, v{vX+1}")
e(f"v_lshlrev_b32 v{vX}, 2, v{vX}")
e("s_waitcnt lgkmcnt(0)")
for b in range(8):
    e(f"global_load_dword v{pT+b}, v{pA if b < 4 else pB}, {pr(sBT)} offset:{(b & 3)*1024}")
e(f"s_load_dwordx8 s[{sC}:{sC+7}], {pr(sCTX)}, 0")
e(f"global_load_dword v{vCTXM}, v{vX}, {pr(sCTX)}")
for s in range(3):
    e(f"global_load_dwordx4 v[{vQ+4*s}:{vQ+4*s+3}], v{vX+1}, {pr(sQ)} offset:{128*s}")
for srd, base, size in ((SRDK, sK, KV_BYTES), (SRDV, sV, KV_BYTES), (SRDW, sWS, WS_USED)):
    e(f"s_mov_b32 s{srd}, s{base}")
    e(f"s_and_b32 s{srd+1}, s{base+1}, 0xffff")
    e(f"s_mov_b32 s{srd+2}, {size}")
    e(f"s_mov_b32 s{srd+3}, 0x20000")
e(f"v_lshrrev_b32 v{vOK}, 1, v{vC}")
e(f"v_mul_u32_u24 v{vOK}, 12288, v{vOK}")
e(f"v_lshl_add_u32 v{vOK}, v{vG}, 5, v{vOK}")
e(f"v_and_b32 v{vA}, 1, v{vC}")
e(f"v_lshl_add_u32 v{vOK}, v{vA}, 4, v{vOK}")
e(f"v_mul_u32_u24 v{vA}, 24576, v{vG}")
e(f"v_lshl_add_u32 v{vOV4}, v{vC}, 4, v{vA}")
e(f"v_lshl_add_u32 v{vOV2}, v{vC}, 3, v{vA}")
e(f"v_lshlrev_b32 v{pJX}, 16, v0")
e(f"v_lshlrev_b32 v{pA}, 4, v0")
e("s_waitcnt lgkmcnt(0)")
for b in range(8):
    e(f"s_cmp_lt_i32 s{sC+b}, 1")
    e(f"s_cselect_b32 s{sC+b}, 0x1000, s{sC+b}")
for b in range(8):
    e(f"v_cmp_gt_i32_e64 {pr(sVAL+2*b)}, s{sC+b}, v{pA}")
for b in range(1, 8):
    e(f"s_mov_b64 {pr(sNL+2*b)}, 0")
for b in range(8):
    e(f"v_mov_b32 v{pM+b}, 0")
e("s_waitcnt vmcnt(4)")
for b in range(8):
    e(f"v_cndmask_b32_e64 v{pT+b}, {-(b+1)}, v{pT+b}, {pr(sVAL+2*b)}")
for b in range(7):
    hi = list(range(7, b, -1))
    for k, b2 in enumerate(hi):
        e(f"v_cmp_eq_u32_e64 {pr(sEQ+2*k)}, v{pT+b}, v{pT+b2}")
    if len(hi) < 3: e(f"s_nop {2-len(hi)}")
    for k, b2 in enumerate(hi):
        e(f"v_addc_co_u32_e64 v{pM+b}, vcc, v{pM+b}, v{pM+b}, {pr(sEQ+2*k)}")
        e(f"s_or_b64 {pr(sNL+2*b2)}, {pr(sNL+2*b2)}, {pr(sEQ+2*k)}")
for b in range(8):
    e(f"v_lshl_or_b32 v{pM+b}, v{pM+b}, 1, 1")
    e(f"v_lshlrev_b32 v{pM+b}, {24+b}, v{pM+b}")
    e(f"v_or3_b32 v{pT+b}, v{pT+b}, v{pJX}, v{pM+b}")
    if b: e(f"s_andn2_b64 {pr(sVAL+2*b)}, {pr(sVAL+2*b)}, {pr(sNL+2*b)}")
e(f"v_mov_b32 v{pCNT}, 0")
for b in range(8):
    e(f"s_bcnt1_i32_b64 s{sT0}, {pr(sVAL+2*b)}")
    e(f"v_writelane_b32 v{pCNT}, s{sT0}, {b}")
e(f"s_lshl_b32 s{sT0}, s{sWAVE}, 2")
e(f"s_add_u32 s{sT0}, s{sT0}, 8192")
e(f"v_lshl_add_u32 v{pA}, v{vLANE}, 4, s{sT0}")
e(f"s_mov_b64 exec, 0xff")
e(f"ds_write_b32 v{pA}, v{pCNT}")
e(f"s_mov_b64 exec, -1")
for b in range(8):
    e(f"v_mbcnt_lo_u32_b32 v{pM+b}, s{sVAL+2*b}, 0")
    e(f"v_mbcnt_hi_u32_b32 v{pM+b}, s{sVAL+2*b+1}, v{pM+b}")
e(f"v_and_b32 v{pA}, 31, v{vLANE}")
e(f"v_lshlrev_b32 v{pA}, 2, v{pA}")
e("s_waitcnt lgkmcnt(0)")
e("s_barrier")
e(f"ds_read_b32 v{pCNT}, v{pA} offset:8192")
e("s_waitcnt lgkmcnt(0)")
e(f"v_mov_b32 v{pB}, v{pCNT}")
for sh in (1, 2, 4, 8):
    e("s_nop 1")
    e(f"v_add_u32_dpp v{pB}, v{pB}, v{pB} row_shr:{sh} row_mask:0xf bank_mask:0xf bound_ctrl:0")
e("s_nop 1")
e(f"v_add_u32_dpp v{pB}, v{pB}, v{pB} row_bcast:15 row_mask:0xa bank_mask:0xf")
e("s_nop 1")
e(f"v_readlane_b32 s{sN}, v{pB}, 31")
e(f"v_sub_u32 v{pB}, v{pB}, v{pCNT}")
e(f"s_mov_b32 s{sT1}, s{sWAVE}")
for b in range(8):
    e(f"v_readlane_b32 s{sEQ+b}, v{pB}, s{sT1}")
    e(f"s_add_u32 s{sT1}, s{sT1}, 4")
e("s_nop 1")
for b in range(8):
    e(f"v_add_lshl_u32 v{pM+b}, v{pM+b}, s{sEQ+b}, 2")
for b in range(8):
    e(f"s_mov_b64 exec, {pr(sVAL+2*b)}")
    e(f"ds_write_b32 v{pM+b}, v{pT+b}")
e(f"s_mov_b64 exec, -1")
ST = cfg.STRIDE
lst = ST.bit_length()-1
lsup = 5 - lst
e(f"s_lshr_b32 s{sT0}, s{sSEG}, {lst}")
e(f"s_and_b32 s{sT1}, s{sSEG}, {ST-1}")
e(f"s_mul_i32 s{sE0}, s{sT0}, s{sN}")
e(f"s_add_u32 s{sT2}, s{sE0}, s{sN}")
e(f"s_lshr_b32 s{sE0}, s{sE0}, {lsup}")
e(f"s_lshr_b32 s{sT2}, s{sT2}, {lsup}")
e(f"s_add_u32 s{sE0}, s{sE0}, s{sT1}")
e(f"s_sub_i32 s{sCNT}, s{sT2}, s{sE0}")
e(f"s_add_i32 s{sCNT}, s{sCNT}, {ST-1}")
e(f"s_ashr_i32 s{sCNT}, s{sCNT}, {lst}")
e(f"s_max_i32 s{sCNT}, s{sCNT}, 0")
e(f"v_lshlrev_b32 v{pA}, {lst}, v{vLANE}")
e(f"v_add_lshl_u32 v{pA}, v{pA}, s{sE0}, 2")
e(f"v_min_u32 v{pA}, 8188, v{pA}")
e("s_waitcnt lgkmcnt(0)")
e("s_barrier")
e(f"ds_read_b32 v{vLIST}, v{pA}")
e("s_waitcnt vmcnt(0)")
e(f"v_cmp_gt_i32 vcc, 1, v{vCTXM}")
e(f"v_mov_b32 v{vA}, 0x1000")
e(f"v_lshlrev_b32 v{vB}, 1, v{vG}")
e(f"v_cndmask_b32 v{vCTXM}, v{vCTXM}, v{vA}, vcc")
for i in range(12):
    e(f"v_cndmask_b32_e64 v{vQ+i}, v{vQ+i}, 0, vcc")
e(f"v_sub_u32 v{vCTXM}, v{vCTXM}, v{vB}")
e(f"s_mov_b32 s{sC2}, 0x{f2u(C2):08x}")
e(f"s_mov_b32 s{sSELLO}, 0x05040100")
e(f"s_mov_b32 s{sSELHI}, 0x07060302")
e("s_waitcnt lgkmcnt(0)")

def next_rec(st, idx_expr_setup):
    e(f"v_readlane_b32 s{sREC+st}, v{vLIST}, s{sT0}")
    e("s_nop 1")
    e(f"s_and_b32 s{sT1}, s{sREC+st}, 0xffff")
    e(f"s_mul_i32 s{sT1}, s{sT1}, 196608")
    e(f"s_add_u32 s{sT1}, s{sT1}, s{sHOFF}")
    e(f"s_cmp_lt_u32 s{sT0}, s{sCNT}")
    e(f"s_cselect_b32 s{sO}, s{sT1}, 0x{OOB:x}")
    e(f"s_add_u32 s{sO+1}, s{sO}, 12288")
    e(f"s_add_u32 s{sO+2}, s{sO}, {8*12288}")
    e(f"s_add_u32 s{sO+3}, s{sO}, {9*12288}")
def k_loads(st):
    for u in range(2):
        for s in range(3):
            r = st*24 + u*12 + s*4
            e(f"buffer_load_dwordx4 a[{r}:{r+3}], v{vOK}, s[{SRDK}:{SRDK+3}], s{sO+2*u} offen offset:{128*s} {cfg.KF}")
def v_loads(st):
    for i in range(4):
        r = vV + st*24 + i*4
        e(f"buffer_load_dwordx4 v[{r}:{r+3}], v{vOV4}, s[{SRDV}:{SRDV+3}], s{sO+i} offen {cfg.VF}")
        r = vV + st*24 + 16 + i*2
        e(f"buffer_load_dwordx2 v[{r}:{r+1}], v{vOV2}, s[{SRDV}:{SRDV+3}], s{sO+i} offen offset:256 {cfg.VF}")

if cfg.DBGST:
    e(f"s_memrealtime s[68:69]")
for st in range(D):
    e(f"s_mov_b32 s{sT0}, {st}")
    next_rec(st, None)
    k_loads(st)
    v_loads(st)
e(f"v_mov_b32 v{vM}, 0x{f2u(-3e38):08x}")
e(f"v_mul_f32 v{vMC}, s{sC2}, v{vM}")
e(f"v_mov_b32 v{vL}, 0")
e(f"v_mov_b32 v{vNINF}, 0xff800000")
for i in range(48):
    e(f"v_mov_b32 v{vO+i}, 0")
e(f"s_mov_b32 s{sI}, 0")
e(f"s_cmp_eq_u32 s{sCNT}, 0")
e("s_cbranch_scc1 A_done")
lab("A_loop")
for st in range(D):
    e(f"s_bfe_u32 s{sJ16}, s{sREC+st}, 0x80010")
    e(f"s_lshl_b32 s{sJ16}, s{sJ16}, 4")
    e(f"s_lshr_b32 s{sMK}, s{sREC+st}, 24")
    e(f"s_mul_i32 s{sMK}, s{sMK}, 0x10001")
    e(f"s_mov_b32 s{sMK+1}, s{sMK}")
    e(f"s_add_u32 s{sT0}, s{sI}, {D}")
    next_rec(st, None)
    e(f"v_subrev_u32 v{vLIM}, s{sJ16}, v{vCTXM}")
    e(f"v_cndmask_b32_e64 v{vLIM}, 0, v{vLIM}, {pr(sMK)}")
    for i, o in enumerate((0, 1, 8, 9)):
        e(f"v_cmp_lt_i32_e64 {pr(sA+2*i)}, {o}, v{vLIM}")
    e(f"s_waitcnt vmcnt({8+(D-1)*14})")
    for s in range(3):
        for u, c in ((0, vC1), (1, vC2)):
            r = st*24 + u*12 + s*4
            src = "0" if s == 0 else f"v[{c}:{c+3}]"
            e(f"v_mfma_f32_16x16x32_bf16 v[{c}:{c+3}], a[{r}:{r+3}], v[{vQ+4*s}:{vQ+4*s+3}], {src}")
    k_loads(st)
    e("s_nop 2")
    for i, (c, r) in enumerate(((vC1, 0), (vC1, 2), (vC2, 0), (vC2, 2))):
        e(f"v_add_f32_dpp v{vS+i}, v{c+r+1}, v{c+r} row_ror:8 row_mask:0xf bank_mask:0xf")
    for i in range(4):
        e(f"v_cndmask_b32_e64 v{vS+i}, v{vNINF}, v{vS+i}, {pr(sA+2*i)}")
    e(f"v_max3_f32 v{vMX}, v{vS}, v{vS+1}, v{vS+2}")
    e(f"v_max_f32 v{vMX}, v{vMX}, v{vS+3}")
    e(f"v_cmp_gt_f32 vcc, v{vMX}, v{vM}")
    e(f"s_cbranch_vccnz A_slow{st}")
    lab(f"A_back{st}")
    for i in range(4):
        e(f"v_fma_f32 v{vX+i}, v{vS+i}, s{sC2}, -v{vMC}")
    for i in range(4):
        e(f"v_exp_f32 v{vX+i}, v{vX+i}")
    e(f"s_waitcnt vmcnt({6+(D-1)*14})")
    vb = vV + st*24
    def perm(t):
        if t < 8:
            q, hsel = t >> 1, t & 1
            regs = [vb + i*4 + q for i in range(4)]
        else:
            q, hsel = (t-8) >> 1, t & 1
            regs = [vb + 16 + i*2 + q for i in range(4)]
        sel = sSELHI if hsel else sSELLO
        e(f"v_perm_b32 v{vT+2*t}, v{regs[1]}, v{regs[0]}, s{sel}")
        e(f"v_perm_b32 v{vT+2*t+1}, v{regs[3]}, v{regs[2]}, s{sel}")
    e(f"v_cvt_pk_bf16_f32 v{vP}, v{vX}, v{vX+1}")
    e(f"v_cvt_pk_bf16_f32 v{vP+1}, v{vX+2}, v{vX+3}")
    for t in range(12): perm(t)
    v_loads(st)
    e(f"v_add_f32 v{vX}, v{vX}, v{vX+1}")
    e(f"v_add_f32 v{vX+2}, v{vX+2}, v{vX+3}")
    for t in range(12):
        e(f"v_mfma_f32_16x16x16_bf16 v[{vO+4*t}:{vO+4*t+3}], v[{vT+2*t}:{vT+2*t+1}], v[{vP}:{vP+1}], v[{vO+4*t}:{vO+4*t+3}]")
    e(f"v_add_f32 v{vL}, v{vL}, v{vX}")
    e(f"v_add_f32 v{vL}, v{vL}, v{vX+2}")
    e(f"s_add_u32 s{sI}, s{sI}, 1")
    e(f"s_cmp_ge_u32 s{sI}, s{sCNT}")
    if st < D-1:
        e("s_cbranch_scc1 A_done")
    else:
        e("s_cbranch_scc0 A_loop")
lab("A_done")
def xreduce(op, reg):
    for sw in ("v_permlane32_swap_b32", "v_permlane16_swap_b32"):
        e(f"v_mov_b32 v{vA}, v{reg}")
        e(f"v_mov_b32 v{vB}, v{reg}")
        e("s_nop 1")
        e(f"{sw} v{vA}, v{vB}")
        e("s_nop 1")
        e(f"{op} v{reg}, v{vA}, v{vB}")
xreduce("v_add_f32", vL)
e(f"s_lshl_b32 s{sT0}, s{sHEAD}, 11")
e(f"s_lshl_b32 s{sT1}, s{sSEG}, 3")
e(f"s_add_u32 s{sT0}, s{sT0}, s{sT1}")
e(f"v_lshlrev_b32 v{vX}, 8, v{vC}")
assert vL == vMC + 1 and vMC % 2 == 0
e("s_mov_b64 exec, 0xff")
e(f"buffer_store_dwordx2 v[{vMC}:{vMC+1}], v{vX}, s[{SRDW}:{SRDW+3}], s{sT0} offen")
e("s_mov_b64 exec, -1")
e(f"s_lshl_b32 s{sT0}, s{sSEG}, 5")
e(f"s_add_u32 s{sT0}, s{sT0}, s{sHEAD}")
e(f"s_mul_i32 s{sT0}, s{sT0}, {8*768}")
e(f"s_add_u32 s{sT0}, s{sT0}, {O_OFF}")
e(f"v_mul_u32_u24 v{vX}, 768, v{vC}")
e(f"v_lshl_add_u32 v{vX}, v{vG}, 4, v{vX}")
e(f"v_cmp_lt_f32 vcc, 0, v{vL}")
e(f"s_and_b64 exec, exec, vcc")
e("s_cbranch_execz A_fin")
for t in range(12):
    e(f"buffer_store_dwordx4 v[{vO+4*t}:{vO+4*t+3}], v{vX}, s[{SRDW}:{SRDW+3}], s{sT0} offen offset:{64*t}")
lab("A_fin")
if cfg.STAMPS:
    e("s_mov_b64 exec, -1")
    e("s_waitcnt vmcnt(0)")
    e("s_barrier")
    e(f"s_memrealtime {pr(sST+2)}")
    e(f"s_cmp_lg_u32 s{sWAVE}, 0")
    e("s_cbranch_scc1 A_end")
    e("s_waitcnt lgkmcnt(0)")
    e(f"s_add_u32 s{sWS}, s{sWS}, 0x20000000")
    e(f"s_addc_u32 s{sWS+1}, s{sWS+1}, 0")
    e(f"s_lshl_b32 s{sT0}, s2, 4")
    e(f"v_mov_b32 v{vX}, s{sT0}")
    for i in range(4): e(f"v_mov_b32 v{vS+i}, s{sST+i}")
    e("s_mov_b64 exec, 1")
    e(f"global_store_dwordx4 v{vX}, v[{vS}:{vS+3}], {pr(sWS)}")
if cfg.DBGST:
    e("s_mov_b64 exec, -1")
    e("s_waitcnt vmcnt(0)")
    e(f"s_memrealtime {pr(sST+2)}")
    e("s_waitcnt lgkmcnt(0)")
    e(f"s_not_b32 s70, s{sST}")
    e(f"v_mov_b32 v{vX}, s70")
    e(f"v_writelane_b32 v{vX}, s{sST}, 1")
    e(f"s_not_b32 s70, s68")
    e(f"v_writelane_b32 v{vX}, s70, 2")
    e(f"v_writelane_b32 v{vX}, s68, 3")
    e(f"s_not_b32 s70, s{sST+2}")
    e(f"v_writelane_b32 v{vX}, s70, 4")
    e(f"v_writelane_b32 v{vX}, s{sST+2}, 5")
    e(f"v_lshlrev_b32 v{vX+1}, 2, v{vLANE}")
    e("s_mov_b64 exec, 0x3f")
    e(f"global_atomic_umax v{vX+1}, v{vX}, {pr(sDBG)}")
lab("A_end")
e("s_endpgm")
for st in range(D):
    lab(f"A_slow{st}")
    xreduce("v_max_f32", vMX)
    e(f"v_max_f32 v{vM}, v{vM}, v{vMX}")
    e(f"v_mul_f32 v{vA}, s{sC2}, v{vM}")
    e(f"v_sub_f32 v{vB}, v{vMC}, v{vA}")
    e(f"v_exp_f32 v{vB}, v{vB}")
    e(f"v_mov_b32 v{vMC}, v{vA}")
    e(f"v_mul_f32 v{vL}, v{vL}, v{vB}")
    assert vB % 2 == 0
    for i in range(24):
        e(f"v_pk_mul_f32 v[{vO+2*i}:{vO+2*i+1}], v[{vO+2*i}:{vO+2*i+1}], v[{vB}:{vB+1}] op_sel_hi:[1,0]")
    e(f"s_branch A_back{st}")

raw(".globl combine_kernel\n.p2align 8\n.type combine_kernel,@function")
lab("combine_kernel")
e("s_cmp_ge_u32 s2, 256")
e("s_cbranch_scc1 B_end")
e("s_load_dwordx2 s[4:5], s[0:1], 40")
e("s_load_dwordx2 s[6:7], s[0:1], 56")
e("s_lshl_b32 s20, s2, 8")
e("v_lshlrev_b32 v1, 3, v0")
e("v_mov_b32 v2, 0x7f000000")
e("v_cmp_gt_u32 vcc, 32, v0")
e("v_lshlrev_b32 v3, 4, v0")
e("s_nop 0")
e("v_cndmask_b32 v1, v2, v1, vcc")
e("v_cmp_gt_u32 vcc, 48, v0")
e(f"s_mul_i32 s21, s2, 768")
e(f"s_add_u32 s21, s21, {O_OFF}")
e("v_cndmask_b32 v3, v2, v3, vcc")
e("s_waitcnt lgkmcnt(0)")
e("s_mov_b32 s8, s6\n    s_and_b32 s9, s7, 0xffff\n    s_mov_b32 s10, %d\n    s_mov_b32 s11, 0x20000" % WS_USED)
e("buffer_load_dwordx2 v[4:5], v1, s[8:11], s20 offen")
e("s_mov_b32 s12, s4\n    s_and_b32 s13, s5, 0xffff\n    s_mov_b32 s14, 98304\n    s_mov_b32 s15, 0x20000")
e("v_lshrrev_b32 v6, 2, v0")
e("v_and_b32 v7, 3, v0")
e("v_lshl_add_u32 v8, v7, 5, v6")
e("v_lshlrev_b32 v9, 4, v7")
e("v_add3_u32 v9, v9, v6, 64")
e("v_add_u32 v9, 56, v9")
e("v_cmp_gt_u32 vcc, 8, v6")
e("v_mov_b32 v10, 8")
e("v_mov_b32 v11, 16")
e("v_cndmask_b32 v8, v9, v8, vcc")
e("v_cndmask_b32 v10, v10, v11, vcc")
e("v_lshlrev_b32 v8, 1, v8")
e("v_add_u32 v9, v8, v10")
e("v_add_u32 v11, v9, v10")
e("v_add_u32 v10, v11, v10")
e("s_and_b32 s22, s2, 7")
e("s_lshr_b32 s23, s2, 3")
e("s_lshl_b32 s22, s22, 5")
e("s_add_u32 s22, s22, s23")
e("s_mul_i32 s22, s22, 384")
e("s_waitcnt vmcnt(0)")
e("v_cmp_lt_f32 vcc, 0, v5")
e(f"v_mov_b32 v12, 0x{f2u(-3e38):08x}")
e("s_nop 0")
e("s_mov_b32 s24, vcc_lo")
e("v_cndmask_b32 v4, v12, v4, vcc")
for s in range(32):
    e(f"s_bitcmp1_b32 s24, {s}")
    e(f"s_cselect_b32 s25, s21, 0x{OOB:x}")
    e(f"buffer_load_dwordx4 v[{16+4*s}:{19+4*s}], v3, s[8:11], s25 offen")
    e(f"s_add_u32 s21, s21, {32*8*768}")
e("v_mov_b32 v12, v4")
for sh in (8, 4, 2, 1):
    e("s_nop 1")
    e(f"v_max_f32_dpp v12, v12, v12 row_ror:{sh} row_mask:0xf bank_mask:0xf")
e("s_nop 1")
e("v_readlane_b32 s26, v12, 0")
e("v_readlane_b32 s27, v12, 16")
e("s_nop 1")
e("v_mov_b32 v12, s26")
e("v_max_f32 v12, s27, v12")
e("v_sub_f32 v13, v4, v12")
e("v_exp_f32 v13, v13")
e("s_nop 0")
e("v_mul_f32 v14, v13, v5")
for sh in (8, 4, 2, 1):
    e("s_nop 1")
    e(f"v_add_f32_dpp v14, v14, v14 row_ror:{sh} row_mask:0xf bank_mask:0xf")
e("s_nop 1")
e("v_readlane_b32 s26, v14, 0")
e("v_readlane_b32 s27, v14, 16")
e("s_nop 1")
e("v_mov_b32 v14, s26")
e("v_add_f32 v14, s27, v14")
e("v_rcp_f32 v14, v14")
e("s_nop 0")
e("v_mul_f32 v13, v13, v14")
for i in range(4): e(f"v_mov_b32 v{144+i}, 0")
for s in range(32):
    e(f"v_readlane_b32 s{32+s}, v13, {s}")
for s in range(32):
    e(f"s_waitcnt vmcnt({31-s})")
    for i in range(4):
        e(f"v_fmac_f32 v{144+i}, s{32+s}, v{16+4*s+i}")
e("v_cvt_pk_bf16_f32 v4, v144, v145")
e("v_cvt_pk_bf16_f32 v5, v146, v147")
e("v_cmp_gt_u32 vcc, 48, v0")
e("s_and_b64 exec, exec, vcc")
e("buffer_store_short v4, v8, s[12:15], s22 offen")
e("buffer_store_short_d16_hi v4, v9, s[12:15], s22 offen")
e("buffer_store_short v5, v11, s[12:15], s22 offen")
e("buffer_store_short_d16_hi v5, v10, s[12:15], s22 offen")
lab("B_end")
e("s_endpgm")

raw('.section .rodata,"a"')
for name, nfv, acc, nsg in ((f"{NAME}_kernel", NFV, ACC, 102), ("combine_kernel", 148, 148, 72)):
    raw(f""".p2align 6
.amdhsa_kernel {name}
  .amdhsa_next_free_vgpr {nfv}
  .amdhsa_next_free_sgpr {nsg}
  .amdhsa_accum_offset {acc}
  .amdhsa_group_segment_fixed_size 0
  .amdhsa_kernarg_size 64
  .amdhsa_user_sgpr_count 2
  .amdhsa_user_sgpr_kernarg_segment_ptr 1
  .amdhsa_system_sgpr_workgroup_id_x 1
.end_amdhsa_kernel""")
open(sys.argv[1], 'w').write("\n".join(out) + "\n")
```

```python
import sys, struct, math
NAME = "standalone__paged_block_table_kv_radixattention__sampling"
KV_BYTES = 1152*196608
def f2u(x): return struct.unpack('<I', struct.pack('<f', x))[0]
C2 = (192 ** -0.5) * math.log2(math.e)

class Cfg:
    D = 3
    STRIDE = 4
    STAMPS = False
    NSM = True
    DBGST = False
    KF = 'nt'
    VF = 'nt'
cfg = Cfg()
for a in sys.argv[2:]:
    k, v = a.split('=')
    setattr(cfg, k, eval(v))
D = cfg.D
NSEG = 32
ML_OFF = 0
O_OFF = 65536
WS_USED = O_OFF + NSEG*32*8*768
OOB = 0xF0000000

out = []
def e(s): out.append("    " + s)
def lab(s): out.append(s + ":")
def raw(s): out.append(s)

hdr = open('cdna_kernels/%s.s.ref' % NAME).read().split('\n')
for l in hdr:
    if l.startswith('; Override') or l.startswith('; grid=') or l.startswith('; @launch'): continue
    if not l.startswith(';'): break
    raw(l)
LDS_BYTES = 8192 + 256
raw(f"; @launch kernel={NAME}_kernel grid=(256,1,1) block=(256,1,1) lds={LDS_BYTES}")
raw(f"; @launch kernel=combine_kernel grid=(256,1,1) block=(64,1,1) lds=0")
raw('.amdgcn_target "amdgcn-amd-amdhsa--gfx950"')
raw('.text')

raw(f".globl {NAME}_kernel\n.p2align 8\n.type {NAME}_kernel,@function")
lab(f"{NAME}_kernel")
sQ, sK, sV, sBT, sCTX, sOUT, sDBG, sWS = 4, 6, 8, 10, 12, 14, 16, 18
SRDK, SRDV, SRDW = 20, 24, 28
sC = 32
sVAL = 40
sNL = 56
sEQ = 72
sWAVE, sHOFF, sSEG, sN, sE0, sCNT, sI, sT0, sT1, sT2, sHEAD = 86, 87, 88, 89, 90, 91, 92, 93, 94, 95, 96
sST = 98
sREC = 40
sMK = 48
sA = 50
sJ16 = 58
sO = 60
sC2, sSELLO, sSELHI = 64, 65, 66
vLANE, vC, vG = 1, 2, 3
vOK, vOV4, vOV2, vCTXM, vLIST, vM, vMC, vL, vNINF, vLIM, vMX, vA, vB = 4, 5, 6, 7, 8, 9, 10, 11, 12, 13, 14, 15, 42
vQ = 16
vC1, vC2 = 28, 32
vS = 36
vP = 40
vX = 44
vO = 48
vT = 96
vV = 120
NV = vV + 24*D
ACC = (NV + 3)//4*4
NFV = ACC + 24*D
pT = 48
pM = 56
pJX, pA, pB, pCNT = 64, 65, 66, 67

def pr(a): return f"s[{a}:{a+1}]"

e("s_cmp_ge_u32 s2, 256")
e("s_cbranch_scc1 A_end")
if cfg.STAMPS or cfg.DBGST: e(f"s_memrealtime {pr(sST)}")
e("s_load_dwordx16 s[4:19], s[0:1], 0")
e(f"v_and_b32 v{vLANE}, 63, v0")
e(f"v_lshrrev_b32 v{vA}, 6, v0")
e(f"v_and_b32 v{vC}, 15, v0")
e(f"v_readfirstlane_b32 s{sWAVE}, v{vA}")
e(f"v_lshrrev_b32 v{vG}, 4, v{vLANE}")
e(f"v_lshlrev_b32 v{pA}, 2, v0")
e(f"v_add_u32 v{pB}, 4096, v{pA}")
if cfg.NSM:
    e(f"s_and_b32 s{sHEAD}, s2, 7")
    e(f"s_lshr_b32 s{sSEG}, s2, 3")
else:
    e(f"s_lshr_b32 s{sHEAD}, s2, 5")
    e(f"s_and_b32 s{sSEG}, s2, 31")
e(f"s_lshl_b32 s{sHEAD}, s{sHEAD}, 2")
e(f"s_add_u32 s{sHEAD}, s{sHEAD}, s{sWAVE}")
e(f"s_mul_i32 s{sHOFF}, s{sHEAD}, 384")
e(f"v_and_b32 v{vX}, 7, v{vC}")
e(f"v_mul_u32_u24 v{vX+1}, 12288, v{vX}")
e(f"v_lshl_add_u32 v{vX+1}, v{vG}, 5, v{vX+1}")
e(f"v_lshrrev_b32 v{vX+2}, 3, v{vC}")
e(f"v_lshl_add_u32 v{vX+1}, v{vX+2}, 4, v{vX+1}")
e(f"v_add_u32 v{vX+1}, s{sHOFF}, v{vX+1}")
e(f"v_lshlrev_b32 v{vX}, 2, v{vX}")
e("s_waitcnt lgkmcnt(0)")
for b in range(8):
    e(f"global_load_dword v{pT+b}, v{pA if b < 4 else pB}, {pr(sBT)} offset:{(b & 3)*1024}")
e(f"s_load_dwordx8 s[{sC}:{sC+7}], {pr(sCTX)}, 0")
e(f"global_load_dword v{vCTXM}, v{vX}, {pr(sCTX)}")
for s in range(3):
    e(f"global_load_dwordx4 v[{vQ+4*s}:{vQ+4*s+3}], v{vX+1}, {pr(sQ)} offset:{128*s}")
for srd, base, size in ((SRDK, sK, KV_BYTES), (SRDV, sV, KV_BYTES), (SRDW, sWS, WS_USED)):
    e(f"s_mov_b32 s{srd}, s{base}")
    e(f"s_and_b32 s{srd+1}, s{base+1}, 0xffff")
    e(f"s_mov_b32 s{srd+2}, {size}")
    e(f"s_mov_b32 s{srd+3}, 0x20000")
e(f"v_lshrrev_b32 v{vOK}, 1, v{vC}")
e(f"v_mul_u32_u24 v{vOK}, 12288, v{vOK}")
e(f"v_lshl_add_u32 v{vOK}, v{vG}, 5, v{vOK}")
e(f"v_and_b32 v{vA}, 1, v{vC}")
e(f"v_lshl_add_u32 v{vOK}, v{vA}, 4, v{vOK}")
e(f"v_mul_u32_u24 v{vA}, 24576, v{vG}")
e(f"v_lshl_add_u32 v{vOV4}, v{vC}, 4, v{vA}")
e(f"v_lshl_add_u32 v{vOV2}, v{vC}, 3, v{vA}")
e(f"v_lshlrev_b32 v{pJX}, 16, v0")
e(f"v_lshlrev_b32 v{pA}, 4, v0")
e("s_waitcnt lgkmcnt(0)")
for b in range(8):
    e(f"s_cmp_lt_i32 s{sC+b}, 1")
    e(f"s_cselect_b32 s{sC+b}, 0x1000, s{sC+b}")
for b in range(8):
    e(f"v_cmp_gt_i32_e64 {pr(sVAL+2*b)}, s{sC+b}, v{pA}")
for b in range(1, 8):
    e(f"s_mov_b64 {pr(sNL+2*b)}, 0")
for b in range(8):
    e(f"v_mov_b32 v{pM+b}, 0")
e("s_waitcnt vmcnt(4)")
for b in range(8):
    e(f"v_cndmask_b32_e64 v{pT+b}, {-(b+1)}, v{pT+b}, {pr(sVAL+2*b)}")
for b in range(7):
    hi = list(range(7, b, -1))
    for k, b2 in enumerate(hi):
        e(f"v_cmp_eq_u32_e64 {pr(sEQ+2*k)}, v{pT+b}, v{pT+b2}")
    if len(hi) < 3: e(f"s_nop {2-len(hi)}")
    for k, b2 in enumerate(hi):
        e(f"v_addc_co_u32_e64 v{pM+b}, vcc, v{pM+b}, v{pM+b}, {pr(sEQ+2*k)}")
        e(f"s_or_b64 {pr(sNL+2*b2)}, {pr(sNL+2*b2)}, {pr(sEQ+2*k)}")
for b in range(8):
    e(f"v_lshl_or_b32 v{pM+b}, v{pM+b}, 1, 1")
    e(f"v_lshlrev_b32 v{pM+b}, {24+b}, v{pM+b}")
    e(f"v_or3_b32 v{pT+b}, v{pT+b}, v{pJX}, v{pM+b}")
    if b: e(f"s_andn2_b64 {pr(sVAL+2*b)}, {pr(sVAL+2*b)}, {pr(sNL+2*b)}")
e(f"v_mov_b32 v{pCNT}, 0")
for b in range(8):
    e(f"s_bcnt1_i32_b64 s{sT0}, {pr(sVAL+2*b)}")
    e(f"v_writelane_b32 v{pCNT}, s{sT0}, {b}")
e(f"s_lshl_b32 s{sT0}, s{sWAVE}, 2")
e(f"s_add_u32 s{sT0}, s{sT0}, 8192")
e(f"v_lshl_add_u32 v{pA}, v{vLANE}, 4, s{sT0}")
e(f"s_mov_b64 exec, 0xff")
e(f"ds_write_b32 v{pA}, v{pCNT}")
e(f"s_mov_b64 exec, -1")
for b in range(8):
    e(f"v_mbcnt_lo_u32_b32 v{pM+b}, s{sVAL+2*b}, 0")
    e(f"v_mbcnt_hi_u32_b32 v{pM+b}, s{sVAL+2*b+1}, v{pM+b}")
e(f"v_and_b32 v{pA}, 31, v{vLANE}")
e(f"v_lshlrev_b32 v{pA}, 2, v{pA}")
e("s_waitcnt lgkmcnt(0)")
e("s_barrier")
e(f"ds_read_b32 v{pCNT}, v{pA} offset:8192")
e("s_waitcnt lgkmcnt(0)")
e(f"v_mov_b32 v{pB}, v{pCNT}")
for sh in (1, 2, 4, 8):
    e("s_nop 1")
    e(f"v_add_u32_dpp v{pB}, v{pB}, v{pB} row_shr:{sh} row_mask:0xf bank_mask:0xf bound_ctrl:0")
e("s_nop 1")
e(f"v_add_u32_dpp v{pB}, v{pB}, v{pB} row_bcast:15 row_mask:0xa bank_mask:0xf")
e("s_nop 1")
e(f"v_readlane_b32 s{sN}, v{pB}, 31")
e(f"v_sub_u32 v{pB}, v{pB}, v{pCNT}")
e(f"s_mov_b32 s{sT1}, s{sWAVE}")
for b in range(8):
    e(f"v_readlane_b32 s{sEQ+b}, v{pB}, s{sT1}")
    e(f"s_add_u32 s{sT1}, s{sT1}, 4")
e("s_nop 1")
for b in range(8):
    e(f"v_add_lshl_u32 v{pM+b}, v{pM+b}, s{sEQ+b}, 2")
for b in range(8):
    e(f"s_mov_b64 exec, {pr(sVAL+2*b)}")
    e(f"ds_write_b32 v{pM+b}, v{pT+b}")
e(f"s_mov_b64 exec, -1")
ST = cfg.STRIDE
lst = ST.bit_length()-1
lsup = 5 - lst
e(f"s_lshr_b32 s{sT0}, s{sSEG}, {lst}")
e(f"s_and_b32 s{sT1}, s{sSEG}, {ST-1}")
e(f"s_mul_i32 s{sE0}, s{sT0}, s{sN}")
e(f"s_add_u32 s{sT2}, s{sE0}, s{sN}")
e(f"s_lshr_b32 s{sE0}, s{sE0}, {lsup}")
e(f"s_lshr_b32 s{sT2}, s{sT2}, {lsup}")
e(f"s_add_u32 s{sE0}, s{sE0}, s{sT1}")
e(f"s_sub_i32 s{sCNT}, s{sT2}, s{sE0}")
e(f"s_add_i32 s{sCNT}, s{sCNT}, {ST-1}")
e(f"s_ashr_i32 s{sCNT}, s{sCNT}, {lst}")
e(f"s_max_i32 s{sCNT}, s{sCNT}, 0")
e(f"v_lshlrev_b32 v{pA}, {lst}, v{vLANE}")
e(f"v_add_lshl_u32 v{pA}, v{pA}, s{sE0}, 2")
e(f"v_min_u32 v{pA}, 8188, v{pA}")
e("s_waitcnt lgkmcnt(0)")
e("s_barrier")
e(f"ds_read_b32 v{vLIST}, v{pA}")
e("s_waitcnt vmcnt(0)")
e(f"v_cmp_gt_i32 vcc, 1, v{vCTXM}")
e(f"v_mov_b32 v{vA}, 0x1000")
e(f"v_lshlrev_b32 v{vB}, 1, v{vG}")
e(f"v_cndmask_b32 v{vCTXM}, v{vCTXM}, v{vA}, vcc")
for i in range(12):
    e(f"v_cndmask_b32_e64 v{vQ+i}, v{vQ+i}, 0, vcc")
e(f"v_sub_u32 v{vCTXM}, v{vCTXM}, v{vB}")
e(f"s_mov_b32 s{sC2}, 0x{f2u(C2):08x}")
e(f"s_mov_b32 s{sSELLO}, 0x05040100")
e(f"s_mov_b32 s{sSELHI}, 0x07060302")
e("s_waitcnt lgkmcnt(0)")

def next_rec(st, idx_expr_setup):
    e(f"v_readlane_b32 s{sREC+st}, v{vLIST}, s{sT0}")
    e("s_nop 1")
    e(f"s_and_b32 s{sT1}, s{sREC+st}, 0xffff")
    e(f"s_mul_i32 s{sT1}, s{sT1}, 196608")
    e(f"s_add_u32 s{sT1}, s{sT1}, s{sHOFF}")
    e(f"s_cmp_lt_u32 s{sT0}, s{sCNT}")
    e(f"s_cselect_b32 s{sO}, s{sT1}, 0x{OOB:x}")
    e(f"s_add_u32 s{sO+1}, s{sO}, 12288")
    e(f"s_add_u32 s{sO+2}, s{sO}, {8*12288}")
    e(f"s_add_u32 s{sO+3}, s{sO}, {9*12288}")
def k_loads(st):
    for u in range(2):
        for s in range(3):
            r = st*24 + u*12 + s*4
            e(f"buffer_load_dwordx4 a[{r}:{r+3}], v{vOK}, s[{SRDK}:{SRDK+3}], s{sO+2*u} offen offset:{128*s} {cfg.KF}")
def v_loads(st):
    for i in range(4):
        r = vV + st*24 + i*4
        e(f"buffer_load_dwordx4 v[{r}:{r+3}], v{vOV4}, s[{SRDV}:{SRDV+3}], s{sO+i} offen {cfg.VF}")
        r = vV + st*24 + 16 + i*2
        e(f"buffer_load_dwordx2 v[{r}:{r+1}], v{vOV2}, s[{SRDV}:{SRDV+3}], s{sO+i} offen offset:256 {cfg.VF}")

if cfg.DBGST:
    e(f"s_memrealtime s[68:69]")
for st in range(D):
    e(f"s_mov_b32 s{sT0}, {st}")
    next_rec(st, None)
    k_loads(st)
    v_loads(st)
e(f"v_mov_b32 v{vM}, 0x{f2u(-3e38):08x}")
e(f"v_mul_f32 v{vMC}, s{sC2}, v{vM}")
e(f"v_mov_b32 v{vL}, 0")
e(f"v_mov_b32 v{vNINF}, 0xff800000")
for i in range(48):
    e(f"v_mov_b32 v{vO+i}, 0")
e(f"s_mov_b32 s{sI}, 0")
e(f"s_cmp_eq_u32 s{sCNT}, 0")
e("s_cbranch_scc1 A_done")
lab("A_loop")
for st in range(D):
    e(f"s_bfe_u32 s{sJ16}, s{sREC+st}, 0x80010")
    e(f"s_lshl_b32 s{sJ16}, s{sJ16}, 4")
    e(f"s_lshr_b32 s{sMK}, s{sREC+st}, 24")
    e(f"s_mul_i32 s{sMK}, s{sMK}, 0x10001")
    e(f"s_mov_b32 s{sMK+1}, s{sMK}")
    e(f"s_add_u32 s{sT0}, s{sI}, {D}")
    next_rec(st, None)
    e(f"v_subrev_u32 v{vLIM}, s{sJ16}, v{vCTXM}")
    e(f"v_cndmask_b32_e64 v{vLIM}, 0, v{vLIM}, {pr(sMK)}")
    for i, o in enumerate((0, 1, 8, 9)):
        e(f"v_cmp_lt_i32_e64 {pr(sA+2*i)}, {o}, v{vLIM}")
    e(f"s_waitcnt vmcnt({8+(D-1)*14})")
    for s in range(3):
        for u, c in ((0, vC1), (1, vC2)):
            r = st*24 + u*12 + s*4
            src = "0" if s == 0 else f"v[{c}:{c+3}]"
            e(f"v_mfma_f32_16x16x32_bf16 v[{c}:{c+3}], a[{r}:{r+3}], v[{vQ+4*s}:{vQ+4*s+3}], {src}")
    k_loads(st)
    e("s_nop 2")
    for i, (c, r) in enumerate(((vC1, 0), (vC1, 2), (vC2, 0), (vC2, 2))):
        e(f"v_add_f32_dpp v{vS+i}, v{c+r+1}, v{c+r} row_ror:8 row_mask:0xf bank_mask:0xf")
    for i in range(4):
        e(f"v_cndmask_b32_e64 v{vS+i}, v{vNINF}, v{vS+i}, {pr(sA+2*i)}")
    e(f"v_max3_f32 v{vMX}, v{vS}, v{vS+1}, v{vS+2}")
    e(f"v_max_f32 v{vMX}, v{vMX}, v{vS+3}")
    e(f"v_cmp_gt_f32 vcc, v{vMX}, v{vM}")
    e(f"s_cbranch_vccnz A_slow{st}")
    lab(f"A_back{st}")
    for i in range(4):
        e(f"v_fma_f32 v{vX+i}, v{vS+i}, s{sC2}, -v{vMC}")
    for i in range(4):
        e(f"v_exp_f32 v{vX+i}, v{vX+i}")
    e(f"s_waitcnt vmcnt({6+(D-1)*14})")
    vb = vV + st*24
    def perm(t):
        if t < 8:
            q, hsel = t >> 1, t & 1
            regs = [vb + i*4 + q for i in range(4)]
        else:
            q, hsel = (t-8) >> 1, t & 1
            regs = [vb + 16 + i*2 + q for i in range(4)]
        sel = sSELHI if hsel else sSELLO
        e(f"v_perm_b32 v{vT+2*t}, v{regs[1]}, v{regs[0]}, s{sel}")
        e(f"v_perm_b32 v{vT+2*t+1}, v{regs[3]}, v{regs[2]}, s{sel}")
    e(f"v_cvt_pk_bf16_f32 v{vP}, v{vX}, v{vX+1}")
    e(f"v_cvt_pk_bf16_f32 v{vP+1}, v{vX+2}, v{vX+3}")
    for t in range(12): perm(t)
    v_loads(st)
    e(f"v_add_f32 v{vX}, v{vX}, v{vX+1}")
    e(f"v_add_f32 v{vX+2}, v{vX+2}, v{vX+3}")
    for t in range(12):
        e(f"v_mfma_f32_16x16x16_bf16 v[{vO+4*t}:{vO+4*t+3}], v[{vT+2*t}:{vT+2*t+1}], v[{vP}:{vP+1}], v[{vO+4*t}:{vO+4*t+3}]")
    e(f"v_add_f32 v{vL}, v{vL}, v{vX}")
    e(f"v_add_f32 v{vL}, v{vL}, v{vX+2}")
    e(f"s_add_u32 s{sI}, s{sI}, 1")
    e(f"s_cmp_ge_u32 s{sI}, s{sCNT}")
    if st < D-1:
        e("s_cbranch_scc1 A_done")
    else:
        e("s_cbranch_scc0 A_loop")
lab("A_done")
def xreduce(op, reg):
    for sw in ("v_permlane32_swap_b32", "v_permlane16_swap_b32"):
        e(f"v_mov_b32 v{vA}, v{reg}")
        e(f"v_mov_b32 v{vB}, v{reg}")
        e("s_nop 1")
        e(f"{sw} v{vA}, v{vB}")
        e("s_nop 1")
        e(f"{op} v{reg}, v{vA}, v{vB}")
xreduce("v_add_f32", vL)
e(f"s_lshl_b32 s{sT0}, s{sHEAD}, 11")
e(f"s_lshl_b32 s{sT1}, s{sSEG}, 3")
e(f"s_add_u32 s{sT0}, s{sT0}, s{sT1}")
e(f"v_lshlrev_b32 v{vX}, 8, v{vC}")
assert vL == vMC + 1 and vMC % 2 == 0
e("s_mov_b64 exec, 0xff")
e(f"buffer_store_dwordx2 v[{vMC}:{vMC+1}], v{vX}, s[{SRDW}:{SRDW+3}], s{sT0} offen")
e("s_mov_b64 exec, -1")
e(f"s_lshl_b32 s{sT0}, s{sSEG}, 5")
e(f"s_add_u32 s{sT0}, s{sT0}, s{sHEAD}")
e(f"s_mul_i32 s{sT0}, s{sT0}, {8*768}")
e(f"s_add_u32 s{sT0}, s{sT0}, {O_OFF}")
e(f"v_mul_u32_u24 v{vX}, 768, v{vC}")
e(f"v_lshl_add_u32 v{vX}, v{vG}, 4, v{vX}")
e(f"v_cmp_lt_f32 vcc, 0, v{vL}")
e(f"s_and_b64 exec, exec, vcc")
e("s_cbranch_execz A_fin")
for t in range(12):
    e(f"buffer_store_dwordx4 v[{vO+4*t}:{vO+4*t+3}], v{vX}, s[{SRDW}:{SRDW+3}], s{sT0} offen offset:{64*t}")
lab("A_fin")
if cfg.STAMPS:
    e("s_mov_b64 exec, -1")
    e("s_waitcnt vmcnt(0)")
    e("s_barrier")
    e(f"s_memrealtime {pr(sST+2)}")
    e(f"s_cmp_lg_u32 s{sWAVE}, 0")
    e("s_cbranch_scc1 A_end")
    e("s_waitcnt lgkmcnt(0)")
    e(f"s_add_u32 s{sWS}, s{sWS}, 0x20000000")
    e(f"s_addc_u32 s{sWS+1}, s{sWS+1}, 0")
    e(f"s_lshl_b32 s{sT0}, s2, 4")
    e(f"v_mov_b32 v{vX}, s{sT0}")
    for i in range(4): e(f"v_mov_b32 v{vS+i}, s{sST+i}")
    e("s_mov_b64 exec, 1")
    e(f"global_store_dwordx4 v{vX}, v[{vS}:{vS+3}], {pr(sWS)}")
if cfg.DBGST:
    e("s_mov_b64 exec, -1")
    e("s_waitcnt vmcnt(0)")
    e(f"s_memrealtime {pr(sST+2)}")
    e("s_waitcnt lgkmcnt(0)")
    e(f"v_mov_b32 v{vS}, s{sST}")
    e(f"v_mov_b32 v{vS+1}, s68")
    e(f"v_mov_b32 v{vS+2}, s{sST+2}")
    e(f"v_mov_b32 v{vS+3}, 0")
    e(f"s_lshl_b32 s{sT0}, s2, 2")
    e(f"s_add_u32 s{sT0}, s{sT0}, s{sWAVE}")
    e(f"s_lshl_b32 s{sT0}, s{sT0}, 4")
    e(f"s_add_u32 s{sT0}, s{sT0}, 0x1000000")
    e(f"v_mov_b32 v{vX}, s{sT0}")
    e("s_mov_b64 exec, 1")
    e(f"global_store_dwordx4 v{vX}, v[{vS}:{vS+3}], {pr(sWS)}")
lab("A_end")
e("s_endpgm")
for st in range(D):
    lab(f"A_slow{st}")
    xreduce("v_max_f32", vMX)
    e(f"v_max_f32 v{vM}, v{vM}, v{vMX}")
    e(f"v_mul_f32 v{vA}, s{sC2}, v{vM}")
    e(f"v_sub_f32 v{vB}, v{vMC}, v{vA}")
    e(f"v_exp_f32 v{vB}, v{vB}")
    e(f"v_mov_b32 v{vMC}, v{vA}")
    e(f"v_mul_f32 v{vL}, v{vL}, v{vB}")
    assert vB % 2 == 0
    for i in range(24):
        e(f"v_pk_mul_f32 v[{vO+2*i}:{vO+2*i+1}], v[{vO+2*i}:{vO+2*i+1}], v[{vB}:{vB+1}] op_sel_hi:[1,0]")
    e(f"s_branch A_back{st}")

raw(".globl combine_kernel\n.p2align 8\n.type combine_kernel,@function")
lab("combine_kernel")
e("s_cmp_ge_u32 s2, 256")
e("s_cbranch_scc1 B_end")
if cfg.DBGST:
    e("s_memrealtime s[64:65]")
    e("s_load_dwordx2 s[68:69], s[0:1], 48")
e("s_load_dwordx2 s[4:5], s[0:1], 40")
e("s_load_dwordx2 s[6:7], s[0:1], 56")
e("s_lshl_b32 s20, s2, 8")
e("v_lshlrev_b32 v1, 3, v0")
e("v_mov_b32 v2, 0x7f000000")
e("v_cmp_gt_u32 vcc, 32, v0")
e("v_lshlrev_b32 v3, 4, v0")
e("s_nop 0")
e("v_cndmask_b32 v1, v2, v1, vcc")
e("v_cmp_gt_u32 vcc, 48, v0")
e(f"s_mul_i32 s21, s2, 768")
e(f"s_add_u32 s21, s21, {O_OFF}")
e("v_cndmask_b32 v3, v2, v3, vcc")
e("s_waitcnt lgkmcnt(0)")
e("s_mov_b32 s8, s6\n    s_and_b32 s9, s7, 0xffff\n    s_mov_b32 s10, %d\n    s_mov_b32 s11, 0x20000" % WS_USED)
e("buffer_load_dwordx2 v[4:5], v1, s[8:11], s20 offen")
e("s_mov_b32 s12, s4\n    s_and_b32 s13, s5, 0xffff\n    s_mov_b32 s14, 98304\n    s_mov_b32 s15, 0x20000")
e("v_lshrrev_b32 v6, 2, v0")
e("v_and_b32 v7, 3, v0")
e("v_lshl_add_u32 v8, v7, 5, v6")
e("v_lshlrev_b32 v9, 4, v7")
e("v_add3_u32 v9, v9, v6, 64")
e("v_add_u32 v9, 56, v9")
e("v_cmp_gt_u32 vcc, 8, v6")
e("v_mov_b32 v10, 8")
e("v_mov_b32 v11, 16")
e("v_cndmask_b32 v8, v9, v8, vcc")
e("v_cndmask_b32 v10, v10, v11, vcc")
e("v_lshlrev_b32 v8, 1, v8")
e("v_add_u32 v9, v8, v10")
e("v_add_u32 v11, v9, v10")
e("v_add_u32 v10, v11, v10")
e("s_and_b32 s22, s2, 7")
e("s_lshr_b32 s23, s2, 3")
e("s_lshl_b32 s22, s22, 5")
e("s_add_u32 s22, s22, s23")
e("s_mul_i32 s22, s22, 384")
e("s_waitcnt vmcnt(0)")
e("v_cmp_lt_f32 vcc, 0, v5")
e(f"v_mov_b32 v12, 0x{f2u(-3e38):08x}")
e("s_nop 0")
e("s_mov_b32 s24, vcc_lo")
e("v_cndmask_b32 v4, v12, v4, vcc")
for s in range(32):
    e(f"s_bitcmp1_b32 s24, {s}")
    e(f"s_cselect_b32 s25, s21, 0x{OOB:x}")
    e(f"buffer_load_dwordx4 v[{16+4*s}:{19+4*s}], v3, s[8:11], s25 offen")
    e(f"s_add_u32 s21, s21, {32*8*768}")
e("v_mov_b32 v12, v4")
for sh in (8, 4, 2, 1):
    e("s_nop 1")
    e(f"v_max_f32_dpp v12, v12, v12 row_ror:{sh} row_mask:0xf bank_mask:0xf")
e("s_nop 1")
e("v_readlane_b32 s26, v12, 0")
e("v_readlane_b32 s27, v12, 16")
e("s_nop 1")
e("v_mov_b32 v12, s26")
e("v_max_f32 v12, s27, v12")
e("v_sub_f32 v13, v4, v12")
e("v_exp_f32 v13, v13")
e("s_nop 0")
e("v_mul_f32 v14, v13, v5")
for sh in (8, 4, 2, 1):
    e("s_nop 1")
    e(f"v_add_f32_dpp v14, v14, v14 row_ror:{sh} row_mask:0xf bank_mask:0xf")
e("s_nop 1")
e("v_readlane_b32 s26, v14, 0")
e("v_readlane_b32 s27, v14, 16")
e("s_nop 1")
e("v_mov_b32 v14, s26")
e("v_add_f32 v14, s27, v14")
e("v_rcp_f32 v14, v14")
e("s_nop 0")
e("v_mul_f32 v13, v13, v14")
for i in range(4): e(f"v_mov_b32 v{144+i}, 0")
for s in range(32):
    e(f"v_readlane_b32 s{32+s}, v13, {s}")
for s in range(32):
    e(f"s_waitcnt vmcnt({31-s})")
    for i in range(4):
        e(f"v_fmac_f32 v{144+i}, s{32+s}, v{16+4*s+i}")
e("v_cvt_pk_bf16_f32 v4, v144, v145")
e("v_cvt_pk_bf16_f32 v5, v146, v147")
e("v_cmp_gt_u32 vcc, 48, v0")
e("s_and_b64 exec, exec, vcc")
e("buffer_store_short v4, v8, s[12:15], s22 offen")
e("buffer_store_short_d16_hi v4, v9, s[12:15], s22 offen")
e("buffer_store_short v5, v11, s[12:15], s22 offen")
e("buffer_store_short_d16_hi v5, v10, s[12:15], s22 offen")
if cfg.DBGST:
    e("s_waitcnt vmcnt(0)")
    e("s_memrealtime s[66:67]")
    e("s_mov_b64 exec, 0xf")
    e("s_lshl_b32 s20, s2, 6")
    e("s_add_u32 s20, s20, 0x1000000")
    e("v_lshl_add_u32 v1, v0, 4, s20")
    e("global_load_dwordx4 v[4:7], v1, s[6:7]")
    e("s_waitcnt vmcnt(0) lgkmcnt(0)")
    e("v_mov_b32 v1, 0")
    e("v_mov_b32 v7, s64")
    e("v_mov_b32 v8, s66")
    for i in range(5):
        e(f"v_not_b32 v9, v{4+i}")
        e(f"global_atomic_umax v1, v9, s[68:69] offset:{8*i}")
        e(f"global_atomic_umax v1, v{4+i}, s[68:69] offset:{8*i+4}")
        e("s_nop 1")
lab("B_end")
e("s_endpgm")

raw('.section .rodata,"a"')
for name, nfv, acc, nsg in ((f"{NAME}_kernel", NFV, ACC, 102), ("combine_kernel", 148, 148, 72)):
    raw(f""".p2align 6
.amdhsa_kernel {name}
  .amdhsa_next_free_vgpr {nfv}
  .amdhsa_next_free_sgpr {nsg}
  .amdhsa_accum_offset {acc}
  .amdhsa_group_segment_fixed_size 0
  .amdhsa_kernarg_size 64
  .amdhsa_user_sgpr_count 2
  .amdhsa_user_sgpr_kernarg_segment_ptr 1
  .amdhsa_system_sgpr_workgroup_id_x 1
.end_amdhsa_kernel""")
open(sys.argv[1], 'w').write("\n".join(out) + "\n")
```

```python
import sys, struct, math
NAME = "standalone__paged_block_table_kv_radixattention__sampling"
KV_BYTES = 1152*196608
def f2u(x): return struct.unpack('<I', struct.pack('<f', x))[0]
C2 = (192 ** -0.5) * math.log2(math.e)

class Cfg:
    D = 3
    STRIDE = 4
    STAMPS = False
    PROF = False
    F = 27
    DYN = True
    CSH = 5
    NOCOMP = 0
    NOSTORE = 0
    P1F = 99
    KF = 'nt'
    VF = 'nt'
cfg = Cfg()
for a in sys.argv[2:]:
    k, v = a.split('=')
    assert hasattr(cfg, k), k
    setattr(cfg, k, eval(v))
D = cfg.D
NSEG = 32
ML_OFF = 0
O_OFF = 65536
WS_USED = O_OFF + NSEG*32*8*768
OOB = 0xF0000000
EMPTY, DONE = -1, -2
L_LIST = 0
L_CNT = 8192
L_P1 = 8192 + 128
L_SLOT = 8192 + 1024
LDS_BYTES = L_SLOT + 3072

out = []
inloop = [False]
def e(s):
    if inloop[0] and cfg.NOCOMP:
        op = s.split()[0]
        if cfg.NOCOMP == 1 and (op.startswith(("v_mfma", "v_perm", "v_add_f32", "v_cndmask", "v_max", "v_fma", "v_exp", "v_cvt", "v_cmp", "v_subrev", "s_cbranch_vccnz"))): return
        if cfg.NOCOMP == 2 and op.startswith("v_mfma"): return
    out.append("    " + s)
def lab(s): out.append(s + ":")
def raw(s): out.append(s)

hdr = open('cdna_kernels/%s.s.ref' % NAME).read().split('\n')
for l in hdr:
    if l.startswith('; Override') or l.startswith('; grid=') or l.startswith('; @launch'): continue
    if not l.startswith(';'): break
    raw(l)
raw(f"; @launch kernel={NAME}_kernel grid=(256,1,1) block=(256,1,1) lds={LDS_BYTES}")
raw(f"; @launch kernel=combine_kernel grid=(256,1,1) block=(64,1,1) lds=0")
raw('.amdgcn_target "amdgcn-amd-amdhsa--gfx950"')
raw('.text')

raw(f".globl {NAME}_kernel\n.p2align 8\n.type {NAME}_kernel,@function")
lab(f"{NAME}_kernel")
sQ, sK, sV, sBT, sCTX, sOUT, sDBG, sWS = 4, 6, 8, 10, 12, 14, 16, 18
SRDK, SRDV, SRDW = 20, 24, 28
sC = 32
sVAL = 40
sNL = 56
sEQ = 72
sWAVE, sHOFF, sSEG, sN, sDS, sCNT, sI, sT0, sT1, sT2, sHEAD, sTK = 86, 87, 88, 89, 90, 91, 92, 93, 94, 95, 96, 97
sST = 98
sP0 = 3
sREC = 32
sMK = 48
sA = 50
sJ16 = 58
sO = 60
sC2, sSELLO, sSELHI = 64, 65, 66
sJ1 = 80
sPV = 97
vLANE, vC, vG = 1, 2, 3
vOK, vOV4, vOV2, vCTXM, vLIST, vM, vMC, vL, vNINF, vLIM, vMX, vA, vB = 4, 5, 6, 7, 8, 9, 10, 11, 12, 13, 14, 15, 42
vQ = 16
vC1, vC2 = 28, 32
vS = 36
vP = 40
vX = 44
vO = 48
vT = 96
vV = 120
NV = vV + 24*D + 2
vPROF = NV-1
ACC = (NV + 3)//4*4
NFV = max(ACC + 24*D, 264)
prof_n = [0]
def prof():
    if not cfg.PROF: return
    e('s_memtime s[100:101]')
    e('s_waitcnt lgkmcnt(0)')
    e(f'v_writelane_b32 v{vPROF}, s100, {prof_n[0]}')
    prof_n[0] += 1
pT = 48
pM = 56
pJX, pA, pB, pCNT, pJ4 = 64, 65, 66, 67, 68

def pr(a): return f"s[{a}:{a+1}]"
def k_loads(st):
    for u in range(2):
        for s in range(3):
            r = st*24 + u*12 + s*4
            e(f"buffer_load_dwordx4 a[{r}:{r+3}], v{vOK}, s[{SRDK}:{SRDK+3}], s{sO+2*u} offen offset:{128*s} {cfg.KF}")
def v_loads(st):
    for i in range(4):
        r = vV + st*24 + i*4
        e(f"buffer_load_dwordx4 v[{r}:{r+3}], v{vOV4}, s[{SRDV}:{SRDV+3}], s{sO+i} offen {cfg.VF}")
        r = vV + st*24 + 16 + i*2
        e(f"buffer_load_dwordx2 v[{r}:{r+1}], v{vOV2}, s[{SRDV}:{SRDV+3}], s{sO+i} offen offset:256 {cfg.VF}")
def soffs():
    e(f"s_add_u32 s{sO+1}, s{sO}, 12288")
    e(f"s_add_u32 s{sO+2}, s{sO}, {8*12288}")
    e(f"s_add_u32 s{sO+3}, s{sO}, {9*12288}")

e("s_cmp_ge_u32 s2, 256")
e("s_cbranch_scc1 A_end")
if cfg.STAMPS: e(f"s_memrealtime {pr(sST)}")
prof()
e("s_load_dwordx16 s[4:19], s[0:1], 0")
e(f"v_and_b32 v{vLANE}, 63, v0")
e(f"v_lshrrev_b32 v{vA}, 6, v0")
e(f"v_and_b32 v{vC}, 15, v0")
e(f"v_readfirstlane_b32 s{sWAVE}, v{vA}")
e(f"v_lshrrev_b32 v{vG}, 4, v{vLANE}")
e(f"v_lshlrev_b32 v{pJ4}, 2, v0")
e(f"v_add_u32 v{pB}, 4096, v{pJ4}")
e(f"s_lshr_b32 s{sHEAD}, s2, 5")
e(f"s_and_b32 s{sSEG}, s2, 31")
e(f"s_lshl_b32 s{sT2}, s{sHEAD}, {cfg.CSH}")
e(f"s_lshl_b32 s{sHEAD}, s{sHEAD}, 2")
e(f"s_add_u32 s{sHEAD}, s{sHEAD}, s{sWAVE}")
e(f"s_mul_i32 s{sHOFF}, s{sHEAD}, 384")
e(f"s_and_b32 s{sT0}, s{sSEG}, 28")
e(f"v_lshrrev_b32 v{vOK}, 1, v{vC}")
e(f"v_mul_u32_u24 v{vOK}, 12288, v{vOK}")
e(f"v_lshl_add_u32 v{vOK}, v{vG}, 5, v{vOK}")
e(f"v_and_b32 v{vA}, 1, v{vC}")
e(f"v_lshl_add_u32 v{vOK}, v{vA}, 4, v{vOK}")
e(f"v_mul_u32_u24 v{vA}, 24576, v{vG}")
e(f"v_lshl_add_u32 v{vOV4}, v{vC}, 4, v{vA}")
e(f"v_lshl_add_u32 v{vOV2}, v{vC}, 3, v{vA}")
e(f"v_and_b32 v{vX}, 7, v{vC}")
e(f"v_mul_u32_u24 v{vX+1}, 12288, v{vX}")
e(f"v_lshl_add_u32 v{vX+1}, v{vG}, 5, v{vX+1}")
e(f"v_lshrrev_b32 v{vX+2}, 3, v{vC}")
e(f"v_lshl_add_u32 v{vX+1}, v{vX+2}, 4, v{vX+1}")
e(f"v_add_u32 v{vX+1}, s{sHOFF}, v{vX+1}")
e(f"v_lshlrev_b32 v{vX}, 2, v{vX}")
for srd, size in ((SRDK, KV_BYTES), (SRDV, KV_BYTES), (SRDW, WS_USED)):
    e(f"s_mov_b32 s{srd+2}, {size}")
    e(f"s_mov_b32 s{srd+3}, 0x20000")
e("s_waitcnt lgkmcnt(0)")
prof()
e(f"s_load_dword s{sT1}, {pr(sCTX)}, s{sT0}")
e(f"s_load_dwordx8 s[{sC}:{sC+7}], {pr(sCTX)}, 0")
for b in range(8):
    e(f"global_load_dword v{pT+b}, v{pJ4 if b < 4 else pB}, {pr(sBT)} offset:{(b & 3)*1024}")
e(f"global_load_dword v{vCTXM}, v{vX}, {pr(sCTX)}")
for s in range(3):
    e(f"global_load_dwordx4 v[{vQ+4*s}:{vQ+4*s+3}], v{vX+1}, {pr(sQ)} offset:{128*s}")
for srd, base in ((SRDK, sK), (SRDV, sV), (SRDW, sWS)):
    e(f"s_mov_b32 s{srd}, s{base}")
    e(f"s_and_b32 s{srd+1}, s{base+1}, 0xffff")
e(f"s_add_u32 s{sDBG}, s{sDBG}, s{sT2}")
e(f"s_addc_u32 s{sDBG+1}, s{sDBG+1}, 0")
e(f"v_mov_b32 v{pA}, {EMPTY}")
e(f"v_mov_b32 v{pCNT}, 0")
for i in range(3):
    e(f"ds_write_b32 v{pJ4}, v{pA} offset:{L_SLOT + 1024*i}")
e(f"ds_write_b32 v{pJ4}, v{pCNT} offset:{L_CNT}")
e(f"s_lshl_b32 s{sT0}, s{sT0}, 8")
e(f"s_and_b32 s{sT2}, s{sSEG}, 3")
e(f"v_lshlrev_b32 v{pJX}, 16, v0")
e(f"v_lshlrev_b32 v{pA}, 4, v0")
e("s_waitcnt lgkmcnt(0)")
prof()
e(f"s_cmp_lt_i32 s{sT1}, 1")
e(f"s_cselect_b32 s{sT1}, 0x1000, s{sT1}")
e(f"s_min_i32 s{sT1}, s{sT1}, 0x1000")
e(f"s_add_u32 s{sT1}, s{sT1}, 15")
e(f"s_lshr_b32 s{sT1}, s{sT1}, 4")
e(f"s_sub_u32 s{sT1}, s{sT1}, s{sT2}")
for k in range(D):
    e(f"s_sub_u32 s{sJ1+k}, s{sT1}, {1+4*k}")
    e(f"s_max_i32 s{sT2}, s{sJ1+k}, 0")
    e(f"s_lshl_b32 s{sT2}, s{sT2}, 2")
    e(f"s_add_u32 s{sT2}, s{sT2}, s{sT0}")
    e(f"s_load_dword s{sEQ+k}, {pr(sBT)}, s{sT2}")
for b in range(8):
    e(f"s_cmp_lt_i32 s{sC+b}, 1")
    e(f"s_cselect_b32 s{sC+b}, 0x1000, s{sC+b}")
e("s_waitcnt lgkmcnt(0)")
prof()
P1F = min(cfg.P1F, D)
sP1O = 98 if not (cfg.STAMPS or cfg.PROF) else None
def p1_off(k, dst):
    e(f"s_and_b32 s{sT1}, s{sEQ+k}, 0xffff")
    e(f"s_mul_i32 s{sT1}, s{sT1}, 196608")
    e(f"s_add_u32 s{sT1}, s{sT1}, s{sHOFF}")
    e(f"s_cmp_ge_i32 s{sJ1+k}, 0")
    e(f"s_cselect_b32 s{dst}, s{sT1}, 0x{OOB:x}")
for k in range(P1F):
    p1_off(k, sO)
    soffs()
    k_loads(k)
    v_loads(k)
    if k == 0: prof()
LATE = [sI, sCNT, sTK, sDS]
for k in range(P1F, D):
    p1_off(k, LATE[k-P1F])
prof()
for b in range(8):
    e(f"v_cmp_gt_i32_e64 {pr(sVAL+2*b)}, s{sC+b}, v{pA}")
for b in range(1, 8):
    e(f"s_mov_b64 {pr(sNL+2*b)}, 0")
for b in range(8):
    e(f"v_mov_b32 v{pM+b}, 0")
e(f"s_waitcnt vmcnt({14*P1F+4})")
for b in range(8):
    e(f"v_cndmask_b32_e64 v{pT+b}, {-(b+1)}, v{pT+b}, {pr(sVAL+2*b)}")
for b in range(7):
    hi = list(range(7, b, -1))
    for k, b2 in enumerate(hi):
        e(f"v_cmp_eq_u32_e64 {pr(sEQ+2*k)}, v{pT+b}, v{pT+b2}")
    if len(hi) < 3: e(f"s_nop {2-len(hi)}")
    for k, b2 in enumerate(hi):
        e(f"v_addc_co_u32_e64 v{pM+b}, vcc, v{pM+b}, v{pM+b}, {pr(sEQ+2*k)}")
    for k, b2 in enumerate(hi):
        e(f"s_or_b64 {pr(sNL+2*b2)}, {pr(sNL+2*b2)}, {pr(sEQ+2*k)}")
for b in range(8):
    e(f"v_lshl_or_b32 v{pM+b}, v{pM+b}, 1, 1")
    e(f"v_lshlrev_b32 v{pM+b}, {24+b}, v{pM+b}")
    e(f"v_or3_b32 v{pT+b}, v{pT+b}, v{pJX}, v{pM+b}")
    if b: e(f"s_andn2_b64 {pr(sVAL+2*b)}, {pr(sVAL+2*b)}, {pr(sNL+2*b)}")
for b in range(8):
    e(f"s_min_i32 s{sC+b}, s{sC+b}, 0x1000")
    e(f"s_add_u32 s{sC+b}, s{sC+b}, 15")
    e(f"s_lshr_b32 s{sC+b}, s{sC+b}, 4")
    e(f"s_sub_u32 s{sT0}, s{sC+b}, {4*D}")
    e(f"v_cmp_le_i32_e64 {pr(sNL+2*b)}, s{sT0}, v0")
e(f"v_mov_b32 v{pCNT}, 0")
for b in range(8):
    e(f"s_andn2_b64 {pr(sEQ)}, {pr(sVAL+2*b)}, {pr(sNL+2*b)}")
    e(f"s_bcnt1_i32_b64 s{sT0}, {pr(sEQ)}")
    e(f"v_writelane_b32 v{pCNT}, s{sT0}, {b}")
    e(f"v_mbcnt_lo_u32_b32 v{pM+b}, s{sEQ}, 0")
    e(f"v_mbcnt_hi_u32_b32 v{pM+b}, s{sEQ+1}, v{pM+b}")
e("s_barrier")
e(f"s_lshl_b32 s{sT0}, s{sWAVE}, 2")
e(f"s_add_u32 s{sT0}, s{sT0}, {L_CNT}")
e(f"v_lshl_add_u32 v{pA}, v{vLANE}, 4, s{sT0}")
e(f"s_mov_b64 exec, 0xff")
e(f"ds_write_b32 v{pA}, v{pCNT}")
e(f"s_mov_b64 exec, -1")
e(f"v_and_b32 v{pA}, 31, v{vLANE}")
e(f"v_lshlrev_b32 v{pA}, 2, v{pA}")
e("s_waitcnt lgkmcnt(0)")
e("s_barrier")
e(f"ds_read_b32 v{pCNT}, v{pA} offset:{L_CNT}")
e("s_waitcnt lgkmcnt(0)")
e(f"v_mov_b32 v{pB}, v{pCNT}")
for sh in (1, 2, 4, 8):
    e("s_nop 1")
    e(f"v_add_u32_dpp v{pB}, v{pB}, v{pB} row_shr:{sh} row_mask:0xf bank_mask:0xf bound_ctrl:0")
e("s_nop 1")
e(f"v_add_u32_dpp v{pB}, v{pB}, v{pB} row_bcast:15 row_mask:0xa bank_mask:0xf")
e("s_nop 1")
e(f"v_readlane_b32 s{sN}, v{pB}, 31")
e(f"v_sub_u32 v{pB}, v{pB}, v{pCNT}")
e(f"s_mov_b32 s{sT1}, s{sWAVE}")
for b in range(8):
    e(f"v_readlane_b32 s{sEQ+b}, v{pB}, s{sT1}")
    e(f"s_add_u32 s{sT1}, s{sT1}, 4")
e("s_nop 1")
for b in range(8):
    e(f"v_add_lshl_u32 v{pM+b}, v{pM+b}, s{sEQ+b}, 2")
    e(f"s_lshl_b32 s{sT0}, s{sC+b}, 2")
    e(f"s_add_u32 s{sT0}, s{sT0}, {L_P1 + (b*4*D - 1)*4}")
    e(f"v_sub_u32 v{pA}, s{sT0}, v{pJ4}")
    e(f"v_cndmask_b32_e64 v{pM+b}, v{pM+b}, v{pA}, {pr(sNL+2*b)}")
for b in range(8):
    e(f"s_mov_b64 exec, {pr(sVAL+2*b)}")
    e(f"ds_write_b32 v{pM+b}, v{pT+b}")
e(f"s_mov_b64 exec, -1")
for k in range(P1F, D):
    e(f"s_mov_b32 s{sO}, s{LATE[k-P1F]}")
    soffs()
    k_loads(k)
    v_loads(k)
ST = cfg.STRIDE
lst = ST.bit_length()-1
if cfg.DYN:
    e(f"s_mul_i32 s{sT0}, s{sN}, {cfg.F}")
    e(f"s_lshr_b32 s{sT0}, s{sT0}, 10")
else:
    e(f"s_add_u32 s{sT0}, s{sN}, 31")
    e(f"s_lshr_b32 s{sT0}, s{sT0}, 5")
e(f"s_lshl_b32 s{sP0}, s{sT0}, 5")
e(f"s_add_u32 s{sDS}, s{sT0}, {D}")
e(f"s_lshr_b32 s{sT1}, s{sSEG}, {lst}")
e(f"s_mul_i32 s{sT1}, s{sT1}, s{sT0}")
e(f"s_lshl_b32 s{sT1}, s{sT1}, {lst}")
e(f"s_and_b32 s{sT2}, s{sSEG}, {ST-1}")
e(f"s_add_u32 s{sT1}, s{sT1}, s{sT2}")
e(f"s_sub_u32 s{sT1}, s{sT1}, {D*ST}")
e(f"v_lshlrev_b32 v{pA}, {lst}, v{vLANE}")
e(f"v_add_u32 v{pA}, s{sT1}, v{pA}")
if not cfg.DYN:
    e(f"v_cmp_gt_i32 vcc, s{sN}, v{pA}")
e(f"v_lshlrev_b32 v{pA}, 2, v{pA}")
e(f"v_min_u32 v{pA}, 8188, v{pA}")
if not cfg.DYN:
    e(f"v_mov_b32 v{pB}, {L_P1 + 8*4*D*4}")
    e(f"v_cndmask_b32 v{pA}, v{pB}, v{pA}, vcc")
e(f"s_lshr_b32 s{sT0}, s{sSEG}, 2")
e(f"s_mul_i32 s{sT0}, s{sT0}, {4*D}")
e(f"s_and_b32 s{sT2}, s{sSEG}, 3")
e(f"s_add_u32 s{sT0}, s{sT0}, s{sT2}")
e(f"s_lshl_b32 s{sT0}, s{sT0}, 2")
e(f"s_add_u32 s{sT0}, s{sT0}, {L_P1}")
e(f"v_lshl_add_u32 v{pB}, v{vLANE}, 4, s{sT0}")
e(f"v_cmp_gt_u32 vcc, {D}, v{vLANE}")
e("s_waitcnt lgkmcnt(0)")
e("s_barrier")
e(f"v_cndmask_b32 v{pA}, v{pA}, v{pB}, vcc")
e(f"ds_read_b32 v{vLIST}, v{pA}")
e(f"s_waitcnt vmcnt({14*D})")
e(f"v_cmp_gt_i32 vcc, 1, v{vCTXM}")
e(f"v_mov_b32 v{vA}, 0x1000")
e(f"v_lshlrev_b32 v{vB}, 1, v{vG}")
e(f"v_cndmask_b32 v{vCTXM}, v{vCTXM}, v{vA}, vcc")
for i in range(12):
    e(f"v_cndmask_b32_e64 v{vQ+i}, v{vQ+i}, 0, vcc")
e(f"v_sub_u32 v{vCTXM}, v{vCTXM}, v{vB}")
e(f"s_mov_b32 s{sC2}, 0x{f2u(C2):08x}")
e(f"s_mov_b32 s{sSELLO}, 0x05040100")
e(f"s_mov_b32 s{sSELHI}, 0x07060302")
e(f"v_mov_b32 v{vM}, 0x{f2u(-3e38):08x}")
e(f"v_mul_f32 v{vMC}, s{sC2}, v{vM}")
e(f"v_mov_b32 v{vL}, 0")
e(f"v_mov_b32 v{vNINF}, 0xff800000")
for i in range(48):
    e(f"v_mov_b32 v{vO+i}, 0")
e("s_waitcnt lgkmcnt(0)")
for k in range(D):
    e(f"v_readlane_b32 s{sREC+k}, v{vLIST}, {k}")
e(f"s_mov_b32 s{sI}, 0")
if cfg.DYN:
    e(f"s_mov_b32 s{sCNT}, 0x7fffffff")
    e(f"s_cmp_lg_u32 s{sDS}, {D}")
    e("s_cbranch_scc1 A_loop")
    e(f"s_cmp_lg_u32 s{sWAVE}, 0")
    e("s_cbranch_scc1 A_loop")
    e(f"s_mov_b32 s{sTK}, 1")
    e(f"s_atomic_add s{sTK}, {pr(sDBG)}, 0 glc")
else:
    e(f"s_mov_b32 s{sCNT}, s{sDS}")
prof()
lab("A_loop")
inloop[0] = True
for st in range(D):
    e(f"s_bfe_u32 s{sJ16}, s{sREC+st}, 0x80010")
    e(f"s_lshl_b32 s{sJ16}, s{sJ16}, 4")
    e(f"s_lshr_b32 s{sMK}, s{sREC+st}, 24")
    e(f"s_mul_i32 s{sMK}, s{sMK}, 0x10001")
    e(f"s_mov_b32 s{sMK+1}, s{sMK}")
    e(f"s_add_u32 s{sT0}, s{sI}, {D}")
    e(f"v_readlane_b32 s{sREC+st}, v{vLIST}, s{sT0}")
    if cfg.DYN:
        e(f"s_add_u32 s{sT1}, s{sT0}, 1")
        e(f"s_cmp_ge_u32 s{sT1}, s{sDS}")
        e(f"s_cbranch_scc1 A_dyn{st}")
        lab(f"A_rec{st}")
    else:
        e("s_nop 1")
    e(f"s_and_b32 s{sT1}, s{sREC+st}, 0xffff")
    e(f"s_mul_i32 s{sT1}, s{sT1}, 196608")
    e(f"s_add_u32 s{sT1}, s{sT1}, s{sHOFF}")
    e(f"s_cmp_lt_u32 s{sT0}, s{sCNT}")
    e(f"s_cselect_b32 s{sO}, s{sT1}, 0x{OOB:x}")
    if not cfg.DYN:
        e(f"s_cmp_lg_u32 s{sREC+st}, 0")
        e(f"s_cselect_b32 s{sO}, s{sO}, 0x{OOB:x}")
    soffs()
    e(f"v_subrev_u32 v{vLIM}, s{sJ16}, v{vCTXM}")
    e(f"v_cndmask_b32_e64 v{vLIM}, 0, v{vLIM}, {pr(sMK)}")
    for i, o in enumerate((0, 1, 8, 9)):
        e(f"v_cmp_lt_i32_e64 {pr(sA+2*i)}, {o}, v{vLIM}")
    e(f"s_waitcnt vmcnt({8+(D-1)*14})")
    for s in range(3):
        for u, c in ((0, vC1), (1, vC2)):
            r = st*24 + u*12 + s*4
            src = "0" if s == 0 else f"v[{c}:{c+3}]"
            e(f"v_mfma_f32_16x16x32_bf16 v[{c}:{c+3}], a[{r}:{r+3}], v[{vQ+4*s}:{vQ+4*s+3}], {src}")
    k_loads(st)
    e("s_nop 2")
    for i, (c, r) in enumerate(((vC1, 0), (vC1, 2), (vC2, 0), (vC2, 2))):
        e(f"v_add_f32_dpp v{vS+i}, v{c+r+1}, v{c+r} row_ror:8 row_mask:0xf bank_mask:0xf")
    for i in range(4):
        e(f"v_cndmask_b32_e64 v{vS+i}, v{vNINF}, v{vS+i}, {pr(sA+2*i)}")
    e(f"v_max3_f32 v{vMX}, v{vS}, v{vS+1}, v{vS+2}")
    e(f"v_max_f32 v{vMX}, v{vMX}, v{vS+3}")
    e(f"v_cmp_gt_f32 vcc, v{vMX}, v{vM}")
    e(f"s_cbranch_vccnz A_slow{st}")
    lab(f"A_back{st}")
    for i in range(4):
        e(f"v_fma_f32 v{vX+i}, v{vS+i}, s{sC2}, -v{vMC}")
    for i in range(4):
        e(f"v_exp_f32 v{vX+i}, v{vX+i}")
    e(f"s_waitcnt vmcnt({6+(D-1)*14})")
    vb = vV + st*24
    def perm(t):
        if t < 8:
            q, hsel = t >> 1, t & 1
            regs = [vb + i*4 + q for i in range(4)]
        else:
            q, hsel = (t-8) >> 1, t & 1
            regs = [vb + 16 + i*2 + q for i in range(4)]
        sel = sSELHI if hsel else sSELLO
        e(f"v_perm_b32 v{vT+2*t}, v{regs[1]}, v{regs[0]}, s{sel}")
        e(f"v_perm_b32 v{vT+2*t+1}, v{regs[3]}, v{regs[2]}, s{sel}")
    e(f"v_cvt_pk_bf16_f32 v{vP}, v{vX}, v{vX+1}")
    e(f"v_cvt_pk_bf16_f32 v{vP+1}, v{vX+2}, v{vX+3}")
    for t in range(12): perm(t)
    v_loads(st)
    e(f"v_add_f32 v{vX}, v{vX}, v{vX+1}")
    e(f"v_add_f32 v{vX+2}, v{vX+2}, v{vX+3}")
    for t in range(12):
        e(f"v_mfma_f32_16x16x16_bf16 v[{vO+4*t}:{vO+4*t+3}], v[{vT+2*t}:{vT+2*t+1}], v[{vP}:{vP+1}], v[{vO+4*t}:{vO+4*t+3}]")
    e(f"v_add_f32 v{vL}, v{vL}, v{vX}")
    e(f"v_add_f32 v{vL}, v{vL}, v{vX+2}")
    e(f"s_add_u32 s{sI}, s{sI}, 1")
    e(f"s_cmp_ge_u32 s{sI}, s{sCNT}")
    if st < D-1:
        e("s_cbranch_scc1 A_done")
    else:
        e("s_cbranch_scc0 A_loop")
inloop[0] = False
lab("A_done")
prof()
def xreduce(op, reg):
    for sw in ("v_permlane32_swap_b32", "v_permlane16_swap_b32"):
        e(f"v_mov_b32 v{vA}, v{reg}")
        e(f"v_mov_b32 v{vB}, v{reg}")
        e("s_nop 1")
        e(f"{sw} v{vA}, v{vB}")
        e("s_nop 1")
        e(f"{op} v{reg}, v{vA}, v{vB}")
xreduce("v_add_f32", vL)
e(f"s_lshl_b32 s{sT0}, s{sHEAD}, 11")
e(f"s_lshl_b32 s{sT1}, s{sSEG}, 3")
e(f"s_add_u32 s{sT0}, s{sT0}, s{sT1}")
e(f"v_lshlrev_b32 v{vX}, 8, v{vC}")
assert vL == vMC + 1 and vMC % 2 == 0
e("s_mov_b64 exec, 0xff")
e(f"buffer_store_dwordx2 v[{vMC}:{vMC+1}], v{vX}, s[{SRDW}:{SRDW+3}], s{sT0} offen")
e("s_mov_b64 exec, -1")
e(f"s_lshl_b32 s{sT0}, s{sSEG}, 5")
e(f"s_add_u32 s{sT0}, s{sT0}, s{sHEAD}")
e(f"s_mul_i32 s{sT0}, s{sT0}, {8*768}")
e(f"s_add_u32 s{sT0}, s{sT0}, {O_OFF}")
e(f"v_mul_u32_u24 v{vX}, 768, v{vC}")
e(f"v_lshl_add_u32 v{vX}, v{vG}, 4, v{vX}")
e(f"v_cmp_lt_f32 vcc, 0, v{vL}")
e(f"s_and_b64 exec, exec, vcc")
e("s_cbranch_execz A_fin")
if cfg.NOSTORE: e("s_branch A_fin")
for t in range(12):
    e(f"buffer_store_dwordx4 v[{vO+4*t}:{vO+4*t+3}], v{vX}, s[{SRDW}:{SRDW+3}], s{sT0} offen offset:{64*t}")
lab("A_fin")
if cfg.PROF:
    e("s_mov_b64 exec, -1")
    prof()
    e("s_waitcnt vmcnt(0)")
    prof()
    e(f"v_writelane_b32 v{vPROF}, s{sCNT}, 63")
    e(f"s_lshl_b32 s{sT0}, s2, 2")
    e(f"s_add_u32 s{sT0}, s{sT0}, s{sWAVE}")
    e(f"s_lshl_b32 s{sT0}, s{sT0}, 8")
    e(f"s_add_u32 s{sT0}, s{sT0}, 0x2000000")
    e(f"v_lshl_add_u32 v{vX}, v{vLANE}, 2, s{sT0}")
    e(f"global_store_dword v{vX}, v{vPROF}, {pr(sWS)}")
if cfg.STAMPS:
    e("s_mov_b64 exec, -1")
    e("s_waitcnt vmcnt(0)")
    e("s_barrier")
    e(f"s_memrealtime {pr(sST+2)}")
    e(f"s_cmp_lg_u32 s{sWAVE}, 0")
    e("s_cbranch_scc1 A_end")
    e("s_waitcnt lgkmcnt(0)")
    e(f"s_add_u32 s{sWS}, s{sWS}, 0x20000000")
    e(f"s_addc_u32 s{sWS+1}, s{sWS+1}, 0")
    e(f"s_lshl_b32 s{sT0}, s2, 4")
    e(f"v_mov_b32 v{vX}, s{sT0}")
    for i in range(4): e(f"v_mov_b32 v{vS+i}, s{sST+i}")
    e("s_mov_b64 exec, 1")
    e(f"global_store_dwordx4 v{vX}, v[{vS}:{vS+3}], {pr(sWS)}")
lab("A_end")
e("s_endpgm")
for st in range(D):
    lab(f"A_slow{st}")
    xreduce("v_max_f32", vMX)
    e(f"v_max_f32 v{vM}, v{vM}, v{vMX}")
    e(f"v_mul_f32 v{vA}, s{sC2}, v{vM}")
    e(f"v_sub_f32 v{vB}, v{vMC}, v{vA}")
    e(f"v_exp_f32 v{vB}, v{vB}")
    e(f"v_mov_b32 v{vMC}, v{vA}")
    e(f"v_mul_f32 v{vL}, v{vL}, v{vB}")
    assert vB % 2 == 0
    for i in range(24):
        e(f"v_pk_mul_f32 v[{vO+2*i}:{vO+2*i+1}], v[{vO+2*i}:{vO+2*i+1}], v[{vB}:{vB+1}] op_sel_hi:[1,0]")
    e(f"s_branch A_back{st}")
if cfg.DYN:
  for st in range(D):
    lab(f"A_dyn{st}")
    e(f"s_cmp_ge_u32 s{sT0}, s{sCNT}")
    e(f"s_cbranch_scc1 A_rec{st}")
    e(f"s_sub_u32 s{sT1}, s{sT0}, s{sDS}")
    e(f"s_lshl_b32 s{sT2}, s{sT1}, 2")
    e(f"v_mov_b32 v{vA}, s{sT2}")
    e(f"s_cmp_lg_u32 s{sWAVE}, 0")
    e(f"s_cbranch_scc1 A_oth{st}")
    e(f"s_cmp_lt_i32 s{sT1}, 0")
    e(f"s_cbranch_scc1 A_iss{st}")
    e("s_waitcnt lgkmcnt(0)")
    e(f"s_add_u32 s{sTK}, s{sTK}, s{sP0}")
    e(f"s_lshl_b32 s{sT2}, s{sTK}, 2")
    e(f"s_min_u32 s{sT2}, s{sT2}, 8188")
    e(f"v_mov_b32 v{vB}, s{sT2}")
    e(f"ds_read_b32 v{vB}, v{vB}")
    e("s_waitcnt lgkmcnt(0)")
    e(f"v_readfirstlane_b32 s{sREC+st}, v{vB}")
    e("s_nop 1")
    e(f"s_cmp_lt_u32 s{sTK}, s{sN}")
    e(f"s_cselect_b32 s{sREC+st}, s{sREC+st}, {DONE}")
    e(f"v_mov_b32 v{vB}, s{sREC+st}")
    e(f"ds_write_b32 v{vA}, v{vB} offset:{L_SLOT}")
    e(f"s_cbranch_scc0 A_fini{st}")
    lab(f"A_iss{st}")
    e(f"s_mov_b32 s{sTK}, 1")
    e(f"s_atomic_add s{sTK}, {pr(sDBG)}, 0 glc")
    e(f"s_branch A_rec{st}")
    lab(f"A_oth{st}")
    e(f"s_cmp_lt_i32 s{sT1}, 0")
    e(f"s_cbranch_scc1 A_rec{st}")
    lab(f"A_poll{st}")
    e(f"ds_read_b32 v{vB}, v{vA} offset:{L_SLOT}")
    e("s_waitcnt lgkmcnt(0)")
    e(f"v_readfirstlane_b32 s{sREC+st}, v{vB}")
    e("s_nop 1")
    e(f"s_cmp_eq_u32 s{sREC+st}, {EMPTY}")
    e(f"s_cbranch_scc1 A_poll{st}")
    e(f"s_cmp_lg_u32 s{sREC+st}, {DONE}")
    e(f"s_cbranch_scc1 A_rec{st}")
    lab(f"A_fini{st}")
    e(f"s_mov_b32 s{sCNT}, s{sT0}")
    e(f"s_branch A_rec{st}")

raw(".globl combine_kernel\n.p2align 8\n.type combine_kernel,@function")
lab("combine_kernel")
e("s_cmp_ge_u32 s2, 256")
e("s_cbranch_scc1 B_end")
e("s_load_dwordx2 s[4:5], s[0:1], 40")
e("s_load_dwordx2 s[6:7], s[0:1], 56")
e("s_lshl_b32 s20, s2, 8")
e("v_lshlrev_b32 v1, 3, v0")
e("v_mov_b32 v2, 0x7f000000")
e("v_cmp_gt_u32 vcc, 32, v0")
e("v_lshlrev_b32 v3, 4, v0")
e("s_nop 0")
e("v_cndmask_b32 v1, v2, v1, vcc")
e("v_cmp_gt_u32 vcc, 48, v0")
e(f"s_mul_i32 s21, s2, 768")
e(f"s_add_u32 s21, s21, {O_OFF}")
e("v_cndmask_b32 v3, v2, v3, vcc")
e("s_mov_b32 s10, %d\n    s_mov_b32 s11, 0x20000" % WS_USED)
e("s_waitcnt lgkmcnt(0)")
e("s_mov_b32 s8, s6\n    s_and_b32 s9, s7, 0xffff")
e("buffer_load_dwordx2 v[4:5], v1, s[8:11], s20 offen")
e("s_mov_b32 s12, s4\n    s_and_b32 s13, s5, 0xffff\n    s_mov_b32 s14, 98304\n    s_mov_b32 s15, 0x20000")
e("v_lshrrev_b32 v6, 2, v0")
e("v_and_b32 v7, 3, v0")
e("v_lshl_add_u32 v8, v7, 5, v6")
e("v_lshlrev_b32 v9, 4, v7")
e("v_add3_u32 v9, v9, v6, 64")
e("v_add_u32 v9, 56, v9")
e("v_cmp_gt_u32 vcc, 8, v6")
e("v_mov_b32 v10, 8")
e("v_mov_b32 v11, 16")
e("v_cndmask_b32 v8, v9, v8, vcc")
e("v_cndmask_b32 v10, v10, v11, vcc")
e("v_lshlrev_b32 v8, 1, v8")
e("v_add_u32 v9, v8, v10")
e("v_add_u32 v11, v9, v10")
e("v_add_u32 v10, v11, v10")
e("s_and_b32 s22, s2, 7")
e("s_lshr_b32 s23, s2, 3")
e("s_lshl_b32 s22, s22, 5")
e("s_add_u32 s22, s22, s23")
e("s_mul_i32 s22, s22, 384")
e("s_waitcnt vmcnt(0)")
e("v_cmp_lt_f32 vcc, 0, v5")
e(f"v_mov_b32 v12, 0x{f2u(-3e38):08x}")
e("s_nop 0")
e("s_mov_b32 s24, vcc_lo")
e("v_cndmask_b32 v4, v12, v4, vcc")
for s in range(32):
    e(f"s_bitcmp1_b32 s24, {s}")
    e(f"s_cselect_b32 s25, s21, 0x{OOB:x}")
    e(f"buffer_load_dwordx4 v[{16+4*s}:{19+4*s}], v3, s[8:11], s25 offen")
    e(f"s_add_u32 s21, s21, {32*8*768}")
e("v_mov_b32 v12, v4")
for sh in (8, 4, 2, 1):
    e("s_nop 1")
    e(f"v_max_f32_dpp v12, v12, v12 row_ror:{sh} row_mask:0xf bank_mask:0xf")
e("s_nop 1")
e("v_readlane_b32 s26, v12, 0")
e("v_readlane_b32 s27, v12, 16")
e("s_nop 1")
e("v_mov_b32 v12, s26")
e("v_max_f32 v12, s27, v12")
e("v_sub_f32 v13, v4, v12")
e("v_exp_f32 v13, v13")
e("s_nop 0")
e("v_mul_f32 v14, v13, v5")
for sh in (8, 4, 2, 1):
    e("s_nop 1")
    e(f"v_add_f32_dpp v14, v14, v14 row_ror:{sh} row_mask:0xf bank_mask:0xf")
e("s_nop 1")
e("v_readlane_b32 s26, v14, 0")
e("v_readlane_b32 s27, v14, 16")
e("s_nop 1")
e("v_mov_b32 v14, s26")
e("v_add_f32 v14, s27, v14")
e("v_rcp_f32 v14, v14")
e("s_nop 0")
e("v_mul_f32 v13, v13, v14")
for i in range(4): e(f"v_mov_b32 v{144+i}, 0")
for s in range(32):
    e(f"v_readlane_b32 s{32+s}, v13, {s}")
for s in range(32):
    e(f"s_waitcnt vmcnt({31-s})")
    for i in range(4):
        e(f"v_fmac_f32 v{144+i}, s{32+s}, v{16+4*s+i}")
e("v_cvt_pk_bf16_f32 v4, v144, v145")
e("v_cvt_pk_bf16_f32 v5, v146, v147")
e("v_cmp_gt_u32 vcc, 48, v0")
e("s_and_b64 exec, exec, vcc")
e("buffer_store_short v4, v8, s[12:15], s22 offen")
e("buffer_store_short_d16_hi v4, v9, s[12:15], s22 offen")
e("buffer_store_short v5, v11, s[12:15], s22 offen")
e("buffer_store_short_d16_hi v5, v10, s[12:15], s22 offen")
lab("B_end")
e("s_endpgm")

raw('.section .rodata,"a"')
for name, nfv, acc, nsg in ((f"{NAME}_kernel", NFV, ACC, 102), ("combine_kernel", 148, 148, 72)):
    raw(f""".p2align 6
.amdhsa_kernel {name}
  .amdhsa_next_free_vgpr {nfv}
  .amdhsa_next_free_sgpr {nsg}
  .amdhsa_accum_offset {acc}
  .amdhsa_group_segment_fixed_size 0
  .amdhsa_kernarg_size 64
  .amdhsa_user_sgpr_count 2
  .amdhsa_user_sgpr_kernarg_segment_ptr 1
  .amdhsa_system_sgpr_workgroup_id_x 1
.end_amdhsa_kernel""")
open(sys.argv[1], 'w').write("\n".join(out) + "\n")
```

```python
import sys, struct, math
NAME = "standalone__paged_block_table_kv_radixattention__sampling"
KV_BYTES = 1152*196608
def f2u(x): return struct.unpack('<I', struct.pack('<f', x))[0]
C2 = (192 ** -0.5) * math.log2(math.e)
NEG = f2u(-3e38)

class Cfg:
    D = 2
    KB = 3
    STRIDE = 4
    STAMPS = False
    MIDST = False
    PROF = False
    F = 28
    P1F = 1
    HSLEEP = 2
    HPRIO = 3
    MINV = 0
cfg = Cfg()
for a in sys.argv[2:]:
    k, v = a.split('=')
    assert hasattr(cfg, k), k
    setattr(cfg, k, eval(v))
D, KB = cfg.D, cfg.KB
NB = 4*KB
O_OFF = 65536
TK_OFF = O_OFF + 32*32*8*768
WS_USED = TK_OFF + 8*4096
SPIN_MAX = 1 << 17
OOB = 0xF0000000
EMPTY, DONE = -1, -2
L_CNT = 8192
L_P1 = 8320
L_FA = 9104
L_FB = 9120
L_SLOT = 9216
L_STG = 12288
L_STGML = L_STG + 4*6144
L_STB = L_STGML + 256
L_STBML = L_STB + 4*768
LDS_BYTES = L_STBML + 64

out = []
def e(s): out.append("    " + s)
def lab(s): out.append(s + ":")
def raw(s): out.append(s)
def pr(a): return f"s[{a}:{a+1}]"

hdr = open('cdna_kernels/%s.s.ref' % NAME).read().split('\n')
for l in hdr:
    if l.startswith('; Override') or l.startswith('; grid=') or l.startswith('; @launch'): continue
    if not l.startswith(';'): break
    raw(l)
raw(f"; @launch grid=(256,1,1) block=(320,1,1) lds={LDS_BYTES}")
raw('.amdgcn_target "amdgcn-amd-amdhsa--gfx950"')
raw('.text')
raw(f".globl {NAME}_kernel\n.p2align 8\n.type {NAME}_kernel,@function")
lab(f"{NAME}_kernel")

sQ, sK, sV, sBT, sCTX, sOUT, sDBG, sWS = 4, 6, 8, 10, 12, 14, 16, 18
SRDK, SRDV, SRDW = 20, 24, 28
sC = 32
sVAL = 40
sNL = 56
sEQ = 72
sWAVE, sHOFF, sSEG, sN, sDS, sCNT, sI, sT0, sT1, sT2, sHEAD, sTK = 86, 87, 88, 89, 90, 91, 92, 93, 94, 95, 96, 97
sST = 98
sP0 = 3
sTKB = 6
sSPIN = 8
sCB = 9
sREC = 32
sMK = 48
sA = 50
sJ16 = 58
sO = 60
sC2, sSELLO, sSELHI = 64, 65, 66
sUN = 68
sCNTA, sHOFFB = 70, 71
sBM = 72
sJ1 = 80
vLANE, vC, vG = 1, 2, 3
vOK, vOV4, vOV2, vCTXM, vLIST, vM, vMC, vL, vNINF, vLIM, vMX, vA, vB, vPO = 4, 5, 6, 7, 8, 9, 10, 11, 12, 13, 14, 15, 42, 43
vQ = 16
vC1, vC2 = 28, 32
vS = 36
vP = 40
vX = 44
vO = 48
vT = 96
vQB = 120
vLB = 132
vV = 136
NV = max(vV + 24*D, 160) + (1 if cfg.PROF else 0)
vPROF = NV-1
ACC = (NV + 3)//4*4
NFV = max(ACC + 24*D, cfg.MINV)
pT, pM = 48, 56
pJX, pA, pB, pCNT, pJ4 = 64, 65, 66, 67, 68

prof_n = [0]
def prof(n=None):
    if not cfg.PROF: return
    if n is None:
        n = prof_n[0]; prof_n[0] += 1
    e('s_memtime s[100:101]')
    e('s_waitcnt lgkmcnt(0)')
    e(f'v_writelane_b32 v{vPROF}, s100, {n}')

def k_loads(st):
    for u in range(2):
        for s in range(3):
            r = st*24 + u*12 + s*4
            e(f"buffer_load_dwordx4 a[{r}:{r+3}], v{vOK}, s[{SRDK}:{SRDK+3}], s{sO+2*u} offen offset:{128*s} nt")
def v_loads(st):
    for i in range(4):
        r = vV + st*24 + i*4
        e(f"buffer_load_dwordx4 v[{r}:{r+3}], v{vOV4}, s[{SRDV}:{SRDV+3}], s{sO+i} offen nt")
        r = vV + st*24 + 16 + i*2
        e(f"buffer_load_dwordx2 v[{r}:{r+1}], v{vOV2}, s[{SRDV}:{SRDV+3}], s{sO+i} offen offset:256 nt")
def soffs():
    e(f"s_add_u32 s{sO+1}, s{sO}, 12288")
    e(f"s_add_u32 s{sO+2}, s{sO}, {8*12288}")
    e(f"s_add_u32 s{sO+3}, s{sO}, {9*12288}")
def xreduce(op, reg, a=None, b=None, sw_list=("v_permlane32_swap_b32", "v_permlane16_swap_b32")):
    a = vA if a is None else a
    b = vB if b is None else b
    for sw in sw_list:
        e(f"v_mov_b32 v{a}, v{reg}")
        e(f"v_mov_b32 v{b}, v{reg}")
        e("s_nop 1")
        e(f"{sw} v{a}, v{b}")
        e("s_nop 1")
        e(f"{op} v{reg}, v{a}, v{b}")
def nblocks(r):
    e(f"s_cmp_lt_i32 s{r}, 1")
    e(f"s_cselect_b32 s{r}, 0x1000, s{r}")
    e(f"s_min_i32 s{r}, s{r}, 0x1000")
    e(f"s_add_u32 s{r}, s{r}, 15")
    e(f"s_lshr_b32 s{r}, s{r}, 4")
chk_n = [0]
def started_check(tmp):
    n = chk_n[0]; chk_n[0] += 1
    e(f"s_load_dword s{tmp}, {pr(sDBG)}, 0 glc")
    e(f"s_mov_b32 s{sSPIN}, 0")
    lab(f"A_chk{n}")
    e("s_waitcnt lgkmcnt(0)")
    e(f"s_cmp_eq_u32 s{tmp}, 32")
    e(f"s_cbranch_scc1 A_chkok{n}")
    e(f"s_add_u32 s{sSPIN}, s{sSPIN}, 1")
    e(f"s_cmp_ge_u32 s{sSPIN}, {SPIN_MAX}")
    e(f"s_cbranch_scc1 A_chkok{n}")
    e(f"s_mov_b32 s{tmp}, 0")
    e(f"s_atomic_add s{tmp}, {pr(sDBG)}, 0 glc")
    e(f"s_branch A_chk{n}")
    lab(f"A_chkok{n}")

e("s_cmp_ge_u32 s2, 256")
e("s_cbranch_scc1 A_end")
if cfg.STAMPS: e(f"s_memrealtime {pr(sST)}")
prof()
e("s_load_dwordx16 s[4:19], s[0:1], 0")
e(f"v_lshrrev_b32 v{vA}, 6, v0")
e(f"v_and_b32 v{vLANE}, 63, v0")
e(f"v_readfirstlane_b32 s{sWAVE}, v{vA}")
e(f"v_and_b32 v{vC}, 15, v0")
e(f"v_lshrrev_b32 v{vG}, 4, v{vLANE}")
e(f"s_lshr_b32 s{sHEAD}, s2, 5")
e(f"s_and_b32 s{sSEG}, s2, 31")
e(f"s_lshl_b32 s{sT2}, s{sHEAD}, 5")
e(f"s_lshl_b32 s{sJ16}, s{sHEAD}, 12")
e(f"s_add_u32 s{sJ16}, s{sJ16}, {TK_OFF}")
e(f"s_lshl_b32 s{sHEAD}, s{sHEAD}, 2")
e(f"s_mov_b32 s{SRDW+2}, {WS_USED}")
e(f"s_mov_b32 s{SRDW+3}, 0x20000")
e(f"s_cmp_eq_u32 s{sWAVE}, 4")
e("s_cbranch_scc1 H_start")
e(f"s_add_u32 s{sHEAD}, s{sHEAD}, s{sWAVE}")
e(f"s_mul_i32 s{sHOFF}, s{sHEAD}, 384")
e(f"s_and_b32 s{sT0}, s{sSEG}, 28")
e(f"v_lshlrev_b32 v{pJ4}, 2, v0")
e(f"v_add_u32 v{pB}, 4096, v{pJ4}")
e(f"v_lshrrev_b32 v{vOK}, 1, v{vC}")
e(f"v_mul_u32_u24 v{vOK}, 12288, v{vOK}")
e(f"v_lshl_add_u32 v{vOK}, v{vG}, 5, v{vOK}")
e(f"v_and_b32 v{vA}, 1, v{vC}")
e(f"v_lshl_add_u32 v{vOK}, v{vA}, 4, v{vOK}")
e(f"v_mul_u32_u24 v{vA}, 24576, v{vG}")
e(f"v_lshl_add_u32 v{vOV4}, v{vC}, 4, v{vA}")
e(f"v_lshl_add_u32 v{vOV2}, v{vC}, 3, v{vA}")
e(f"v_and_b32 v{vX}, 7, v{vC}")
e(f"v_mul_u32_u24 v{vX+1}, 12288, v{vX}")
e(f"v_lshl_add_u32 v{vX+1}, v{vG}, 5, v{vX+1}")
e(f"v_lshrrev_b32 v{vX+2}, 3, v{vC}")
e(f"v_lshl_add_u32 v{vX+1}, v{vX+2}, 4, v{vX+1}")
e(f"s_lshr_b32 s{sI}, s2, 3")
e(f"s_mul_i32 s{sI}, s{sI}, 384")
e(f"v_add_u32 v{vX+2}, s{sI}, v{vX+1}")
e(f"v_add_u32 v{vX+1}, s{sHOFF}, v{vX+1}")
e(f"v_lshlrev_b32 v{vX}, 2, v{vX}")
e(f"s_and_b32 s{sN}, s2, 7")
e(f"s_lshl_b32 s{sN}, s{sN}, 2")
for srd in (SRDK, SRDV):
    e(f"s_mov_b32 s{srd+2}, {KV_BYTES}")
    e(f"s_mov_b32 s{srd+3}, 0x20000")
e("s_waitcnt lgkmcnt(0)")
prof()
e(f"s_load_dword s{sT1}, {pr(sCTX)}, s{sT0}")
e(f"s_load_dword s{sP0}, {pr(sCTX)}, s{sN}")
e(f"s_load_dwordx8 s[{sC}:{sC+7}], {pr(sCTX)}, 0")
for b in range(8):
    e(f"global_load_dword v{pT+b}, v{pJ4 if b < 4 else pB}, {pr(sBT)} offset:{(b & 3)*1024}")
e(f"global_load_dword v{vCTXM}, v{vX}, {pr(sCTX)}")
for s in range(3):
    e(f"global_load_dwordx4 v[{vQ+4*s}:{vQ+4*s+3}], v{vX+1}, {pr(sQ)} offset:{128*s}")
for s in range(3):
    e(f"global_load_dwordx4 v[{vQB+4*s}:{vQB+4*s+3}], v{vX+2}, {pr(sQ)} offset:{128*s}")
for srd, base in ((SRDK, sK), (SRDV, sV)):
    e(f"s_mov_b32 s{srd}, s{base}")
    e(f"s_and_b32 s{srd+1}, s{base+1}, 0xffff")
e(f"s_add_u32 s{sDBG}, s{sDBG}, s{sT2}")
e(f"s_addc_u32 s{sDBG+1}, s{sDBG+1}, 0")
e(f"s_add_u32 s{sTKB}, s{sWS}, s{sJ16}")
e(f"s_addc_u32 s{sTKB+1}, s{sWS+1}, 0")
e(f"v_mov_b32 v{pA}, {EMPTY}")
e(f"v_mov_b32 v{pCNT}, 0")
for i in range(3):
    e(f"ds_write_b32 v{pJ4}, v{pA} offset:{L_SLOT + 1024*i}")
e(f"ds_write_b32 v{pJ4}, v{pCNT} offset:{L_CNT}")
e(f"s_lshl_b32 s{sT0}, s{sT0}, 8")
e(f"s_and_b32 s{sT2}, s{sSEG}, 3")
e(f"v_lshlrev_b32 v{pJX}, 16, v0")
e("s_waitcnt lgkmcnt(0)")
prof()
nblocks(sT1)
e(f"s_sub_u32 s{sT1}, s{sT1}, s{sT2}")
for k in range(D):
    e(f"s_sub_u32 s{sJ1+k}, s{sT1}, {NB+1+4*k}")
    e(f"s_max_i32 s{sT2}, s{sJ1+k}, 0")
    e(f"s_lshl_b32 s{sT2}, s{sT2}, 2")
    e(f"s_add_u32 s{sT2}, s{sT2}, s{sT0}")
    e(f"s_load_dword s{sEQ+k}, {pr(sBT)}, s{sT2}")
nblocks(sP0)
e(f"s_sub_u32 s{sP0}, s{sP0}, s{sWAVE}")
e(f"s_lshl_b32 s{sT0}, s{sN}, 8")
sJB, sPB = 40, 48
for k in range(KB):
    e(f"s_sub_u32 s{sJB+k}, s{sP0}, {1+4*k}")
    e(f"s_max_i32 s{sT2}, s{sJB+k}, 0")
    e(f"s_lshl_b32 s{sT2}, s{sT2}, 2")
    e(f"s_add_u32 s{sT2}, s{sT2}, s{sT0}")
    e(f"s_load_dword s{sPB+k}, {pr(sBT)}, s{sT2}")
e("s_waitcnt lgkmcnt(0)")
prof()
P1F = min(cfg.P1F, D)
def p1_off(k, dst):
    e(f"s_and_b32 s{sT1}, s{sEQ+k}, 0xffff")
    e(f"s_mul_i32 s{sT1}, s{sT1}, 196608")
    e(f"s_add_u32 s{sT1}, s{sT1}, s{sHOFF}")
    e(f"s_cmp_ge_i32 s{sJ1+k}, 0")
    e(f"s_cselect_b32 s{dst}, s{sT1}, 0x{OOB:x}")
for k in range(P1F):
    p1_off(k, sO)
    soffs()
    k_loads(k)
    v_loads(k)
LATE = [sCNT, sTK, sDS]
for k in range(P1F, D):
    p1_off(k, LATE[k-P1F])
prof()
e(f"v_mov_b32 v{vLB}, 0")
e(f"s_lshr_b32 s{sT0}, s{sN}, 2")
e(f"s_add_u32 s{sT0}, s{sT0}, 24")
e(f"s_lshl_b32 s{sT0}, 1, s{sT0}")
for k in range(KB):
    e(f"s_and_b32 s{sT1}, s{sPB+k}, 0xffff")
    e(f"s_lshl_b32 s{sT2}, s{sJB+k}, 16")
    e(f"s_or_b32 s{sT1}, s{sT1}, s{sT2}")
    e(f"s_or_b32 s{sT1}, s{sT1}, s{sT0}")
    e(f"s_cmp_ge_i32 s{sJB+k}, 0")
    e(f"s_cselect_b32 s{sT1}, s{sT1}, 0")
    e(f"v_writelane_b32 v{vLB}, s{sT1}, {k}")
for b in range(8):
    nblocks(sC+b)
    e(f"s_sub_u32 s{sC+b}, s{sC+b}, {NB}")
for b in range(8):
    e(f"v_cmp_gt_i32_e64 {pr(sVAL+2*b)}, s{sC+b}, v0")
for b in range(1, 8):
    e(f"s_mov_b64 {pr(sNL+2*b)}, 0")
for b in range(8):
    e(f"v_mov_b32 v{pM+b}, 0")
e(f"s_waitcnt vmcnt({14*P1F+7})")
for b in range(8):
    e(f"v_cndmask_b32_e64 v{pT+b}, {-(b+1)}, v{pT+b}, {pr(sVAL+2*b)}")
for b in range(7):
    hi = list(range(7, b, -1))
    for k, b2 in enumerate(hi):
        e(f"v_cmp_eq_u32_e64 {pr(sEQ+2*k)}, v{pT+b}, v{pT+b2}")
    if len(hi) < 3: e(f"s_nop {2-len(hi)}")
    for k, b2 in enumerate(hi):
        e(f"v_addc_co_u32_e64 v{pM+b}, vcc, v{pM+b}, v{pM+b}, {pr(sEQ+2*k)}")
    for k, b2 in enumerate(hi):
        e(f"s_or_b64 {pr(sNL+2*b2)}, {pr(sNL+2*b2)}, {pr(sEQ+2*k)}")
for b in range(8):
    e(f"v_lshl_or_b32 v{pM+b}, v{pM+b}, 1, 1")
    e(f"v_lshlrev_b32 v{pM+b}, {24+b}, v{pM+b}")
    e(f"v_or3_b32 v{pT+b}, v{pT+b}, v{pJX}, v{pM+b}")
    if b: e(f"s_andn2_b64 {pr(sVAL+2*b)}, {pr(sVAL+2*b)}, {pr(sNL+2*b)}")
for b in range(8):
    e(f"s_sub_u32 s{sT0}, s{sC+b}, {4*D}")
    e(f"v_cmp_le_i32_e64 {pr(sNL+2*b)}, s{sT0}, v0")
e(f"v_mov_b32 v{pCNT}, 0")
for b in range(8):
    e(f"s_andn2_b64 {pr(sEQ)}, {pr(sVAL+2*b)}, {pr(sNL+2*b)}")
    e(f"s_bcnt1_i32_b64 s{sT0}, {pr(sEQ)}")
    e(f"v_writelane_b32 v{pCNT}, s{sT0}, {b}")
    e(f"v_mbcnt_lo_u32_b32 v{pM+b}, s{sEQ}, 0")
    e(f"v_mbcnt_hi_u32_b32 v{pM+b}, s{sEQ+1}, v{pM+b}")
e("s_barrier")
e(f"s_lshl_b32 s{sT0}, s{sWAVE}, 2")
e(f"s_add_u32 s{sT0}, s{sT0}, {L_CNT}")
e(f"v_lshl_add_u32 v{pA}, v{vLANE}, 4, s{sT0}")
e(f"s_mov_b64 exec, 0xff")
e(f"ds_write_b32 v{pA}, v{pCNT}")
e(f"s_mov_b64 exec, -1")
e(f"v_and_b32 v{pA}, 31, v{vLANE}")
e(f"v_lshlrev_b32 v{pA}, 2, v{pA}")
e("s_waitcnt lgkmcnt(0)")
e("s_barrier")
e(f"ds_read_b32 v{pCNT}, v{pA} offset:{L_CNT}")
e("s_waitcnt lgkmcnt(0)")
e(f"v_mov_b32 v{pB}, v{pCNT}")
for sh in (1, 2, 4, 8):
    e("s_nop 1")
    e(f"v_add_u32_dpp v{pB}, v{pB}, v{pB} row_shr:{sh} row_mask:0xf bank_mask:0xf bound_ctrl:0")
e("s_nop 1")
e(f"v_add_u32_dpp v{pB}, v{pB}, v{pB} row_bcast:15 row_mask:0xa bank_mask:0xf")
e(f"s_lshr_b32 s{sCB}, s{sN}, 2")
e("s_nop 0")
e(f"v_readlane_b32 s{sN}, v{pB}, 31")
e(f"v_sub_u32 v{pB}, v{pB}, v{pCNT}")
e(f"s_mov_b32 s{sT1}, s{sWAVE}")
for b in range(8):
    e(f"v_readlane_b32 s{sEQ+b}, v{pB}, s{sT1}")
    e(f"s_add_u32 s{sT1}, s{sT1}, 4")
e("s_nop 1")
for b in range(8):
    e(f"v_add_lshl_u32 v{pM+b}, v{pM+b}, s{sEQ+b}, 2")
    e(f"s_lshl_b32 s{sT0}, s{sC+b}, 2")
    e(f"s_add_u32 s{sT0}, s{sT0}, {L_P1 + (b*4*D - 1)*4}")
    e(f"v_sub_u32 v{pA}, s{sT0}, v{pJ4}")
    e(f"v_cndmask_b32_e64 v{pM+b}, v{pM+b}, v{pA}, {pr(sNL+2*b)}")
for b in range(8):
    e(f"s_mov_b64 exec, {pr(sVAL+2*b)}")
    e(f"ds_write_b32 v{pM+b}, v{pT+b}")
e(f"s_mov_b64 exec, -1")
for k in range(P1F, D):
    e(f"s_mov_b32 s{sO}, s{LATE[k-P1F]}")
    soffs()
    k_loads(k)
    v_loads(k)
ST = cfg.STRIDE
lst = ST.bit_length()-1
e(f"s_mov_b32 s{sHOFFB}, s{sI}")
e(f"s_mul_i32 s{sT0}, s{sN}, {cfg.F}")
e(f"s_lshr_b32 s{sT0}, s{sT0}, 10")
e(f"s_lshl_b32 s{sP0}, s{sT0}, 5")
e(f"s_add_u32 s{sDS}, s{sT0}, {D}")
e(f"s_lshr_b32 s{sT1}, s{sSEG}, {lst}")
e(f"s_mul_i32 s{sT1}, s{sT1}, s{sT0}")
e(f"s_lshl_b32 s{sT1}, s{sT1}, {lst}")
e(f"s_and_b32 s{sT2}, s{sSEG}, {ST-1}")
e(f"s_add_u32 s{sT1}, s{sT1}, s{sT2}")
e(f"s_sub_u32 s{sT1}, s{sT1}, {D*ST}")
e(f"v_lshlrev_b32 v{pA}, {lst}, v{vLANE}")
e(f"v_add_u32 v{pA}, s{sT1}, v{pA}")
e(f"v_lshlrev_b32 v{pA}, 2, v{pA}")
e(f"v_min_u32 v{pA}, 8188, v{pA}")
e(f"s_lshr_b32 s{sT0}, s{sSEG}, 2")
e(f"s_mul_i32 s{sT0}, s{sT0}, {4*D}")
e(f"s_and_b32 s{sT2}, s{sSEG}, 3")
e(f"s_add_u32 s{sT0}, s{sT0}, s{sT2}")
e(f"s_lshl_b32 s{sT0}, s{sT0}, 2")
e(f"s_add_u32 s{sT0}, s{sT0}, {L_P1}")
e(f"v_lshl_add_u32 v{pB}, v{vLANE}, 4, s{sT0}")
e(f"v_cmp_gt_u32 vcc, {D}, v{vLANE}")
e("s_waitcnt lgkmcnt(0)")
e("s_barrier")
e(f"v_cndmask_b32 v{pA}, v{pA}, v{pB}, vcc")
e(f"ds_read_b32 v{vLIST}, v{pA}")
e(f"s_waitcnt vmcnt({14*D})")
e(f"v_cmp_gt_i32 vcc, 1, v{vCTXM}")
e(f"v_mov_b32 v{vA}, 0x1000")
e(f"v_lshlrev_b32 v{vB}, 1, v{vG}")
e(f"v_cndmask_b32 v{vCTXM}, v{vCTXM}, v{vA}, vcc")
for i in range(12):
    e(f"v_cndmask_b32_e64 v{vQ+i}, v{vQ+i}, 0, vcc")
    e(f"v_cndmask_b32_e64 v{vQB+i}, v{vQB+i}, 0, vcc")
e(f"v_sub_u32 v{vCTXM}, v{vCTXM}, v{vB}")
e(f"s_mov_b32 s{sC2}, 0x{f2u(C2):08x}")
e(f"s_mov_b32 s{sSELLO}, 0x05040100")
e(f"s_mov_b32 s{sSELHI}, 0x07060302")
def reset_state():
    e(f"v_mov_b32 v{vM}, 0x{NEG:08x}")
    e(f"v_mul_f32 v{vMC}, s{sC2}, v{vM}")
    e(f"v_mov_b32 v{vL}, 0")
    for i in range(48):
        e(f"v_mov_b32 v{vO+i}, 0")
reset_state()
e(f"v_mov_b32 v{vNINF}, 0xff800000")
e(f"s_mul_i32 s{sT0}, s{sWAVE}, 6144")
e(f"v_mul_u32_u24 v{vPO}, 768, v{vC}")
e(f"v_lshl_add_u32 v{vPO}, v{vG}, 4, v{vPO}")
e(f"v_add_u32 v{vPO}, s{sT0}, v{vPO}")
e(f"s_lshl_b32 s{sBM}, 0x10001, s{sCB}")
e(f"s_mov_b32 s{sBM+1}, s{sBM}")
e("s_waitcnt lgkmcnt(0)")
for k in range(D):
    e(f"v_readlane_b32 s{sREC+k}, v{vLIST}, {k}")
e(f"s_mov_b32 s{sI}, 0")
e(f"s_mov_b32 s{sUN}, 0")
e(f"s_mov_b32 s{sCNT}, 0x7fffffff")
e(f"s_mov_b32 s{sCNTA}, 0x7fffffff")
e(f"s_cmp_lg_u32 s{sWAVE}, 0")
e("s_cbranch_scc1 A_loop")
e(f"s_cmp_lg_u32 s{sDS}, {D}")
e("s_cbranch_scc1 A_loop")
started_check(sT2)
e(f"s_mov_b32 s{sTK}, 1")
e(f"s_atomic_add s{sTK}, {pr(sTKB)}, 0 glc")

lab("A_loop")
for st in range(D):
    e(f"s_cmp_eq_u32 s{sI}, s{sCNTA}")
    e(f"s_cbranch_scc1 A_trans{st}")
    lab(f"A_top{st}")
    e(f"s_bfe_u32 s{sJ16}, s{sREC+st}, 0x80010")
    e(f"s_lshl_b32 s{sJ16}, s{sJ16}, 4")
    e(f"s_lshr_b32 s{sMK}, s{sREC+st}, 24")
    e(f"s_mul_i32 s{sMK}, s{sMK}, 0x10001")
    e(f"s_mov_b32 s{sMK+1}, s{sMK}")
    e(f"s_or_b32 s{sUN}, s{sUN}, s{sMK}")
    e(f"s_add_u32 s{sT0}, s{sI}, {D}")
    e(f"v_readlane_b32 s{sREC+st}, v{vLIST}, s{sT0}")
    e(f"s_add_u32 s{sT1}, s{sT0}, 1")
    e(f"s_cmp_ge_u32 s{sT1}, s{sDS}")
    e(f"s_cbranch_scc1 A_dyn{st}")
    lab(f"A_rec{st}")
    e(f"s_and_b32 s{sT1}, s{sREC+st}, 0xffff")
    e(f"s_mul_i32 s{sT1}, s{sT1}, 196608")
    e(f"s_add_u32 s{sT1}, s{sT1}, s{sHOFF}")
    e(f"s_cmp_lg_u32 s{sREC+st}, 0")
    e(f"s_cselect_b32 s{sO}, s{sT1}, 0x{OOB:x}")
    soffs()
    e(f"v_subrev_u32 v{vLIM}, s{sJ16}, v{vCTXM}")
    e(f"v_cndmask_b32_e64 v{vLIM}, 0, v{vLIM}, {pr(sMK)}")
    for i, o in enumerate((0, 1, 8, 9)):
        e(f"v_cmp_lt_i32_e64 {pr(sA+2*i)}, {o}, v{vLIM}")
    e(f"s_waitcnt vmcnt({8+(D-1)*14})")
    for s in range(3):
        for u, c in ((0, vC1), (1, vC2)):
            r = st*24 + u*12 + s*4
            src = "0" if s == 0 else f"v[{c}:{c+3}]"
            e(f"v_mfma_f32_16x16x32_bf16 v[{c}:{c+3}], a[{r}:{r+3}], v[{vQ+4*s}:{vQ+4*s+3}], {src}")
    k_loads(st)
    e("s_nop 2")
    for i, (c, r) in enumerate(((vC1, 0), (vC1, 2), (vC2, 0), (vC2, 2))):
        e(f"v_add_f32_dpp v{vS+i}, v{c+r+1}, v{c+r} row_ror:8 row_mask:0xf bank_mask:0xf")
    for i in range(4):
        e(f"v_cndmask_b32_e64 v{vS+i}, v{vNINF}, v{vS+i}, {pr(sA+2*i)}")
    e(f"v_max3_f32 v{vMX}, v{vS}, v{vS+1}, v{vS+2}")
    e(f"v_max_f32 v{vMX}, v{vMX}, v{vS+3}")
    e(f"v_cmp_gt_f32 vcc, v{vMX}, v{vM}")
    e(f"s_cbranch_vccnz A_slow{st}")
    lab(f"A_back{st}")
    for i in range(4):
        e(f"v_fma_f32 v{vX+i}, v{vS+i}, s{sC2}, -v{vMC}")
    for i in range(4):
        e(f"v_exp_f32 v{vX+i}, v{vX+i}")
    e(f"s_waitcnt vmcnt({6+(D-1)*14})")
    vb = vV + st*24
    def perm(t):
        if t < 8:
            q, hsel = t >> 1, t & 1
            regs = [vb + i*4 + q for i in range(4)]
        else:
            q, hsel = (t-8) >> 1, t & 1
            regs = [vb + 16 + i*2 + q for i in range(4)]
        sel = sSELHI if hsel else sSELLO
        e(f"v_perm_b32 v{vT+2*t}, v{regs[1]}, v{regs[0]}, s{sel}")
        e(f"v_perm_b32 v{vT+2*t+1}, v{regs[3]}, v{regs[2]}, s{sel}")
    e(f"v_cvt_pk_bf16_f32 v{vP}, v{vX}, v{vX+1}")
    e(f"v_cvt_pk_bf16_f32 v{vP+1}, v{vX+2}, v{vX+3}")
    for t in range(12): perm(t)
    v_loads(st)
    e(f"v_add_f32 v{vX}, v{vX}, v{vX+1}")
    e(f"v_add_f32 v{vX+2}, v{vX+2}, v{vX+3}")
    for t in range(12):
        e(f"v_mfma_f32_16x16x16_bf16 v[{vO+4*t}:{vO+4*t+3}], v[{vT+2*t}:{vT+2*t+1}], v[{vP}:{vP+1}], v[{vO+4*t}:{vO+4*t+3}]")
    e(f"v_add_f32 v{vL}, v{vL}, v{vX}")
    e(f"v_add_f32 v{vL}, v{vL}, v{vX+2}")
    e(f"s_add_u32 s{sI}, s{sI}, 1")
    e(f"s_cmp_ge_u32 s{sI}, s{sCNT}")
    if st < D-1:
        e("s_cbranch_scc1 A_done")
    else:
        e("s_cbranch_scc0 A_loop")
lab("A_done")
if cfg.MIDST: e(f"s_memrealtime {pr(sST+2)}")
prof(6)
xreduce("v_add_f32", vL)
e(f"s_mul_i32 s{sT0}, s{sWAVE}, 768")
e(f"v_lshl_add_u32 v{vX}, v{vG}, 4, s{sT0}")
e(f"s_lshl_b32 s{sT0}, s{sWAVE}, 3")
e(f"v_mov_b32 v{vX+1}, s{sT0}")
e(f"s_lshl_b32 s{sT0}, s{sWAVE}, 2")
e(f"v_mov_b32 v{vX+2}, s{sT0}")
e(f"v_mov_b32 v{vX+3}, 1")
e(f"s_mov_b64 exec, {pr(sBM)}")
for t in range(12):
    e(f"ds_write_b128 v{vX}, v[{vO+4*t}:{vO+4*t+3}] offset:{L_STB + 64*t}")
e(f"ds_write_b64 v{vX+1}, v[{vMC}:{vMC+1}] offset:{L_STBML}")
e("s_waitcnt lgkmcnt(0)")
e(f"ds_write_b32 v{vX+2}, v{vX+3} offset:{L_FB}")
e("s_mov_b64 exec, -1")
def dump_prof():
    if cfg.PROF:
        e(f"v_writelane_b32 v{vPROF}, s{sCNT}, 63")
        e(f"s_mul_i32 s{sT0}, s2, 5")
        e(f"s_add_u32 s{sT0}, s{sT0}, s{sWAVE}")
        e(f"s_lshl_b32 s{sT0}, s{sT0}, 8")
        e(f"s_add_u32 s{sT0}, s{sT0}, 0x2000000")
        e(f"v_lshl_add_u32 v{vX}, v{vLANE}, 2, s{sT0}")
        e(f"global_store_dword v{vX}, v{vPROF}, {pr(sWS)}")
def dump_stamps():
    e("s_waitcnt lgkmcnt(0)")
    e(f"s_add_u32 s{sWS}, s{sWS}, 0x20000000")
    e(f"s_addc_u32 s{sWS+1}, s{sWS+1}, 0")
    e(f"s_lshl_b32 s{sT0}, s2, 4")
    e(f"v_mov_b32 v{vX}, s{sT0}")
    for i in range(4): e(f"v_mov_b32 v{vS+i}, s{sST+i}")
    e("s_mov_b64 exec, 1")
    e(f"global_store_dwordx4 v{vX}, v[{vS}:{vS+3}], {pr(sWS)}")
prof(7)
dump_prof()
if cfg.STAMPS and cfg.MIDST:
    e(f"s_cmp_lg_u32 s{sWAVE}, 0")
    e("s_cbranch_scc1 A_end")
    dump_stamps()
lab("A_end")
e("s_endpgm")

for st in range(D):
    lab(f"A_slow{st}")
    xreduce("v_max_f32", vMX)
    e(f"v_max_f32 v{vM}, v{vM}, v{vMX}")
    e(f"v_mul_f32 v{vA}, s{sC2}, v{vM}")
    e(f"v_sub_f32 v{vB}, v{vMC}, v{vA}")
    e(f"v_exp_f32 v{vB}, v{vB}")
    e(f"v_mov_b32 v{vMC}, v{vA}")
    e(f"v_mul_f32 v{vL}, v{vL}, v{vB}")
    for i in range(24):
        e(f"v_pk_mul_f32 v[{vO+2*i}:{vO+2*i+1}], v[{vO+2*i}:{vO+2*i+1}], v[{vB}:{vB+1}] op_sel_hi:[1,0]")
    e(f"s_branch A_back{st}")
for st in range(D):
    lab(f"A_trans{st}")
    e(f"s_mov_b32 s{sT2}, {st}")
    if st < D-1: e("s_branch A_trans")
lab("A_trans")
prof(5)
e(f"s_mov_b32 s{sUN+1}, s{sUN}")
xreduce("v_add_f32", vL)
e(f"s_mov_b64 exec, {pr(sUN)}")
for t in range(12):
    e(f"ds_write_b128 v{vPO}, v[{vO+4*t}:{vO+4*t+3}] offset:{L_STG + 64*t}")
e("s_mov_b64 exec, -1")
e(f"v_and_b32 v{vL}, 0x7fffffff, v{vL}")
e(f"s_lshl_b32 s{sT0}, s{sWAVE}, 6")
e(f"v_lshl_add_u32 v{vX}, v{vLANE}, 3, s{sT0}")
e(f"s_lshl_b32 s{sT0}, s{sWAVE}, 2")
e(f"v_mov_b32 v{vX+1}, s{sT0}")
e(f"s_and_b32 s{sT0}, s{sUN}, 0xff")
e(f"s_or_b32 s{sT0}, s{sT0}, 0x100")
e(f"v_mov_b32 v{vX+2}, s{sT0}")
e("s_mov_b64 exec, 0xff")
e(f"ds_write_b64 v{vX}, v[{vMC}:{vMC+1}] offset:{L_STGML}")
e("s_waitcnt lgkmcnt(0)")
e(f"ds_write_b32 v{vX+1}, v{vX+2} offset:{L_FA}")
e("s_mov_b64 exec, -1")
reset_state()
for i in range(12):
    e(f"v_mov_b32 v{vQ+i}, v{vQB+i}")
for st in range(D-1):
    e(f"s_cmp_eq_u32 s{sT2}, {st}")
    e(f"s_cbranch_scc1 A_top{st}")
e(f"s_branch A_top{D-1}")
for st in range(D):
    lab(f"A_dyn{st}")
    e(f"s_cmp_ge_u32 s{sT0}, s{sCNTA}")
    e(f"s_cbranch_scc1 A_phb{st}")
    e(f"s_sub_u32 s{sT1}, s{sT0}, s{sDS}")
    e(f"s_lshl_b32 s{sT2}, s{sT1}, 2")
    e(f"v_mov_b32 v{vA}, s{sT2}")
    e(f"s_cmp_lg_u32 s{sWAVE}, 0")
    e(f"s_cbranch_scc1 A_oth{st}")
    e(f"s_cmp_lt_i32 s{sT1}, 0")
    e(f"s_cbranch_scc1 A_first{st}")
    e("s_waitcnt lgkmcnt(0)")
    e(f"s_add_u32 s{sTK}, s{sTK}, s{sP0}")
    e(f"s_lshl_b32 s{sT2}, s{sTK}, 2")
    e(f"s_min_u32 s{sT2}, s{sT2}, 8188")
    e(f"v_mov_b32 v{vB}, s{sT2}")
    e(f"ds_read_b32 v{vB}, v{vB}")
    e("s_waitcnt lgkmcnt(0)")
    e(f"v_readfirstlane_b32 s{sREC+st}, v{vB}")
    e("s_nop 1")
    e(f"s_cmp_lt_u32 s{sTK}, s{sN}")
    e(f"s_cselect_b32 s{sREC+st}, s{sREC+st}, {DONE}")
    e(f"v_mov_b32 v{vB}, s{sREC+st}")
    e(f"ds_write_b32 v{vA}, v{vB} offset:{L_SLOT}")
    e(f"s_cbranch_scc0 A_fini{st}")
    lab(f"A_iss{st}")
    e(f"s_mov_b32 s{sTK}, 1")
    e(f"s_atomic_add s{sTK}, {pr(sTKB)}, 0 glc")
    e(f"s_branch A_rec{st}")
    lab(f"A_first{st}")
    started_check(sT2)
    e(f"s_branch A_iss{st}")
    lab(f"A_oth{st}")
    e(f"s_cmp_lt_i32 s{sT1}, 0")
    e(f"s_cbranch_scc1 A_rec{st}")
    lab(f"A_poll{st}")
    e(f"ds_read_b32 v{vB}, v{vA} offset:{L_SLOT}")
    e("s_waitcnt lgkmcnt(0)")
    e(f"v_readfirstlane_b32 s{sREC+st}, v{vB}")
    e("s_nop 1")
    e(f"s_cmp_eq_u32 s{sREC+st}, {EMPTY}")
    e(f"s_cbranch_scc1 A_poll{st}")
    e(f"s_cmp_lg_u32 s{sREC+st}, {DONE}")
    e(f"s_cbranch_scc1 A_rec{st}")
    lab(f"A_fini{st}")
    e(f"s_mov_b32 s{sCNTA}, s{sT0}")
    e(f"s_add_u32 s{sCNT}, s{sT0}, {KB}")
    e(f"s_mov_b32 s{sHOFF}, s{sHOFFB}")
    lab(f"A_phb{st}")
    e(f"s_sub_u32 s{sT1}, s{sT0}, s{sCNTA}")
    e(f"v_readlane_b32 s{sREC+st}, v{vLB}, s{sT1}")
    e("s_nop 1")
    e(f"s_branch A_rec{st}")

SRDO = 20
hML, hL16, hFL, hP, hM, hW, hA, hB = 4, 5, 6, 8, 10, 11, 12, 13
hO0, hO1, hO2, hO3 = 14, 15, 16, 17
hPOLL, hACC, hLA = 18, 20, 19
hQ = 24
hD = 32
hsU, hsB, hsO, hsT, hsW = 32, 33, 34, 35, 40
lab("H_start")
if cfg.HPRIO: e(f"s_setprio {cfg.HPRIO}")
e(f"s_lshl_b32 s{sT0}, s{sHEAD}, 11")
e(f"s_lshl_b32 s{sT1}, s{sSEG}, 3")
e(f"s_add_u32 s{sT0}, s{sT0}, s{sT1}")
e(f"v_lshl_add_u32 v{hML}, v{vLANE}, 8, s{sT0}")
e(f"v_mov_b32 v{hA}, v{hML}")
e(f"v_mov_b32 v{hP}, -1")
e(f"v_mov_b32 v{hP+1}, -1")
e(f"v_writelane_b32 v{hA}, s{sJ16}, 32")
e(f"v_writelane_b32 v{hP}, 0, 32")
e(f"v_writelane_b32 v{hP+1}, 0, 32")
e(f"s_cmp_eq_u32 s{sSEG}, 0")
e(f"s_cselect_b32 s{sMK+1}, 1, 0")
e(f"s_mov_b32 s{sMK}, -1")
e(f"s_mov_b32 s{SRDO+2}, 98304")
e(f"s_mov_b32 s{SRDO+3}, 0x20000")
e("s_waitcnt lgkmcnt(0)")
e(f"s_mov_b32 s{SRDW}, s{sWS}")
e(f"s_and_b32 s{SRDW+1}, s{sWS+1}, 0xffff")
e(f"s_mov_b64 exec, {pr(sMK)}")
e(f"buffer_store_dwordx2 v[{hP}:{hP+1}], v{hA}, s[{SRDW}:{SRDW+3}], 0 offen sc1")
e("s_mov_b64 exec, -1")
e(f"s_mov_b32 s{SRDO}, s{sOUT}")
e(f"s_and_b32 s{SRDO+1}, s{sOUT+1}, 0xffff")
e(f"s_add_u32 s{sDBG}, s{sDBG}, s{sT2}")
e(f"s_addc_u32 s{sDBG+1}, s{sDBG+1}, 0")
e(f"v_lshlrev_b32 v{hL16}, 4, v{vLANE}")
e(f"v_mov_b32 v{hA}, 0x40000000")
e(f"v_cmp_gt_u32 vcc, 48, v{vLANE}")
e(f"v_lshrrev_b32 v{hB}, 2, v{vLANE}")
e(f"v_and_b32 v{hW}, 3, v{vLANE}")
e(f"v_cndmask_b32 v{hFL}, v{hA}, v{hL16}, vcc")
e(f"v_cndmask_b32_e64 v{hA}, v{hA}, 0, vcc")
e(f"v_lshl_add_u32 v{hO0}, v{hW}, 5, v{hB}")
e(f"v_lshl_add_u32 v{hO1}, v{hW}, 4, v{hB}")
e(f"v_add_u32 v{hO1}, 120, v{hO1}")
e(f"v_cmp_gt_u32 vcc, 8, v{hB}")
e(f"v_mov_b32 v{hO2}, 8")
e(f"v_mov_b32 v{hO3}, 16")
e(f"v_cndmask_b32 v{hO0}, v{hO1}, v{hO0}, vcc")
e(f"v_cndmask_b32 v{hO3}, v{hO2}, v{hO3}, vcc")
e(f"v_lshl_add_u32 v{hO0}, v{hO0}, 1, v{hA}")
e(f"v_add_u32 v{hO1}, v{hO0}, v{hO3}")
e(f"v_add_u32 v{hO2}, v{hO1}, v{hO3}")
e(f"v_add_u32 v{hO3}, v{hO2}, v{hO3}")
e(f"v_and_b32 v{hPOLL}, 31, v{vLANE}")
e(f"v_lshlrev_b32 v{hPOLL}, 3, v{hPOLL}")
e(f"v_min_u32 v{hL16}, 752, v{hL16}")
e(f"v_and_b32 v{hM}, 3, v{vLANE}")
e(f"v_lshlrev_b32 v{hM}, 2, v{hM}")
e("s_waitcnt vmcnt(0)")
e(f"s_mov_b32 s{sT2}, 1")
e(f"s_atomic_add s{sT2}, {pr(sDBG)}, 0")
e("s_barrier")
e("s_barrier")
e("s_barrier")
def lds_wait(name, off):
    e(f"s_mov_b32 s{sSPIN}, 0")
    lab(name)
    e(f"ds_read_b32 v{hB}, v{hM} offset:{off}")
    e(f"s_add_u32 s{sSPIN}, s{sSPIN}, 1")
    e("s_waitcnt lgkmcnt(0)")
    e(f"v_cmp_eq_u32 vcc, 0, v{hB}")
    e(f"s_cmp_ge_u32 s{sSPIN}, {1 << 26}")
    e(f"s_cbranch_scc1 {name}_ok")
    e(f"s_cbranch_vccz {name}_ok")
    e(f"s_sleep {cfg.HSLEEP}")
    e(f"s_branch {name}")
    lab(f"{name}_ok")
prof(1)
lds_wait("H_wa", L_FA)
prof(2)
e(f"v_readfirstlane_b32 s{hsU}, v{hB}")
e(f"ds_read_b64 v[{hP}:{hP+1}], v{hPOLL} offset:{L_STGML}")
e(f"s_lshl_b32 s{sT0}, s{sSEG}, 5")
e(f"s_add_u32 s{sT0}, s{sT0}, s{sHEAD}")
e(f"s_mul_i32 s{sT0}, s{sT0}, 6144")
e(f"s_add_u32 s{sT0}, s{sT0}, {O_OFF}")
e(f"s_and_b32 s{hsU}, s{hsU}, 0xff")
e("s_cbranch_scc0 H_pub")
lab("H_copy")
e(f"s_ff1_i32_b32 s{hsB}, s{hsU}")
e(f"s_bitset0_b32 s{hsU}, s{hsB}")
e(f"s_mul_i32 s{hsB}, s{hsB}, 768")
e(f"v_add_u32 v{hA}, s{hsB}, v{hL16}")
e(f"s_add_u32 s{hsO}, s{sT0}, s{hsB}")
for w in range(4):
    e(f"ds_read_b128 v[{hD+4*w}:{hD+4*w+3}], v{hA} offset:{L_STG + 6144*w}")
for w in range(4):
    e(f"s_waitcnt lgkmcnt({3-w})")
    e(f"buffer_store_dwordx4 v[{hD+4*w}:{hD+4*w+3}], v{hFL}, s[{SRDW}:{SRDW+3}], s{hsO} offen sc1")
    if w < 3: e(f"s_add_u32 s{hsO}, s{hsO}, 6144")
e(f"s_cmp_lg_u32 s{hsU}, 0")
e("s_cbranch_scc1 H_copy")
lab("H_pub")
prof(8)
e("s_waitcnt vmcnt(0) lgkmcnt(0)")
e("s_mov_b32 exec_hi, 0")
e(f"buffer_store_dwordx2 v[{hP}:{hP+1}], v{hML}, s[{SRDW}:{SRDW+3}], 0 offen sc1")
e("s_mov_b64 exec, -1")
prof(3)
started_check(sT2)
e(f"s_lshl_b32 s{sT1}, s2, 8")
e(f"s_mul_i32 s{hsO}, s2, 768")
e(f"s_add_u32 s{hsO}, s{hsO}, {O_OFF}")
e(f"v_mov_b32 v{hW}, 0x{NEG:08x}")
e(f"s_mov_b32 s{sSPIN}, 0")
lab("H_poll")
e(f"buffer_load_dwordx2 v[{hP}:{hP+1}], v{hPOLL}, s[{SRDW}:{SRDW+3}], s{sT1} offen sc1")
e(f"s_add_u32 s{sSPIN}, s{sSPIN}, 1")
e("s_waitcnt vmcnt(0)")
e(f"v_cmp_gt_i32 vcc, 0, v{hP+1}")
e(f"s_cmp_ge_u32 s{sSPIN}, {SPIN_MAX}")
e("s_cbranch_scc1 H_go")
e("s_cbranch_vccnz H_poll")
lab("H_go")
prof(4)
e(f"v_cmp_lt_f32 vcc, 0, v{hP+1}")
e("s_nop 1")
e(f"s_mov_b32 s{hsU}, vcc_lo")
e(f"v_cndmask_b32 v{hP}, v{hW}, v{hP}, vcc")
for s in range(32):
    e(f"s_bitcmp1_b32 s{hsU}, {s}")
    e(f"s_cselect_b32 s{hsT}, s{hsO}, 0x{OOB:x}")
    e(f"buffer_load_dwordx4 v[{hD+4*s}:{hD+4*s+3}], v{hFL}, s[{SRDW}:{SRDW+3}], s{hsT} offen sc1")
    if s < 31: e(f"s_add_u32 s{hsO}, s{hsO}, 196608")
hMA = 7
e(f"v_mov_b32 v{hMA}, v{hP}")
for sh in (8, 4, 2, 1):
    e("s_nop 1")
    e(f"v_max_f32_dpp v{hMA}, v{hMA}, v{hMA} row_ror:{sh} row_mask:0xf bank_mask:0xf")
xreduce("v_max_f32", hMA, hA, hB, ("v_permlane16_swap_b32",))
e(f"v_sub_f32 v{hW}, v{hP}, v{hMA}")
e(f"v_exp_f32 v{hW}, v{hW}")
e("s_nop 0")
e(f"v_mul_f32 v{hLA}, v{hW}, v{hP+1}")
for sh in (8, 4, 2, 1):
    e("s_nop 1")
    e(f"v_add_f32_dpp v{hLA}, v{hLA}, v{hLA} row_ror:{sh} row_mask:0xf bank_mask:0xf")
xreduce("v_add_f32", hLA, hA, hB, ("v_permlane16_swap_b32",))
for i in range(4): e(f"v_mov_b32 v{hACC+i}, 0")
for s in range(32):
    e(f"v_readlane_b32 s{hsW+s}, v{hW}, {s}")
for s in range(32):
    e(f"s_waitcnt vmcnt({31-s})")
    for i in range(4):
        e(f"v_fmac_f32 v{hACC+i}, s{hsW+s}, v{hD+4*s+i}")
e(f"s_and_b32 s{sT0}, s2, 7")
e(f"s_lshl_b32 s{sT0}, s{sT0}, 5")
e(f"s_lshr_b32 s{sT1}, s2, 3")
e(f"s_add_u32 s{sT0}, s{sT0}, s{sT1}")
e(f"s_mul_i32 s{sT0}, s{sT0}, 384")
e(f"v_mov_b32 v{hPOLL}, 0")
prof(5)
cfg_sleep = cfg.HSLEEP
cfg.HSLEEP = 0
lds_wait("H_wb", L_FB)
cfg.HSLEEP = cfg_sleep
prof(6)
e(f"ds_read_b128 v[{hQ}:{hQ+3}], v{hPOLL} offset:{L_STBML}")
e(f"ds_read_b128 v[{hQ+4}:{hQ+7}], v{hPOLL} offset:{L_STBML+16}")
for w in range(4):
    e(f"ds_read_b128 v[{hD+4*w}:{hD+4*w+3}], v{hL16} offset:{L_STB + 768*w}")
e("s_waitcnt lgkmcnt(4)")
e(f"v_max3_f32 v{hW}, v{hQ}, v{hQ+2}, v{hMA}")
e(f"v_max3_f32 v{hW}, v{hQ+4}, v{hQ+6}, v{hW}")
e(f"v_sub_f32 v{hMA}, v{hMA}, v{hW}")
for w in range(4):
    e(f"v_sub_f32 v{hQ+2*w}, v{hQ+2*w}, v{hW}")
e(f"v_exp_f32 v{hMA}, v{hMA}")
for w in range(4):
    e(f"v_exp_f32 v{hQ+2*w}, v{hQ+2*w}")
e(f"v_mul_f32 v{hLA}, v{hLA}, v{hMA}")
for w in range(4):
    e(f"v_fmac_f32 v{hLA}, v{hQ+2*w}, v{hQ+2*w+1}")
for i in range(4):
    e(f"v_mul_f32 v{hACC+i}, v{hACC+i}, v{hMA}")
e(f"v_rcp_f32 v{hLA}, v{hLA}")
e("s_waitcnt lgkmcnt(0)")
for w in range(4):
    for i in range(4):
        e(f"v_fmac_f32 v{hACC+i}, v{hQ+2*w}, v{hD+4*w+i}")
for i in range(4):
    e(f"v_mul_f32 v{hACC+i}, v{hACC+i}, v{hLA}")
e(f"v_cvt_pk_bf16_f32 v{hA}, v{hACC}, v{hACC+1}")
e(f"v_cvt_pk_bf16_f32 v{hB}, v{hACC+2}, v{hACC+3}")
e(f"buffer_store_short v{hA}, v{hO0}, s[{SRDO}:{SRDO+3}], s{sT0} offen")
e(f"buffer_store_short_d16_hi v{hA}, v{hO1}, s[{SRDO}:{SRDO+3}], s{sT0} offen")
e(f"buffer_store_short v{hB}, v{hO2}, s[{SRDO}:{SRDO+3}], s{sT0} offen")
e(f"buffer_store_short_d16_hi v{hB}, v{hO3}, s[{SRDO}:{SRDO+3}], s{sT0} offen")
prof(7)
dump_prof()
if cfg.STAMPS and not cfg.MIDST:
    e("s_waitcnt vmcnt(0)")
    e(f"s_memrealtime {pr(sST+2)}")
    dump_stamps()
e("s_endpgm")

raw('.section .rodata,"a"')
raw(f""".p2align 6
.amdhsa_kernel {NAME}_kernel
  .amdhsa_next_free_vgpr {NFV}
  .amdhsa_next_free_sgpr 102
  .amdhsa_accum_offset {ACC}
  .amdhsa_group_segment_fixed_size 0
  .amdhsa_kernarg_size 64
  .amdhsa_user_sgpr_count 2
  .amdhsa_user_sgpr_kernarg_segment_ptr 1
  .amdhsa_system_sgpr_workgroup_id_x 1
.end_amdhsa_kernel""")
open(sys.argv[1], 'w').write("\n".join(out) + "\n")
print("LDS", LDS_BYTES, "NV", NV, "NFV", NFV)
```

```python
import sys, struct, math
NAME = "standalone__paged_block_table_kv_radixattention__sampling"
KV_BYTES = 1152*196608
def f2u(x): return struct.unpack('<I', struct.pack('<f', x))[0]
C2 = (192 ** -0.5) * math.log2(math.e)
NEG = f2u(-3e38)

class Cfg:
    KP = 2
    KB = 2
    STRIDE = 1
    STAMPS = False
    MIDST = False
    PROF = False
    F = 28
    HSLEEP = 4
    PSLEEP = 0
    HPRIO = 3
    NOUT = 7
    NOUTB = 7
    NOUT0 = 0
    KSPLIT = 2
    NOHELP = 0
    CODEPF = 1
    PPRIO = 3
    EARLY = 1
    PUBK = 8
cfg = Cfg()
for a in sys.argv[2:]:
    k, v = a.split('=')
    assert hasattr(cfg, k), k
    setattr(cfg, k, eval(v))
KP, KB = cfg.KP, cfg.KB
NB = 4*KB
O_OFF = 65536
TK_OFF = O_OFF + 32*32*8*768
WS_USED = TK_OFF + 8*4096
SPIN_MAX = 1 << 17
OOB = 0xF0000000
EMPTY, DONE = -1, -2
L_CNT = 8192
L_N = 8320
L_FA = 8336
L_FB = 8352
L_OK = 8368
L_SLOT = 9216
L_STB = 12288
L_STBML = L_STB + 4*768
LDS_BYTES = L_STBML + 64

out = []
def e(s): out.append("    " + s)
def lab(s): out.append(s + ":")
def raw(s): out.append(s)
def pr(a): return f"s[{a}:{a+1}]"

hdr = open('cdna_kernels/%s.s.ref' % NAME).read().split('\n')
for l in hdr:
    if l.startswith('; Override') or l.startswith('; grid=') or l.startswith('; @launch'): continue
    if not l.startswith(';'): break
    raw(l)
raw(f"; @launch grid=(256,1,1) block=(512,1,1) lds={LDS_BYTES}")
raw('.amdgcn_target "amdgcn-amd-amdhsa--gfx950"')
raw('.text')
raw(f".globl {NAME}_kernel\n.p2align 8\n.type {NAME}_kernel,@function")
lab(f"{NAME}_kernel")

sQ, sK, sV, sBT, sCTX, sOUT, sDBG, sWS = 4, 6, 8, 10, 12, 14, 16, 18
SRDK, SRDV, SRDW = 20, 24, 28
sWAVE, sHOFF, sSEG, sN, sDS, sCNT, sI, sT0, sT1, sT2, sHEAD, sTK = 86, 87, 88, 89, 90, 91, 92, 93, 94, 95, 96, 97
sST = 98
sP0 = 3
sTKB = 6
sSPIN = 8
sREC, sLF, sCB, sB1 = 32, 33, 34, 35
sJ1, sP1 = 36, 40
sJB, sRB = 44, 72
sMK = 48
sA = 50
sJ16 = 58
sTKO = 59
sO = 60
sC2, sSELLO, sSELHI, sPM = 64, 65, 66, 67
sUN = 68
sPO, sHOFFB = 70, 71
sBM = 76
sC = 32
sVAL = 40
sNL = 56
sEQ = 72
vLANE, vC, vG = 1, 2, 3
vOK, vOV4, vOV2, vCTXM, vLIST, vM, vMC, vL, vNINF, vLIM, vMX, vA, vB, vPO = 4, 5, 6, 7, 8, 9, 10, 11, 12, 13, 14, 15, 42, 43
vQ = 16
vC1, vC2 = 28, 32
vS = 36
vP = 40
vX = 44
vO = 48
vT = 96
vQB = 120
vMA, vPM, vSB = 132, 134, 135
vV = 136
NV = 160 + (1 if cfg.PROF else 0)
vPROF = NV-1
ACC = (NV + 3)//4*4
NFV = ACC + 24

def prof(n):
    if not cfg.PROF: return
    e('s_memtime s[100:101]')
    e('s_waitcnt lgkmcnt(0)')
    e(f'v_writelane_b32 v{vPROF}, s100, {n}')
def thr(n):
    if n: e(f"s_waitcnt vmcnt({n-1})")
def k_loads(lo=0, hi=6, t=0):
    for k in range(lo, hi):
        u, s = k // 3, k % 3
        r = u*12 + s*4
        thr(t)
        e(f"buffer_load_dwordx4 a[{r}:{r+3}], v{vOK}, s[{SRDK}:{SRDK+3}], s{sO+2*u} offen offset:{128*s} nt")
def v_load1(k, t=0):
    i = k // 2
    thr(t)
    if k % 2 == 0:
        r = vV + i*4
        e(f"buffer_load_dwordx4 v[{r}:{r+3}], v{vOV4}, s[{SRDV}:{SRDV+3}], s{sO+i} offen nt")
    else:
        r = vV + 16 + i*2
        e(f"buffer_load_dwordx2 v[{r}:{r+1}], v{vOV2}, s[{SRDV}:{SRDV+3}], s{sO+i} offen offset:256 nt")
def soffs():
    e(f"s_add_u32 s{sO+1}, s{sO}, 12288")
    e(f"s_add_u32 s{sO+2}, s{sO}, {8*12288}")
    e(f"s_add_u32 s{sO+3}, s{sO}, {9*12288}")
def xreduce(op, reg, a=None, b=None, sw_list=("v_permlane32_swap_b32", "v_permlane16_swap_b32"), dst=None):
    a = vA if a is None else a
    b = vB if b is None else b
    for k, sw in enumerate(sw_list):
        e(f"v_mov_b32 v{a}, v{reg}")
        e(f"v_mov_b32 v{b}, v{reg}")
        e("s_nop 1")
        e(f"{sw} v{a}, v{b}")
        e("s_nop 1")
        if dst is not None: reg = dst
        e(f"{op} v{reg}, v{a}, v{b}")
def nblocks(r):
    e(f"s_cmp_lt_i32 s{r}, 1")
    e(f"s_cselect_b32 s{r}, 0x1000, s{r}")
    e(f"s_min_i32 s{r}, s{r}, 0x1000")
    e(f"s_add_u32 s{r}, s{r}, 15")
    e(f"s_lshr_b32 s{r}, s{r}, 4")
chk_n = [0]
def started_check(tmp):
    n = chk_n[0]; chk_n[0] += 1
    e(f"v_mov_b32 v{vB}, 0")
    lab(f"A_chk{n}")
    e(f"ds_read_b32 v{vLIM}, v{vB} offset:{L_OK}")
    e("s_waitcnt lgkmcnt(0)")
    e(f"v_cmp_eq_u32 vcc, 0, v{vLIM}")
    e(f"s_cbranch_vccnz A_chk{n}")
def started_check_helper(tmp, z, o):
    e(f"s_mov_b32 s{sSPIN}, 0")
    lab("H_chk")
    e(f"s_mov_b32 s{tmp}, 0")
    e(f"s_atomic_add s{tmp}, {pr(sDBG)}, 0 glc")
    e(f"s_add_u32 s{sSPIN}, s{sSPIN}, 1")
    e("s_waitcnt lgkmcnt(0)")
    e(f"s_cmp_ge_u32 s{tmp}, 32")
    e(f"s_cbranch_scc1 H_chkok")
    e(f"s_cmp_ge_u32 s{sSPIN}, {SPIN_MAX >> 1}")
    e(f"s_cbranch_scc1 H_chkok")
    e("s_sleep 32")
    e(f"s_branch H_chk")
    lab("H_chkok")
    e(f"v_mov_b32 v{o}, 1")
    e(f"ds_write_b32 v{z}, v{o} offset:{L_OK}")
def dump_prof():
    if cfg.PROF:
        e("s_mov_b64 exec, -1")
        e(f"s_mul_i32 s{sT0}, s2, 5")
        e(f"s_add_u32 s{sT0}, s{sT0}, s{sWAVE}")
        e(f"s_lshl_b32 s{sT0}, s{sT0}, 8")
        e(f"s_add_u32 s{sT0}, s{sT0}, 0x2000000")
        e(f"v_lshl_add_u32 v{vX}, v{vLANE}, 2, s{sT0}")
        e(f"global_store_dword v{vX}, v{vPROF}, {pr(sWS)}")
def dump_stamps():
    e("s_mov_b64 exec, -1")
    e("s_waitcnt lgkmcnt(0)")
    e(f"s_add_u32 s{sWS}, s{sWS}, 0x20000000")
    e(f"s_addc_u32 s{sWS+1}, s{sWS+1}, 0")
    e(f"s_lshl_b32 s{sT0}, s2, 4")
    e(f"v_mov_b32 v{vX}, s{sT0}")
    for i in range(4): e(f"v_mov_b32 v{vS+i}, s{sST+i}")
    e("s_mov_b64 exec, 1")
    e(f"global_store_dwordx4 v{vX}, v[{vS}:{vS+3}], {pr(sWS)}")

e("s_cmp_ge_u32 s2, 256")
e("s_cbranch_scc1 A_end")
if cfg.STAMPS: e(f"s_memrealtime {pr(sST)}")
prof(0)
e(f"v_lshrrev_b32 v{vA}, 6, v0")
e(f"v_and_b32 v{vLANE}, 63, v0")
e(f"v_readfirstlane_b32 s{sWAVE}, v{vA}")
e(f"s_lshr_b32 s{sHEAD}, s2, 5")
e(f"s_and_b32 s{sSEG}, s2, 31")
e(f"s_cmp_ge_u32 s{sWAVE}, 4")
e("s_cbranch_scc1 P_start")
e("s_load_dwordx16 s[4:19], s[0:1], 0")
e(f"v_and_b32 v{vC}, 15, v0")
e(f"v_lshrrev_b32 v{vG}, 4, v{vLANE}")
e(f"s_lshl_b32 s{sT2}, s{sHEAD}, 5")
e(f"s_lshl_b32 s{sTKO}, s{sHEAD}, 12")
e(f"s_add_u32 s{sTKO}, s{sTKO}, {TK_OFF}")
e(f"s_lshl_b32 s{sHEAD}, s{sHEAD}, 2")
e(f"s_add_u32 s{sHEAD}, s{sHEAD}, s{sWAVE}")
e(f"s_mul_i32 s{sHOFF}, s{sHEAD}, 384")
e(f"s_and_b32 s{sB1}, s{sSEG}, 28")
e(f"s_and_b32 s{sCB}, s2, 7")
e(f"s_lshl_b32 s{sCB}, s{sCB}, 2")
e(f"s_lshr_b32 s{sHOFFB}, s2, 3")
e(f"s_mul_i32 s{sHOFFB}, s{sHOFFB}, 384")
e(f"v_lshrrev_b32 v{vOK}, 1, v{vC}")
e(f"v_mul_u32_u24 v{vOK}, 12288, v{vOK}")
e(f"v_lshl_add_u32 v{vOK}, v{vG}, 5, v{vOK}")
e(f"v_and_b32 v{vA}, 1, v{vC}")
e(f"v_lshl_add_u32 v{vOK}, v{vA}, 4, v{vOK}")
e(f"v_mul_u32_u24 v{vA}, 24576, v{vG}")
e(f"v_lshl_add_u32 v{vOV4}, v{vC}, 4, v{vA}")
e(f"v_lshl_add_u32 v{vOV2}, v{vC}, 3, v{vA}")
e(f"v_and_b32 v{vX}, 7, v{vC}")
e(f"v_mul_u32_u24 v{vX+1}, 12288, v{vX}")
e(f"v_lshl_add_u32 v{vX+1}, v{vG}, 5, v{vX+1}")
e(f"v_lshrrev_b32 v{vX+3}, 3, v{vC}")
e(f"v_lshl_add_u32 v{vX+1}, v{vX+3}, 4, v{vX+1}")
e(f"v_add_u32 v{vX+2}, s{sHOFFB}, v{vX+1}")
e(f"v_add_u32 v{vX+1}, s{sHOFF}, v{vX+1}")
e(f"v_mul_u32_u24 v{vPO}, 768, v{vX}")
e(f"v_lshl_add_u32 v{vPO}, v{vX+3}, 6, v{vPO}")
e(f"v_lshl_add_u32 v{vPO}, v{vG}, 4, v{vPO}")
e(f"v_lshlrev_b32 v{vX}, 2, v{vX}")
for srd, size in ((SRDK, KV_BYTES), (SRDV, KV_BYTES), (SRDW, WS_USED)):
    e(f"s_mov_b32 s{srd+2}, {size}")
    e(f"s_mov_b32 s{srd+3}, 0x20000")
e("s_barrier")
e("s_waitcnt lgkmcnt(0)")
prof(1)
e(f"s_load_dword s{sT1}, {pr(sCTX)}, s{sB1}")
e(f"s_load_dword s{sP0}, {pr(sCTX)}, s{sCB}")
e(f"global_load_dword v{vCTXM}, v{vX}, {pr(sCTX)}")
for s in range(3):
    e(f"global_load_dwordx4 v[{vQ+4*s}:{vQ+4*s+3}], v{vX+1}, {pr(sQ)} offset:{128*s}")
for s in range(3):
    e(f"global_load_dwordx4 v[{vQB+4*s}:{vQB+4*s+3}], v{vX+2}, {pr(sQ)} offset:{128*s}")
for srd, base in ((SRDK, sK), (SRDV, sV), (SRDW, sWS)):
    e(f"s_mov_b32 s{srd}, s{base}")
    e(f"s_and_b32 s{srd+1}, s{base+1}, 0xffff")
e(f"s_add_u32 s{sDBG}, s{sDBG}, s{sT2}")
e(f"s_addc_u32 s{sDBG+1}, s{sDBG+1}, 0")
e(f"s_add_u32 s{sTKB}, s{sWS}, s{sTKO}")
e(f"s_addc_u32 s{sTKB+1}, s{sWS+1}, 0")
e(f"s_lshl_b32 s{sT0}, s{sB1}, 8")
e(f"s_and_b32 s{sT2}, s{sSEG}, 3")
e(f"s_mov_b32 s{sC2}, 0x{f2u(C2):08x}")
e(f"s_mov_b32 s{sSELLO}, 0x05040100")
e(f"s_mov_b32 s{sSELHI}, 0x07060302")
e(f"v_mov_b32 v{vM}, 0x{NEG:08x}")
e(f"v_mul_f32 v{vMC}, s{sC2}, v{vM}")
e(f"v_mov_b32 v{vL}, 0")
e(f"v_mov_b32 v{vNINF}, 0xff800000")
e(f"v_mov_b32 v{vLIST}, 0")
e("s_waitcnt lgkmcnt(0)")
prof(2)
nblocks(sT1)
e(f"s_sub_u32 s{sT1}, s{sT1}, s{sT2}")
for k in range(KP):
    e(f"s_sub_u32 s{sJ1+k}, s{sT1}, {NB+1+4*k}")
    e(f"s_max_i32 s{sT2}, s{sJ1+k}, 0")
    e(f"s_lshl_b32 s{sT2}, s{sT2}, 2")
    e(f"s_add_u32 s{sT2}, s{sT2}, s{sT0}")
    e(f"s_load_dword s{sP1+k}, {pr(sBT)}, s{sT2}")
for i in range(24):
    e(f"v_mov_b32 v{vO+i}, 0")
e("s_waitcnt lgkmcnt(0)")
prof(3)
e(f"s_and_b32 s{sT1}, s{sP1}, 0xffff")
e(f"s_mul_i32 s{sT1}, s{sT1}, 196608")
e(f"s_add_u32 s{sT1}, s{sT1}, s{sHOFF}")
e(f"s_cmp_ge_i32 s{sJ1}, 0")
e(f"s_cselect_b32 s{sO}, s{sT1}, 0x{OOB:x}")
soffs()
k_loads()
for k in range(8): v_load1(k, cfg.NOUT0)
prof(4)
nblocks(sP0)
e(f"s_sub_u32 s{sP0}, s{sP0}, s{sWAVE}")
e(f"s_lshl_b32 s{sT0}, s{sCB}, 8")
for k in range(KB):
    e(f"s_sub_u32 s{sJB+k}, s{sP0}, {1+4*k}")
    e(f"s_max_i32 s{sT2}, s{sJB+k}, 0")
    e(f"s_lshl_b32 s{sT2}, s{sT2}, 2")
    e(f"s_add_u32 s{sT2}, s{sT2}, s{sT0}")
    e(f"s_load_dword s{sRB+k}, {pr(sBT)}, s{sT2}")
def mkrec(dst, phys, j, bit):
    e(f"s_and_b32 s{sT1}, s{phys}, 0xffff")
    e(f"s_lshl_b32 s{sT2}, s{j}, 16")
    e(f"s_or_b32 s{sT1}, s{sT1}, s{sT2}")
    e(f"s_or_b32 s{sT1}, s{sT1}, s{bit}")
    e(f"s_cmp_ge_i32 s{j}, 0")
    e(f"s_cselect_b32 s{dst}, s{sT1}, 0")
e(f"s_lshr_b32 s{sT0}, s{sB1}, 2")
e(f"s_lshl_b32 s{sT0}, 0x1000000, s{sT0}")
for k in range(KP):
    mkrec(sREC if k == 0 else sP1+k, sP1+k, sJ1+k, sT0)
    if k: e(f"v_writelane_b32 v{vLIST}, s{sP1+k}, {k}")
for i in range(24, 48):
    e(f"v_mov_b32 v{vO+i}, 0")
e(f"s_lshr_b32 s{sCB}, s{sCB}, 2")
e(f"s_lshl_b32 s{sBM}, 0x10001, s{sCB}")
e(f"s_mov_b32 s{sBM+1}, s{sBM}")
e(f"s_lshl_b32 s{sPO}, s{sSEG}, 5")
e(f"s_add_u32 s{sPO}, s{sPO}, s{sHEAD}")
e(f"s_mul_i32 s{sPO}, s{sPO}, {8*768}")
e(f"s_add_u32 s{sPO}, s{sPO}, {O_OFF}")
e(f"s_lshl_b32 s{sPM}, s{sHEAD}, 11")
e(f"s_lshl_b32 s{sT1}, s{sSEG}, 3")
e(f"s_add_u32 s{sPM}, s{sPM}, s{sT1}")
e(f"v_lshlrev_b32 v{vPM}, 8, v{vLANE}")
e(f"v_cmp_gt_u32 vcc, 8, v{vLANE}")
e(f"v_mov_b32 v{vA}, 0x40000000")
e(f"s_mul_i32 s{sT1}, s{sWAVE}, 768")
e(f"v_cndmask_b32 v{vPM}, v{vA}, v{vPM}, vcc")
e(f"v_lshl_add_u32 v{vSB}, v{vG}, 4, s{sT1}")
e(f"s_lshl_b32 s{sT0}, 0x1000000, s{sCB}")
e("s_waitcnt lgkmcnt(0)")
for k in range(KB):
    mkrec(sRB+k, sRB+k, sJB+k, sT0)
e(f"s_waitcnt vmcnt(14)")
e(f"v_cmp_gt_i32 vcc, 1, v{vCTXM}")
e(f"v_mov_b32 v{vA}, 0x1000")
e(f"v_lshlrev_b32 v{vB}, 1, v{vG}")
e(f"v_cndmask_b32 v{vCTXM}, v{vCTXM}, v{vA}, vcc")
for i in range(12):
    e(f"v_cndmask_b32_e64 v{vQ+i}, v{vQ+i}, 0, vcc")
    e(f"v_cndmask_b32_e64 v{vQB+i}, v{vQB+i}, 0, vcc")
e(f"v_sub_u32 v{vCTXM}, v{vCTXM}, v{vB}")
e(f"s_mov_b32 s{sI}, 0")
e(f"s_mov_b32 s{sUN}, 0")
e(f"s_mov_b32 s{sLF}, 0")
e(f"s_mov_b32 s{sCNT}, 0x7fffffff")
e(f"s_mov_b32 s{sDS}, {KP+1}")

slow_sites = []
def pack_store():
    e(f"s_lshl_b32 s{sT0}, s{sUN}, 8")
    e(f"s_or_b32 s{sUN}, s{sUN}, s{sT0}")
    e(f"s_mov_b32 s{sUN+1}, s{sUN}")
    e(f"v_mov_b32 v{vA}, 0x40000000")
    e(f"v_cndmask_b32_e64 v{vPO}, v{vA}, v{vPO}, {pr(sUN)}")
    for i in range(6):
        for r in range(4):
            e(f"v_mov_b32_dpp v{vO+8*i+r}, v{vO+8*i+4+r} row_ror:8 row_mask:0xf bank_mask:0xc")
        e(f"buffer_store_dwordx4 v[{vO+8*i}:{vO+8*i+3}], v{vPO}, s[{SRDW}:{SRDW+3}], s{sPO} offen offset:{128*i} sc1")
def save_state():
    xreduce("v_add_f32", vL, dst=vMA+1)
    e(f"v_and_b32 v{vMA+1}, 0x7fffffff, v{vMA+1}")
    e(f"v_mov_b32 v{vMA}, v{vMC}")
    e(f"v_mov_b32 v{vM}, 0x{NEG:08x}")
    e(f"v_mul_f32 v{vMC}, s{sC2}, v{vM}")
    e(f"v_mov_b32 v{vL}, 0")
def body(tag, q, nxt, N, first_b=False, last=False):
    e(f"s_bfe_u32 s{sJ16}, s{sREC}, 0x80010")
    e(f"s_lshl_b32 s{sJ16}, s{sJ16}, 4")
    e(f"s_lshr_b32 s{sMK}, s{sREC}, 24")
    e(f"s_mul_i32 s{sMK}, s{sMK}, 0x10001")
    e(f"s_mov_b32 s{sMK+1}, s{sMK}")
    ex = 0
    early_b = first_b and cfg.EARLY
    if early_b: first_b = False
    if first_b:
        pack_store()
        ex = 6
    if early_b and cfg.PUBK >= 8:
        e("s_waitcnt vmcnt(6)")
        e(f"buffer_store_dwordx2 v[{vMA}:{vMA+1}], v{vPM}, s[{SRDW}:{SRDW+3}], s{sPM} offen sc1")
        ex = 1
    if nxt == 'A':
        e(f"s_or_b32 s{sUN}, s{sUN}, s{sMK}")
        e(f"s_add_u32 s{sT0}, s{sI}, 1")
        e(f"v_readlane_b32 s{sREC}, v{vLIST}, s{sT0}")
        e(f"s_add_u32 s{sT1}, s{sT0}, 1")
        e(f"s_cmp_ge_u32 s{sT1}, s{sDS}")
        e(f"s_cbranch_scc1 A_dyn")
        lab("A_rec")
    elif nxt is not None:
        e(f"s_mov_b32 s{sREC}, s{nxt}")
    if nxt is not None:
        e(f"s_and_b32 s{sT1}, s{sREC}, 0xffff")
        e(f"s_mul_i32 s{sT1}, s{sT1}, 196608")
        e(f"s_add_u32 s{sT1}, s{sT1}, s{sHOFF}")
        e(f"s_cmp_lg_u32 s{sREC}, 0")
        e(f"s_cselect_b32 s{sO}, s{sT1}, 0x{OOB:x}")
        soffs()
    e(f"v_subrev_u32 v{vLIM}, s{sJ16}, v{vCTXM}")
    e(f"v_cndmask_b32_e64 v{vLIM}, 0, v{vLIM}, {pr(sMK)}")
    for i, o in enumerate((0, 1, 8, 9)):
        e(f"v_cmp_lt_i32_e64 {pr(sA+2*i)}, {o}, v{vLIM}")
    e(f"s_waitcnt vmcnt({8+ex})")
    for s in range(3):
        for u, c in ((0, vC1), (1, vC2)):
            r = u*12 + s*4
            src = "0" if s == 0 else f"v[{c}:{c+3}]"
            e(f"v_mfma_f32_16x16x32_bf16 v[{c}:{c+3}], a[{r}:{r+3}], v[{q+4*s}:{q+4*s+3}], {src}")
    if nxt is not None:
        k_loads(0, cfg.KSPLIT, N+ex if N else 0)
    if first_b:
        save_state()
    else:
        e(f"s_nop {8-(cfg.KSPLIT if nxt is not None else 0)}")
    for i, (c, r) in enumerate(((vC1, 0), (vC1, 2), (vC2, 0), (vC2, 2))):
        e(f"v_add_f32_dpp v{vS+i}, v{c+r+1}, v{c+r} row_ror:8 row_mask:0xf bank_mask:0xf")
    for i in range(4):
        e(f"v_cndmask_b32_e64 v{vS+i}, v{vNINF}, v{vS+i}, {pr(sA+2*i)}")
    e(f"v_max3_f32 v{vMX}, v{vS}, v{vS+1}, v{vS+2}")
    e(f"v_max_f32 v{vMX}, v{vMX}, v{vS+3}")
    e(f"v_cmp_gt_f32 vcc, v{vMX}, v{vM}")
    e(f"s_cbranch_vccnz A_slow{tag}")
    lab(f"A_back{tag}")
    slow_sites.append(tag)
    for i in range(4):
        e(f"v_fma_f32 v{vX+i}, v{vS+i}, s{sC2}, -v{vMC}")
    for i in range(4):
        e(f"v_exp_f32 v{vX+i}, v{vX+i}")
    if first_b:
        for i in range(48):
            if nxt is not None and i % 12 == 0 and cfg.KSPLIT + i//12 < 6:
                k_loads(cfg.KSPLIT + i//12, cfg.KSPLIT + i//12 + 1, N+ex if N else 0)
            e(f"v_mov_b32 v{vO+i}, 0")
        if nxt is not None: k_loads(cfg.KSPLIT + 4, 6, N+ex if N else 0)
    elif nxt is not None:
        k_loads(cfg.KSPLIT, 6, N+ex if N else 0)
    else:
        e("s_nop 0")
    e(f"v_cvt_pk_bf16_f32 v{vP}, v{vX}, v{vX+1}")
    e(f"v_cvt_pk_bf16_f32 v{vP+1}, v{vX+2}, v{vX+3}")
    e(f"v_add_f32 v{vX}, v{vX}, v{vX+1}")
    e(f"v_add_f32 v{vX+2}, v{vX+2}, v{vX+3}")
    e(f"v_add_f32 v{vL}, v{vL}, v{vX}")
    e(f"v_add_f32 v{vL}, v{vL}, v{vX+2}")
    if last:
        xreduce("v_add_f32", vL)
        e(f"s_lshl_b32 s{sT0}, s{sWAVE}, 3")
        e(f"v_mov_b32 v{vX+1}, s{sT0}")
        e(f"s_lshl_b32 s{sT0}, s{sWAVE}, 2")
        e(f"v_mov_b32 v{vX+2}, s{sT0}")
        e(f"v_mov_b32 v{vX+3}, 1")
        e(f"s_mov_b64 exec, {pr(sBM)}")
        e(f"ds_write_b64 v{vX+1}, v[{vMC}:{vMC+1}] offset:{L_STBML}")
        e("s_mov_b64 exec, -1")
    nk = 6 if nxt is not None else 0
    e(f"s_waitcnt vmcnt({nk+ex})")
    def perm(t):
        if t < 8:
            q_, hsel = t >> 1, t & 1
            regs = [vV + i*4 + q_ for i in range(4)]
        else:
            q_, hsel = (t-8) >> 1, t & 1
            regs = [vV + 16 + i*2 + q_ for i in range(4)]
        sel = sSELHI if hsel else sSELLO
        e(f"v_perm_b32 v{vT+2*t}, v{regs[1]}, v{regs[0]}, s{sel}")
        e(f"v_perm_b32 v{vT+2*t+1}, v{regs[3]}, v{regs[2]}, s{sel}")
    def pv(t):
        e(f"v_mfma_f32_16x16x16_bf16 v[{vO+4*t}:{vO+4*t+3}], v[{vT+2*t}:{vT+2*t+1}], v[{vP}:{vP+1}], v[{vO+4*t}:{vO+4*t+3}]")
    def publish_ml():
        e(f"s_waitcnt vmcnt({nk})")
        e(f"buffer_store_dwordx2 v[{vMA}:{vMA+1}], v{vPM}, s[{SRDW}:{SRDW+3}], s{sPM} offen sc1")
    if nxt is None:
        if first_b: publish_ml()
        perm(0); perm(1)
        for t in range(12):
            if t+2 < 12: perm(t+2)
            pv(t)
    else:
        for t in range(12): perm(t)
        if first_b: publish_ml()
        v_load1(0, N); v_load1(1, N)
        for t in range(12): pv(t)
        if nxt == 'A' and cfg.EARLY:
            e(f"s_add_u32 s{sI}, s{sI}, 1")
            e(f"s_cmp_ge_u32 s{sI}, s{sCNT}")
            e("s_cbranch_scc1 A_last")
            for k in range(2, 8): v_load1(k, N)
            e("s_branch A_loop")
            lab("A_last")
            prof(5)
            pack_store()
            for k in range(2, 8):
                if k == cfg.PUBK:
                    e(f"s_waitcnt vmcnt({k-2})")
                    e(f"buffer_store_dwordx2 v[{vMA}:{vMA+1}], v{vPM}, s[{SRDW}:{SRDW+3}], s{sPM} offen sc1")
                v_load1(k, (N+6 if k < cfg.PUBK else N+1) if N else 0)
                if k == 2: save_state()
                if k >= 3 and k < 7:
                    for i in range(12*(k-3), 12*(k-2)): e(f"v_mov_b32 v{vO+i}, 0")
        else:
            for k in range(2, 8): v_load1(k, N)

lab("A_loop")
body("A", vQ, 'A', cfg.NOUT)
if not cfg.EARLY:
    e(f"s_add_u32 s{sI}, s{sI}, 1")
    e(f"s_cmp_ge_u32 s{sI}, s{sCNT}")
    e("s_cbranch_scc0 A_loop")
    prof(5)
for k in range(KB):
    body(f"B{k}", vQB, sRB+k+1 if k+1 < KB else None, cfg.NOUTB, first_b=(k == 0), last=(k == KB-1))
if cfg.MIDST: e(f"s_memrealtime {pr(sST+2)}")
prof(6)
e(f"s_mov_b64 exec, {pr(sBM)}")
for t in range(12):
    if t == 4: e("s_nop 3")
    e(f"ds_write_b128 v{vSB}, v[{vO+4*t}:{vO+4*t+3}] offset:{L_STB + 64*t}")
e("s_waitcnt lgkmcnt(0)")
e(f"ds_write_b32 v{vX+2}, v{vX+3} offset:{L_FB}")
prof(7)
dump_prof()
if cfg.STAMPS and cfg.MIDST:
    e(f"s_cmp_lg_u32 s{sWAVE}, 0")
    e("s_cbranch_scc1 A_end")
    dump_stamps()
lab("A_end")
e("s_endpgm")

for tag in slow_sites:
    lab(f"A_slow{tag}")
    xreduce("v_max_f32", vMX)
    e(f"v_max_f32 v{vM}, v{vM}, v{vMX}")
    e(f"v_mul_f32 v{vA}, s{sC2}, v{vM}")
    e(f"v_sub_f32 v{vB}, v{vMC}, v{vA}")
    e(f"v_exp_f32 v{vB}, v{vB}")
    e(f"v_mov_b32 v{vMC}, v{vA}")
    e(f"v_mul_f32 v{vL}, v{vL}, v{vB}")
    if tag != "B0":
        for i in range(24):
            e(f"v_pk_mul_f32 v[{vO+2*i}:{vO+2*i+1}], v[{vO+2*i}:{vO+2*i+1}], v[{vB}:{vB+1}] op_sel_hi:[1,0]")
    e(f"s_branch A_back{tag}")

ST = cfg.STRIDE
lst = ST.bit_length()-1
lab("A_dyn")
e(f"s_cmp_lg_u32 s{sLF}, 0")
e("s_cbranch_scc1 A_dyn2")
e(f"s_mov_b32 s{sLF}, 1")
e(f"v_mov_b32 v{vA}, 0")
e("s_barrier")
e(f"ds_read_b32 v{vA}, v{vA} offset:{L_N}")
e("s_waitcnt lgkmcnt(0)")
e(f"v_readfirstlane_b32 s{sN}, v{vA}")
e("s_nop 1")
e(f"s_mul_i32 s{sT1}, s{sN}, {cfg.F}")
e(f"s_lshr_b32 s{sT1}, s{sT1}, 10")
e(f"s_lshl_b32 s{sP0}, s{sT1}, 5")
e(f"s_add_u32 s{sDS}, s{sT1}, {KP}")
e(f"s_lshr_b32 s{sT2}, s{sSEG}, {lst}")
e(f"s_mul_i32 s{sT1}, s{sT1}, s{sT2}")
e(f"s_lshl_b32 s{sT1}, s{sT1}, {lst}")
e(f"s_and_b32 s{sT2}, s{sSEG}, {ST-1}")
e(f"s_add_u32 s{sT1}, s{sT1}, s{sT2}")
e(f"s_sub_u32 s{sT1}, s{sT1}, {KP*ST}")
e(f"v_lshlrev_b32 v{vA}, {lst}, v{vLANE}")
e(f"v_add_lshl_u32 v{vA}, v{vA}, s{sT1}, 2")
e(f"v_min_u32 v{vA}, 8188, v{vA}")
e(f"ds_read_b32 v{vLIST}, v{vA}")
e("s_waitcnt lgkmcnt(0)")
e(f"v_readlane_b32 s{sREC}, v{vLIST}, s{sT0}")
e(f"s_add_u32 s{sT1}, s{sT0}, 1")
e(f"s_cmp_lt_u32 s{sT1}, s{sDS}")
e("s_cbranch_scc1 A_rec")
e(f"s_cmp_lg_u32 s{sT0}, s{sDS}")
e("s_cbranch_scc1 A_dyn2")
e(f"s_cmp_lg_u32 s{sWAVE}, 0")
e("s_cbranch_scc1 A_dyn2")
started_check(sT2)
e(f"s_mov_b32 s{sTK}, 1")
e(f"s_atomic_add s{sTK}, {pr(sTKB)}, 0 glc")
lab("A_dyn2")
e(f"s_sub_u32 s{sT1}, s{sT0}, s{sDS}")
e(f"s_lshl_b32 s{sT2}, s{sT1}, 2")
e(f"v_mov_b32 v{vA}, s{sT2}")
e(f"s_cmp_lg_u32 s{sWAVE}, 0")
e(f"s_cbranch_scc1 A_oth")
e(f"s_cmp_lt_i32 s{sT1}, 0")
e(f"s_cbranch_scc1 A_first")
e("s_waitcnt lgkmcnt(0)")
e(f"s_add_u32 s{sTK}, s{sTK}, s{sP0}")
e(f"s_lshl_b32 s{sT2}, s{sTK}, 2")
e(f"s_min_u32 s{sT2}, s{sT2}, 8188")
e(f"v_mov_b32 v{vB}, s{sT2}")
e(f"ds_read_b32 v{vB}, v{vB}")
e("s_waitcnt lgkmcnt(0)")
e(f"v_readfirstlane_b32 s{sREC}, v{vB}")
e("s_nop 1")
e(f"s_cmp_lt_u32 s{sTK}, s{sN}")
e(f"s_cselect_b32 s{sREC}, s{sREC}, {DONE}")
e(f"v_mov_b32 v{vB}, s{sREC}")
e(f"ds_write_b32 v{vA}, v{vB} offset:{L_SLOT}")
e(f"s_cbranch_scc0 A_fini")
lab(f"A_iss")
e(f"s_mov_b32 s{sTK}, 1")
e(f"s_atomic_add s{sTK}, {pr(sTKB)}, 0 glc")
e(f"s_branch A_rec")
lab(f"A_first")
started_check(sT2)
e(f"s_branch A_iss")
lab(f"A_oth")
e(f"s_cmp_lt_i32 s{sT1}, 0")
e(f"s_cbranch_scc1 A_rec")
lab(f"A_poll")
e(f"ds_read_b32 v{vB}, v{vA} offset:{L_SLOT}")
e("s_waitcnt lgkmcnt(0)")
e(f"v_readfirstlane_b32 s{sREC}, v{vB}")
e("s_nop 1")
e(f"s_cmp_eq_u32 s{sREC}, {EMPTY}")
e(f"s_cbranch_scc1 A_poll")
e(f"s_cmp_lg_u32 s{sREC}, {DONE}")
e(f"s_cbranch_scc1 A_rec")
lab(f"A_fini")
e(f"v_mov_b32 v{vA}, 0")
e(f"v_mov_b32 v{vB}, 1")
e(f"ds_write_b32 v{vA}, v{vB} offset:{L_FA}")
e(f"s_mov_b32 s{sCNT}, s{sT0}")
e(f"s_mov_b32 s{sHOFF}, s{sHOFFB}")
e(f"s_mov_b32 s{sREC}, s{sRB}")
e(f"s_branch A_rec")

pT, pM = 48, 56
pJ, pJX, pA, pB, pCNT, pJ4 = 63+1, 65, 66, 67, 68, 69
SRDO = 20
hA, hB, hP = 12, 13, 8
lab("P_start")
if cfg.PPRIO: e(f"s_setprio {cfg.PPRIO}")
if cfg.CODEPF:
    e("s_getpc_b64 s[40:41]")
    lab("P_pc")
    e(f"s_sub_u32 s40, s40, P_pc-{NAME}_kernel")
    e("s_subb_u32 s41, s41, 0")
    e(f"v_subrev_u32 v70, 256, v0")
    e(f"v_lshlrev_b32 v70, 6, v70")
    e(f"v_min_u32 v70, K_end-{NAME}_kernel-4, v70")
    e("global_load_dword v71, v70, s[40:41]")
e(f"v_subrev_u32 v{pJ}, 256, v0")
e(f"v_lshlrev_b32 v{pJ4}, 2, v{pJ}")
e(f"v_mov_b32 v{pA}, {EMPTY}")
e(f"v_mov_b32 v{pCNT}, 0")
for i in range(3):
    e(f"ds_write_b32 v{pJ4}, v{pA} offset:{L_SLOT + 1024*i}")
e(f"ds_write_b32 v{pJ4}, v{pCNT} offset:{L_CNT}")
e("s_waitcnt lgkmcnt(0)")
e("s_load_dwordx16 s[4:19], s[0:1], 0")
e("s_barrier")
e(f"v_add_u32 v{pB}, 4096, v{pJ4}")
e(f"v_lshlrev_b32 v{pJX}, 16, v{pJ}")
e(f"s_sub_u32 s{sI}, s{sWAVE}, 4")
e(f"s_lshl_b32 s{sT0}, s{sHEAD}, 13")
e(f"s_lshl_b32 s{sT1}, s{sSEG}, 3")
e(f"s_add_u32 s{sT0}, s{sT0}, s{sT1}")
e(f"v_lshl_add_u32 v{hA}, v{vLANE}, 8, s{sT0}")
e(f"s_lshl_b32 s{sT0}, s{sHEAD}, 12")
e(f"s_add_u32 s{sT0}, s{sT0}, {TK_OFF}")
e(f"v_mov_b32 v{hP}, -1")
e(f"v_mov_b32 v{hP+1}, -1")
e(f"v_writelane_b32 v{hA}, s{sT0}, 32")
e(f"v_writelane_b32 v{hP}, 0, 32")
e(f"v_writelane_b32 v{hP+1}, 0, 32")
e(f"s_cmp_eq_u32 s{sSEG}, 0")
e(f"s_cselect_b32 s{sEQ+1}, 1, 0")
e(f"s_mov_b32 s{sEQ}, -1")
e(f"s_mov_b32 s{SRDW+2}, {WS_USED}")
e(f"s_mov_b32 s{SRDW+3}, 0x20000")
e(f"s_lshl_b32 s{sT2}, s{sHEAD}, 5")
for b in range(8):
    e(f"v_mov_b32 v{pM+b}, 0")
for b in range(1, 8):
    e(f"s_mov_b64 {pr(sNL+2*b)}, 0")
e("s_waitcnt lgkmcnt(0)")
e(f"s_load_dwordx8 s[{sC}:{sC+7}], {pr(sCTX)}, 0")
for b in range(8):
    e(f"global_load_dword v{pT+b}, v{pJ4 if b < 4 else pB}, {pr(sBT)} offset:{(b & 3)*1024}")
e(f"s_mov_b32 s{SRDW}, s{sWS}")
e(f"s_and_b32 s{SRDW+1}, s{sWS+1}, 0xffff")
e(f"s_cmp_lg_u32 s{sI}, 0")
e("s_cbranch_scc1 P_noclr")
e(f"s_mov_b64 exec, {pr(sEQ)}")
e(f"buffer_store_dwordx2 v[{hP}:{hP+1}], v{hA}, s[{SRDW}:{SRDW+3}], 0 offen sc1")
e("s_mov_b64 exec, -1")
lab("P_noclr")
e(f"s_add_u32 s{sDBG}, s{sDBG}, s{sT2}")
e(f"s_addc_u32 s{sDBG+1}, s{sDBG+1}, 0")
e("s_waitcnt lgkmcnt(0)")
for b in range(8):
    nblocks(sC+b)
    e(f"s_sub_u32 s{sC+b}, s{sC+b}, {NB+4*KP}")
for b in range(8):
    e(f"v_cmp_gt_i32_e64 {pr(sVAL+2*b)}, s{sC+b}, v{pJ}")
e(f"s_waitcnt vmcnt(1)")
for b in range(7):
    e(f"v_cndmask_b32_e64 v{pT+b}, {-(b+1)}, v{pT+b}, {pr(sVAL+2*b)}")
e(f"s_cmp_eq_u32 s{sI}, 0")
e("s_cbranch_scc1 P_got")
e(f"s_waitcnt vmcnt(0)")
lab("P_got")
e(f"v_cndmask_b32_e64 v{pT+7}, -8, v{pT+7}, {pr(sVAL+14)}")
for b in range(7):
    hi = list(range(7, b, -1))
    for k, b2 in enumerate(hi):
        e(f"v_cmp_eq_u32_e64 {pr(sEQ+2*k)}, v{pT+b}, v{pT+b2}")
    if len(hi) < 3: e(f"s_nop {2-len(hi)}")
    for k, b2 in enumerate(hi):
        e(f"v_addc_co_u32_e64 v{pM+b}, vcc, v{pM+b}, v{pM+b}, {pr(sEQ+2*k)}")
    for k, b2 in enumerate(hi):
        e(f"s_or_b64 {pr(sNL+2*b2)}, {pr(sNL+2*b2)}, {pr(sEQ+2*k)}")
e(f"v_mov_b32 v{pCNT}, 0")
for b in range(8):
    if b: e(f"s_andn2_b64 {pr(sVAL+2*b)}, {pr(sVAL+2*b)}, {pr(sNL+2*b)}")
    e(f"s_bcnt1_i32_b64 s{sT0}, {pr(sVAL+2*b)}")
    e(f"s_or_b32 s{sT0}, s{sT0}, 0x10000")
    e(f"v_writelane_b32 v{pCNT}, s{sT0}, {b}")
e(f"s_lshl_b32 s{sT0}, s{sI}, 2")
e(f"s_add_u32 s{sT0}, s{sT0}, {L_CNT}")
e(f"v_lshl_add_u32 v{pA}, v{vLANE}, 4, s{sT0}")
e(f"s_mov_b64 exec, 0xff")
e(f"ds_write_b32 v{pA}, v{pCNT}")
e(f"s_mov_b64 exec, -1")
for b in range(8):
    e(f"v_lshl_or_b32 v{pM+b}, v{pM+b}, 1, 1")
    e(f"v_lshlrev_b32 v{pM+b}, {24+b}, v{pM+b}")
    e(f"v_or3_b32 v{pT+b}, v{pT+b}, v{pJX}, v{pM+b}")
    e(f"v_mbcnt_lo_u32_b32 v{pM+b}, s{sVAL+2*b}, 0")
    e(f"v_mbcnt_hi_u32_b32 v{pM+b}, s{sVAL+2*b+1}, v{pM+b}")
e(f"v_and_b32 v{pA}, 31, v{vLANE}")
e(f"v_lshlrev_b32 v{pA}, 2, v{pA}")
lab("P_cw")
e(f"ds_read_b32 v{pCNT}, v{pA} offset:{L_CNT}")
e("s_waitcnt lgkmcnt(0)")
e(f"v_cmp_eq_u32 vcc, 0, v{pCNT}")
e("s_cbranch_vccnz P_cw")
e(f"v_and_b32 v{pCNT}, 0xffff, v{pCNT}")
e(f"v_mov_b32 v{pB}, v{pCNT}")
for sh in (1, 2, 4, 8):
    e("s_nop 1")
    e(f"v_add_u32_dpp v{pB}, v{pB}, v{pB} row_shr:{sh} row_mask:0xf bank_mask:0xf bound_ctrl:0")
e("s_nop 1")
e(f"v_add_u32_dpp v{pB}, v{pB}, v{pB} row_bcast:15 row_mask:0xa bank_mask:0xf")
e("s_nop 1")
e(f"v_readlane_b32 s{sN}, v{pB}, 31")
e(f"v_sub_u32 v{pB}, v{pB}, v{pCNT}")
e(f"s_mov_b32 s{sT1}, s{sI}")
for b in range(8):
    e(f"v_readlane_b32 s{sEQ+b}, v{pB}, s{sT1}")
    e(f"s_add_u32 s{sT1}, s{sT1}, 4")
e(f"v_mov_b32 v{pA}, 0")
e(f"v_mov_b32 v{pCNT}, s{sN}")
e(f"ds_write_b32 v{pA}, v{pCNT} offset:{L_N}")
for b in range(8):
    e(f"v_add_lshl_u32 v{pM+b}, v{pM+b}, s{sEQ+b}, 2")
for b in range(8):
    e(f"s_mov_b64 exec, {pr(sVAL+2*b)}")
    e(f"ds_write_b32 v{pM+b}, v{pT+b}")
e(f"s_mov_b64 exec, -1")
e(f"s_cmp_eq_u32 s{sI}, 0")
e("s_cbranch_scc1 H_start")
e("s_waitcnt lgkmcnt(0)")
e("s_barrier")
e("s_endpgm")

hL16, hFL, hM, hW, hMA = 5, 6, 10, 11, 7
hO0, hO1, hO2, hO3 = 14, 15, 16, 17
hPOLL, hLA, hACC = 18, 19, 20
hQ = 24
hD = 32
hNEG, hMN = 4, 2
hsU, hsDONE, hsO, hsT, hsNEW, hsCNT, hsW = 32, 33, 34, 35, 36, 38, 39
hsIX = 40
lab("H_start")
prof(1)
e("s_waitcnt vmcnt(0) lgkmcnt(0)")
e(f"s_mov_b32 s{sT2}, 1")
e(f"s_atomic_add s{sT2}, {pr(sDBG)}, 0")
e("s_barrier")
if cfg.HPRIO: e(f"s_setprio {cfg.HPRIO}")
e(f"s_mov_b32 s{SRDO}, s{sOUT}")
e(f"s_and_b32 s{SRDO+1}, s{sOUT+1}, 0xffff")
e(f"s_mov_b32 s{SRDO+2}, 98304")
e(f"s_mov_b32 s{SRDO+3}, 0x20000")
e(f"v_lshlrev_b32 v{hL16}, 4, v{vLANE}")
e(f"v_mov_b32 v{hA}, 0x40000000")
e(f"v_cmp_gt_u32 vcc, 48, v{vLANE}")
e(f"v_lshrrev_b32 v{hB}, 2, v{vLANE}")
e(f"v_and_b32 v{hW}, 3, v{vLANE}")
e(f"v_cndmask_b32 v{hFL}, v{hA}, v{hL16}, vcc")
e(f"v_cndmask_b32_e64 v{hA}, v{hA}, 0, vcc")
e(f"v_lshl_add_u32 v{hO0}, v{hW}, 5, v{hB}")
e(f"v_lshl_add_u32 v{hO1}, v{hW}, 4, v{hB}")
e(f"v_add_u32 v{hO1}, 120, v{hO1}")
e(f"v_cmp_gt_u32 vcc, 8, v{hB}")
e(f"v_mov_b32 v{hO2}, 8")
e(f"v_mov_b32 v{hO3}, 16")
e(f"v_cndmask_b32 v{hO0}, v{hO1}, v{hO0}, vcc")
e(f"v_cndmask_b32 v{hO3}, v{hO2}, v{hO3}, vcc")
e(f"v_lshl_add_u32 v{hO0}, v{hO0}, 1, v{hA}")
e(f"v_add_u32 v{hO1}, v{hO0}, v{hO3}")
e(f"v_add_u32 v{hO2}, v{hO1}, v{hO3}")
e(f"v_add_u32 v{hO3}, v{hO2}, v{hO3}")
e(f"v_and_b32 v{hPOLL}, 31, v{vLANE}")
e(f"v_lshlrev_b32 v{hPOLL}, 3, v{hPOLL}")
e(f"v_min_u32 v{hL16}, 752, v{hL16}")
e(f"v_mov_b32 v{hNEG}, 0x{NEG:08x}")
e(f"v_mov_b32 v{hMA}, v{hNEG}")
e(f"v_mov_b32 v{hLA}, 0")
for i in range(4): e(f"v_mov_b32 v{hACC+i}, 0")
e(f"v_mov_b32 v{hM}, 0")
e(f"s_lshl_b32 s{sT1}, s2, 8")
e(f"s_mul_i32 s{hsO}, s2, 768")
e(f"s_add_u32 s{hsO}, s{hsO}, {O_OFF}")
e(f"s_mov_b32 s{hsDONE}, 0")
def lds_wait(name, off, sleep):
    e(f"s_mov_b32 s{sSPIN}, 0")
    lab(name)
    e(f"ds_read_b32 v{hB}, v{hM} offset:{off}")
    e(f"s_add_u32 s{sSPIN}, s{sSPIN}, 1")
    e("s_waitcnt lgkmcnt(0)")
    e(f"v_cmp_eq_u32 vcc, 0, v{hB}")
    e(f"s_cmp_ge_u32 s{sSPIN}, {1 << 26}")
    e(f"s_cbranch_scc1 {name}_ok")
    if sleep:
        e(f"s_cbranch_vccz {name}_ok")
        e(f"s_sleep {sleep}")
        e(f"s_branch {name}")
    else:
        e(f"s_cbranch_vccnz {name}")
    lab(f"{name}_ok")
started_check_helper(sT2, hM, hB)
if cfg.NOHELP: e("s_endpgm")
lds_wait("H_wa", L_FA, cfg.HSLEEP)
prof(2)
hP2 = 2
hMN = 160-1 if False else 31
e(f"s_mov_b32 s{sSPIN}, 0")
lab("H_poll")
e(f"buffer_load_dwordx2 v[{hP2}:{hP2+1}], v{hPOLL}, s[{SRDW}:{SRDW+3}], s{sT1} offen sc1")
lab("H_poll2")
e(f"s_add_u32 s{sSPIN}, s{sSPIN}, 1")
e(f"s_cmp_ge_u32 s{sSPIN}, {SPIN_MAX}")
e("s_cbranch_scc1 H_gath")
e("s_waitcnt vmcnt(0)")
e(f"v_cmp_le_i32_e64 {pr(hsNEW)}, 0, v{hP2+1}")
e(f"v_cmp_lt_f32 vcc, 0, v{hP2+1}")
e("s_nop 1")
e(f"s_andn2_b32 s{hsU}, vcc_lo, s{hsDONE}")
e(f"s_mov_b32 s{hsDONE}, s{hsNEW}")
e("s_cbranch_scc0 H_next")
e(f"s_mov_b32 s{hsNEW}, s{hsU}")
e(f"s_mov_b32 s{hsNEW+1}, s{hsU}")
e(f"s_bcnt1_i32_b32 s{hsCNT}, s{hsU}")
for i in range(32):
    e(f"s_ff1_i32_b32 s{hsIX+i}, s{hsU}")
    e(f"s_bitset0_b32 s{hsU}, s{hsIX+i}")
    e(f"s_mul_i32 s{hsT}, s{hsIX+i}, 196608")
    e(f"s_add_u32 s{hsT}, s{hsT}, s{hsO}")
    e(f"buffer_load_dwordx4 v[{hD+4*i}:{hD+4*i+3}], v{hFL}, s[{SRDW}:{SRDW+3}], s{hsT} offen sc1")
    if i < 31:
        e(f"s_cmp_eq_u32 s{hsU}, 0")
        e("s_cbranch_scc1 H_iss")
lab("H_iss")
e(f"v_cndmask_b32_e64 v{hP}, v{hNEG}, v{hP2}, {pr(hsNEW)}")
e(f"v_cndmask_b32_e64 v{hP+1}, 0, v{hP2+1}, {pr(hsNEW)}")
e(f"buffer_load_dwordx2 v[{hP2}:{hP2+1}], v{hPOLL}, s[{SRDW}:{SRDW+3}], s{sT1} offen sc1")
e(f"v_max_f32 v{hMN}, v{hP}, v{hMA}")
for sh in (8, 4, 2, 1):
    e("s_nop 1")
    e(f"v_max_f32_dpp v{hMN}, v{hMN}, v{hMN} row_ror:{sh} row_mask:0xf bank_mask:0xf")
xreduce("v_max_f32", hMN, hA, hB, ("v_permlane16_swap_b32",))
e(f"v_sub_f32 v{hW}, v{hP}, v{hMN}")
e(f"v_sub_f32 v{hMA}, v{hMA}, v{hMN}")
e(f"v_exp_f32 v{hW}, v{hW}")
e(f"v_exp_f32 v{hQ}, v{hMA}")
e(f"v_mov_b32 v{hMA}, v{hMN}")
e(f"v_mul_f32 v{hMN}, v{hW}, v{hP+1}")
for sh in (8, 4, 2, 1):
    e("s_nop 1")
    e(f"v_add_f32_dpp v{hMN}, v{hMN}, v{hMN} row_ror:{sh} row_mask:0xf bank_mask:0xf")
xreduce("v_add_f32", hMN, hA, hB, ("v_permlane16_swap_b32",))
e(f"v_fma_f32 v{hLA}, v{hLA}, v{hQ}, v{hMN}")
for i in range(4): e(f"v_mul_f32 v{hACC+i}, v{hACC+i}, v{hQ}")
e("s_waitcnt vmcnt(1)")
for i in range(32):
    e(f"v_readlane_b32 s{hsW}, v{hW}, s{hsIX+i}")
    e(f"s_cmp_eq_u32 s{hsCNT}, {i+1}")
    e("s_nop 0")
    for r in range(4):
        e(f"v_fmac_f32 v{hACC+r}, s{hsW}, v{hD+4*i+r}")
    if i < 31: e("s_cbranch_scc1 H_next2")
lab("H_next2")
e(f"s_cmp_eq_u32 s{hsDONE}, -1")
e("s_cbranch_scc0 H_poll2")
e("s_branch H_gath")
lab("H_next")
e(f"s_cmp_eq_u32 s{hsDONE}, -1")
if cfg.PSLEEP:
    e("s_cbranch_scc1 H_gath")
    e(f"s_sleep {cfg.PSLEEP}")
    e("s_branch H_poll")
else:
    e("s_cbranch_scc0 H_poll")
lab("H_gath")
prof(3)
e(f"s_and_b32 s{sT0}, s2, 7")
e(f"s_lshl_b32 s{sT0}, s{sT0}, 5")
e(f"s_lshr_b32 s{sT1}, s2, 3")
e(f"s_add_u32 s{sT0}, s{sT0}, s{sT1}")
e(f"s_mul_i32 s{sT0}, s{sT0}, 384")
e(f"v_mov_b32 v{hPOLL}, 0")
e(f"v_and_b32 v{hM}, 3, v{vLANE}")
e(f"v_lshlrev_b32 v{hM}, 2, v{hM}")
lds_wait("H_wb", L_FB, 0)
prof(4)
e(f"ds_read_b128 v[{hQ}:{hQ+3}], v{hPOLL} offset:{L_STBML}")
e(f"ds_read_b128 v[{hQ+4}:{hQ+7}], v{hPOLL} offset:{L_STBML+16}")
for w in range(4):
    e(f"ds_read_b128 v[{hD+4*w}:{hD+4*w+3}], v{hL16} offset:{L_STB + 768*w}")
e("s_waitcnt lgkmcnt(4)")
e(f"v_max3_f32 v{hW}, v{hQ}, v{hQ+2}, v{hMA}")
e(f"v_max3_f32 v{hW}, v{hQ+4}, v{hQ+6}, v{hW}")
e(f"v_sub_f32 v{hMA}, v{hMA}, v{hW}")
for w in range(4):
    e(f"v_sub_f32 v{hQ+2*w}, v{hQ+2*w}, v{hW}")
e(f"v_exp_f32 v{hMA}, v{hMA}")
for w in range(4):
    e(f"v_exp_f32 v{hQ+2*w}, v{hQ+2*w}")
e(f"v_mul_f32 v{hLA}, v{hLA}, v{hMA}")
for w in range(4):
    e(f"v_fmac_f32 v{hLA}, v{hQ+2*w}, v{hQ+2*w+1}")
for i in range(4):
    e(f"v_mul_f32 v{hACC+i}, v{hACC+i}, v{hMA}")
e(f"v_rcp_f32 v{hLA}, v{hLA}")
e("s_waitcnt lgkmcnt(0)")
for w in range(4):
    for i in range(4):
        e(f"v_fmac_f32 v{hACC+i}, v{hQ+2*w}, v{hD+4*w+i}")
for i in range(4):
    e(f"v_mul_f32 v{hACC+i}, v{hACC+i}, v{hLA}")
e(f"v_cvt_pk_bf16_f32 v{hA}, v{hACC}, v{hACC+1}")
e(f"v_cvt_pk_bf16_f32 v{hB}, v{hACC+2}, v{hACC+3}")
e(f"buffer_store_short v{hA}, v{hO0}, s[{SRDO}:{SRDO+3}], s{sT0} offen")
e(f"buffer_store_short_d16_hi v{hA}, v{hO1}, s[{SRDO}:{SRDO+3}], s{sT0} offen")
e(f"buffer_store_short v{hB}, v{hO2}, s[{SRDO}:{SRDO+3}], s{sT0} offen")
e(f"buffer_store_short_d16_hi v{hB}, v{hO3}, s[{SRDO}:{SRDO+3}], s{sT0} offen")
prof(5)
prof(6)
prof(7)
dump_prof()
if cfg.STAMPS and not cfg.MIDST:
    e("s_waitcnt vmcnt(0)")
    e(f"s_memrealtime {pr(sST+2)}")
    dump_stamps()
e("s_endpgm")

lab("K_end")
raw('.section .rodata,"a"')
raw(f""".p2align 6
.amdhsa_kernel {NAME}_kernel
  .amdhsa_next_free_vgpr {NFV}
  .amdhsa_next_free_sgpr 102
  .amdhsa_accum_offset {ACC}
  .amdhsa_group_segment_fixed_size 0
  .amdhsa_kernarg_size 64
  .amdhsa_user_sgpr_count 2
  .amdhsa_user_sgpr_kernarg_segment_ptr 1
  .amdhsa_system_sgpr_workgroup_id_x 1
.end_amdhsa_kernel""")
open(sys.argv[1], 'w').write("\n".join(out) + "\n")
print("LDS", LDS_BYTES, "NV", NV, "NFV", NFV)
```

```python
import sys, struct, math
NAME = "standalone__paged_block_table_kv_radixattention__sampling"
KV_BYTES = 1152*196608
def f2u(x): return struct.unpack('<I', struct.pack('<f', x))[0]
C2 = (192 ** -0.5) * math.log2(math.e)
NEG = f2u(-3e38)

class Cfg:
    KP = 2
    KB = 2
    STAMPS = False
    MIDST = False
    PROF = False
    F = 28
    HSLEEP = 4
    PPRIO = 3
    NOUT = 6
    NK = None
    NVL = None
    KSPLIT = 2
    NOHELP = 0
    CODEPF = 1
cfg = Cfg()
for a in sys.argv[2:]:
    k, v = a.split('=')
    assert hasattr(cfg, k), k
    setattr(cfg, k, eval(v))
KP, KB = cfg.KP, cfg.KB
NKL = cfg.NK if cfg.NK else [cfg.NOUT]*6
NVL = cfg.NVL if cfg.NVL else [cfg.NOUT]*8
if isinstance(NKL, int): NKL = [NKL]*6
if isinstance(NVL, int): NVL = [NVL]*8
KW = KP + KB
O_OFF = 65536
TK_OFF = O_OFF + 256*8*768
WS_USED = TK_OFF + 32*4096
SPIN_MAX = 1 << 17
OOB = 0xF0000000
EMPTY, DONE = -1, -2
RS, WSZ = 784, 8*784
L_CNT = 8192
L_N = 8320
L_FA = 8336
L_FB = 8352
L_OK = 8368
L_Z = 8384
L_SLOT = 9216
L_STB = 12288
L_STBML = L_STB + 4*768
L_STGML = L_STBML + 64
L_STG = L_STGML + 256
LDS_BYTES = L_STG + 4*WSZ

out = []
def e(s): out.append("    " + s)
def lab(s): out.append(s + ":")
def raw(s): out.append(s)
def pr(a): return f"s[{a}:{a+1}]"

hdr = open('cdna_kernels/%s.s.ref' % NAME).read().split('\n')
for l in hdr:
    if l.startswith('; Override') or l.startswith('; grid=') or l.startswith('; @launch'): continue
    if not l.startswith(';'): break
    raw(l)
raw(f"; @launch grid=(256,1,1) block=(512,1,1) lds={LDS_BYTES}")
raw('.amdgcn_target "amdgcn-amd-amdhsa--gfx950"')
raw('.text')
raw(f".globl {NAME}_kernel\n.p2align 8\n.type {NAME}_kernel,@function")
lab(f"{NAME}_kernel")

sQ, sK, sV, sBT, sCTX, sOUT, sDBG, sWS = 4, 6, 8, 10, 12, 14, 16, 18
SRDK, SRDV, SRDW = 20, 24, 28
sWAVE, sHOFF, sB0, sN, sDS, sCNT, sI, sT0, sT1, sT2, sHEAD, sTK = 86, 87, 88, 89, 90, 91, 92, 93, 94, 95, 96, 97
sST = 98
sP0 = 3
sTKB = 6
sSPIN = 8
sREC, sLF, sCNTA = 32, 33, 34
sJW, sPW = 36, 68
sMK = 48
sA = 50
sJ16 = 58
sTKO = 59
sO = 60
sC2, sSELLO, sSELHI = 64, 65, 66
sBM = 76
sC = 32
sVAL = 40
sNL = 56
sEQ = 72
vLANE, vC, vG = 1, 2, 3
vOK, vOV4, vOV2, vCTXM, vLIST, vM, vMC, vL, vNINF, vLIM, vMX, vA, vB, vPO = 4, 5, 6, 7, 8, 9, 10, 11, 12, 13, 14, 15, 42, 43
vQ = 16
vC1, vC2 = 28, 32
vS = 36
vP = 40
vX = 44
vO = 48
vT = 96
vMA, vLB, vSB = 120, 122, 123
vV = 124
NV = 148 + (1 if cfg.PROF else 0)
vPROF = NV-1
ACC = (NV + 3)//4*4
NFV = ACC + 24

def prof(n):
    if not cfg.PROF: return
    e('s_memtime s[100:101]')
    e('s_waitcnt lgkmcnt(0)')
    e(f'v_writelane_b32 v{vPROF}, s100, {n}')
def thr(n):
    if n: e(f"s_waitcnt vmcnt({n-1})")
def k_loads(lo=0, hi=6, t=0):
    for k in range(lo, hi):
        u, s = k // 3, k % 3
        r = u*12 + s*4
        thr(NKL[k] if t else 0)
        e(f"buffer_load_dwordx4 a[{r}:{r+3}], v{vOK}, s[{SRDK}:{SRDK+3}], s{sO+2*u} offen offset:{128*s} nt")
def v_load1(k, t=0):
    i = k // 2
    thr(NVL[k] if t else 0)
    if k % 2 == 0:
        r = vV + i*4
        e(f"buffer_load_dwordx4 v[{r}:{r+3}], v{vOV4}, s[{SRDV}:{SRDV+3}], s{sO+i} offen nt")
    else:
        r = vV + 16 + i*2
        e(f"buffer_load_dwordx2 v[{r}:{r+1}], v{vOV2}, s[{SRDV}:{SRDV+3}], s{sO+i} offen offset:256 nt")
def soffs():
    e(f"s_add_u32 s{sO+1}, s{sO}, 12288")
    e(f"s_add_u32 s{sO+2}, s{sO}, {8*12288}")
    e(f"s_add_u32 s{sO+3}, s{sO}, {9*12288}")
def xreduce(op, reg, dst=None):
    for sw in ("v_permlane32_swap_b32", "v_permlane16_swap_b32"):
        e(f"v_mov_b32 v{vA}, v{reg}")
        e(f"v_mov_b32 v{vB}, v{reg}")
        e("s_nop 1")
        e(f"{sw} v{vA}, v{vB}")
        e("s_nop 1")
        if dst is not None: reg = dst
        e(f"{op} v{reg}, v{vA}, v{vB}")
def nblocks(r):
    e(f"s_cmp_lt_i32 s{r}, 1")
    e(f"s_cselect_b32 s{r}, 0x1000, s{r}")
    e(f"s_min_i32 s{r}, s{r}, 0x1000")
    e(f"s_add_u32 s{r}, s{r}, 15")
    e(f"s_lshr_b32 s{r}, s{r}, 4")
chk_n = [0]
def started_check():
    n = chk_n[0]; chk_n[0] += 1
    e(f"v_mov_b32 v{vB}, 0")
    lab(f"A_chk{n}")
    e(f"ds_read_b32 v{vLIM}, v{vB} offset:{L_OK}")
    e("s_waitcnt lgkmcnt(0)")
    e(f"v_cmp_eq_u32 vcc, 0, v{vLIM}")
    e(f"s_cbranch_vccnz A_chk{n}")
def dump_prof():
    if cfg.PROF:
        e("s_mov_b64 exec, -1")
        e(f"s_mul_i32 s{sT0}, s2, 5")
        e(f"s_add_u32 s{sT0}, s{sT0}, s{sWAVE}")
        e(f"s_lshl_b32 s{sT0}, s{sT0}, 8")
        e(f"s_add_u32 s{sT0}, s{sT0}, 0x2000000")
        e(f"v_lshl_add_u32 v{vX}, v{vLANE}, 2, s{sT0}")
        e(f"global_store_dword v{vX}, v{vPROF}, {pr(sWS)}")
def dump_stamps():
    e("s_mov_b64 exec, -1")
    e("s_waitcnt lgkmcnt(0)")
    e(f"s_add_u32 s{sWS}, s{sWS}, 0x20000000")
    e(f"s_addc_u32 s{sWS+1}, s{sWS+1}, 0")
    e(f"s_lshl_b32 s{sT0}, s2, 4")
    e(f"v_mov_b32 v{vX}, s{sT0}")
    for i in range(4): e(f"v_mov_b32 v{vS+i}, s{sST+i}")
    e("s_mov_b64 exec, 1")
    e(f"global_store_dwordx4 v{vX}, v[{vS}:{vS+3}], {pr(sWS)}")

e("s_cmp_ge_u32 s2, 256")
e("s_cbranch_scc1 A_end")
if cfg.STAMPS: e(f"s_memrealtime {pr(sST)}")
prof(0)
e(f"v_lshrrev_b32 v{vA}, 6, v0")
e(f"v_and_b32 v{vLANE}, 63, v0")
e(f"v_readfirstlane_b32 s{sWAVE}, v{vA}")
e(f"s_lshr_b32 s{sHEAD}, s2, 3")
e(f"s_and_b32 s{sB0}, s2, 7")
e(f"s_cmp_ge_u32 s{sWAVE}, 4")
e("s_cbranch_scc1 P_start")
e("s_load_dwordx16 s[4:19], s[0:1], 0")
e(f"v_and_b32 v{vC}, 15, v0")
e(f"v_lshrrev_b32 v{vG}, 4, v{vLANE}")
e(f"s_lshl_b32 s{sTKO}, s{sHEAD}, 12")
e(f"s_add_u32 s{sTKO}, s{sTKO}, {TK_OFF}")
e(f"s_mul_i32 s{sHOFF}, s{sHEAD}, 384")
e(f"s_lshl_b32 s{sT2}, s{sB0}, 2")
e(f"s_lshl_b32 s{sT0}, s{sB0}, 10")
e(f"v_lshrrev_b32 v{vOK}, 1, v{vC}")
e(f"v_mul_u32_u24 v{vOK}, 12288, v{vOK}")
e(f"v_lshl_add_u32 v{vOK}, v{vG}, 5, v{vOK}")
e(f"v_and_b32 v{vA}, 1, v{vC}")
e(f"v_lshl_add_u32 v{vOK}, v{vA}, 4, v{vOK}")
e(f"v_mul_u32_u24 v{vA}, 24576, v{vG}")
e(f"v_lshl_add_u32 v{vOV4}, v{vC}, 4, v{vA}")
e(f"v_lshl_add_u32 v{vOV2}, v{vC}, 3, v{vA}")
e(f"v_and_b32 v{vX}, 7, v{vC}")
e(f"v_mul_u32_u24 v{vX+1}, 12288, v{vX}")
e(f"v_lshl_add_u32 v{vX+1}, v{vG}, 5, v{vX+1}")
e(f"v_lshrrev_b32 v{vX+3}, 3, v{vC}")
e(f"v_lshl_add_u32 v{vX+1}, v{vX+3}, 4, v{vX+1}")
e(f"v_add_u32 v{vX+1}, s{sHOFF}, v{vX+1}")
e(f"s_mul_i32 s{sT1}, s{sWAVE}, {WSZ}")
e(f"v_mul_u32_u24 v{vPO}, {RS}, v{vX}")
e(f"v_lshl_add_u32 v{vPO}, v{vX+3}, 6, v{vPO}")
e(f"v_lshl_add_u32 v{vPO}, v{vG}, 4, v{vPO}")
e(f"v_add_u32 v{vPO}, s{sT1}, v{vPO}")
e(f"v_lshlrev_b32 v{vX}, 2, v{vX}")
for srd in (SRDK, SRDV):
    e(f"s_mov_b32 s{srd+2}, {KV_BYTES}")
    e(f"s_mov_b32 s{srd+3}, 0x20000")
e("s_barrier")
e("s_waitcnt lgkmcnt(0)")
prof(1)
e(f"s_load_dword s{sT1}, {pr(sCTX)}, s{sT2}")
e(f"global_load_dword v{vCTXM}, v{vX}, {pr(sCTX)}")
for s in range(3):
    e(f"global_load_dwordx4 v[{vQ+4*s}:{vQ+4*s+3}], v{vX+1}, {pr(sQ)} offset:{128*s}")
for srd, base in ((SRDK, sK), (SRDV, sV)):
    e(f"s_mov_b32 s{srd}, s{base}")
    e(f"s_and_b32 s{srd+1}, s{base+1}, 0xffff")
e(f"s_add_u32 s{sTKB}, s{sWS}, s{sTKO}")
e(f"s_addc_u32 s{sTKB+1}, s{sWS+1}, 0")
e(f"s_mov_b32 s{sC2}, 0x{f2u(C2):08x}")
e(f"s_mov_b32 s{sSELLO}, 0x05040100")
e(f"s_mov_b32 s{sSELHI}, 0x07060302")
e(f"v_mov_b32 v{vM}, 0x{NEG:08x}")
e(f"v_mul_f32 v{vMC}, s{sC2}, v{vM}")
e(f"v_mov_b32 v{vL}, 0")
e(f"v_mov_b32 v{vNINF}, 0xff800000")
e(f"v_mov_b32 v{vLIST}, 0")
e(f"v_mov_b32 v{vLB}, 0")
for i in range(24):
    e(f"v_mov_b32 v{vO+i}, 0")
e("s_waitcnt lgkmcnt(0)")
prof(2)
nblocks(sT1)
e(f"s_sub_u32 s{sT1}, s{sT1}, s{sWAVE}")
kk_of = [KB + k for k in range(KP)] + list(range(KB))
for k in range(KW):
    e(f"s_sub_u32 s{sJW+k}, s{sT1}, {1+4*kk_of[k]}")
    e(f"s_max_i32 s{sT2}, s{sJW+k}, 0")
    e(f"s_lshl_b32 s{sT2}, s{sT2}, 2")
    e(f"s_add_u32 s{sT2}, s{sT2}, s{sT0}")
    e(f"s_load_dword s{sPW+k}, {pr(sBT)}, s{sT2}")
e("s_waitcnt lgkmcnt(0)")
prof(3)
e(f"s_and_b32 s{sT1}, s{sPW}, 0xffff")
e(f"s_mul_i32 s{sT1}, s{sT1}, 196608")
e(f"s_add_u32 s{sT1}, s{sT1}, s{sHOFF}")
e(f"s_cmp_ge_i32 s{sJW}, 0")
e(f"s_cselect_b32 s{sO}, s{sT1}, 0x{OOB:x}")
soffs()
k_loads()
for k in range(8): v_load1(k)
prof(4)
e(f"s_lshl_b32 s{sT0}, 0x1000000, s{sB0}")
for k in range(KW):
    dst = sREC if k == 0 else sPW+k
    e(f"s_and_b32 s{sT1}, s{sPW+k}, 0xffff")
    e(f"s_lshl_b32 s{sT2}, s{sJW+k}, 16")
    e(f"s_or_b32 s{sT1}, s{sT1}, s{sT2}")
    e(f"s_or_b32 s{sT1}, s{sT1}, s{sT0}")
    e(f"s_cmp_ge_i32 s{sJW+k}, 0")
    e(f"s_cselect_b32 s{dst}, s{sT1}, 0")
    if 0 < k < KP: e(f"v_writelane_b32 v{vLIST}, s{dst}, {k}")
    if k >= KP: e(f"v_writelane_b32 v{vLB}, s{dst}, {k-KP}")
for i in range(24, 48):
    e(f"v_mov_b32 v{vO+i}, 0")
e(f"s_lshl_b32 s{sBM}, 0x10001, s{sB0}")
e(f"s_mov_b32 s{sBM+1}, s{sBM}")
e(f"s_mul_i32 s{sT1}, s{sWAVE}, 768")
e(f"v_lshl_add_u32 v{vSB}, v{vG}, 4, s{sT1}")
e(f"s_waitcnt vmcnt(14)")
e(f"v_cmp_gt_i32 vcc, 1, v{vCTXM}")
e(f"v_mov_b32 v{vA}, 0x1000")
e(f"v_lshlrev_b32 v{vB}, 1, v{vG}")
e(f"v_cndmask_b32 v{vCTXM}, v{vCTXM}, v{vA}, vcc")
for i in range(12):
    e(f"v_cndmask_b32_e64 v{vQ+i}, v{vQ+i}, 0, vcc")
e(f"v_sub_u32 v{vCTXM}, v{vCTXM}, v{vB}")
e(f"s_mov_b32 s{sI}, 0")
e(f"s_mov_b32 s{sLF}, 0")
e(f"s_mov_b32 s{sCNT}, 0x7fffffff")
e(f"s_mov_b32 s{sCNTA}, 0x7fffffff")
e(f"s_mov_b32 s{sDS}, {KP+1}")

def perm(t):
    if t < 8:
        q_, hsel = t >> 1, t & 1
        regs = [vV + i*4 + q_ for i in range(4)]
    else:
        q_, hsel = (t-8) >> 1, t & 1
        regs = [vV + 16 + i*2 + q_ for i in range(4)]
    sel = sSELHI if hsel else sSELLO
    e(f"v_perm_b32 v{vT+2*t}, v{regs[1]}, v{regs[0]}, s{sel}")
    e(f"v_perm_b32 v{vT+2*t+1}, v{regs[3]}, v{regs[2]}, s{sel}")
def pv(t):
    e(f"v_mfma_f32_16x16x16_bf16 v[{vO+4*t}:{vO+4*t+3}], v[{vT+2*t}:{vT+2*t+1}], v[{vP}:{vP+1}], v[{vO+4*t}:{vO+4*t+3}]")
def body(tag, last):
    N = cfg.NOUT
    e(f"s_bfe_u32 s{sJ16}, s{sREC}, 0x80010")
    e(f"s_lshl_b32 s{sJ16}, s{sJ16}, 4")
    e(f"s_lshr_b32 s{sMK}, s{sREC}, 24")
    e(f"s_mul_i32 s{sMK}, s{sMK}, 0x10001")
    e(f"s_mov_b32 s{sMK+1}, s{sMK}")
    if not last:
        e(f"s_add_u32 s{sT0}, s{sI}, 1")
        e(f"v_readlane_b32 s{sREC}, v{vLIST}, s{sT0}")
        e(f"s_add_u32 s{sT1}, s{sT0}, 1")
        e(f"s_cmp_ge_u32 s{sT1}, s{sDS}")
        e(f"s_cbranch_scc1 A_dyn")
        lab("A_rec")
        e(f"s_and_b32 s{sT1}, s{sREC}, 0xffff")
        e(f"s_mul_i32 s{sT1}, s{sT1}, 196608")
        e(f"s_add_u32 s{sT1}, s{sT1}, s{sHOFF}")
        e(f"s_cmp_lg_u32 s{sREC}, 0")
        e(f"s_cselect_b32 s{sO}, s{sT1}, 0x{OOB:x}")
        soffs()
    e(f"v_subrev_u32 v{vLIM}, s{sJ16}, v{vCTXM}")
    e(f"v_cndmask_b32_e64 v{vLIM}, 0, v{vLIM}, {pr(sMK)}")
    for i, o in enumerate((0, 1, 8, 9)):
        e(f"v_cmp_lt_i32_e64 {pr(sA+2*i)}, {o}, v{vLIM}")
    e(f"s_waitcnt vmcnt(8)")
    for s in range(3):
        for u, c in ((0, vC1), (1, vC2)):
            r = u*12 + s*4
            src = "0" if s == 0 else f"v[{c}:{c+3}]"
            e(f"v_mfma_f32_16x16x32_bf16 v[{c}:{c+3}], a[{r}:{r+3}], v[{vQ+4*s}:{vQ+4*s+3}], {src}")
    if not last: k_loads(0, cfg.KSPLIT, N)
    e(f"s_nop {8-(0 if last else cfg.KSPLIT)}")
    for i, (c, r) in enumerate(((vC1, 0), (vC1, 2), (vC2, 0), (vC2, 2))):
        e(f"v_add_f32_dpp v{vS+i}, v{c+r+1}, v{c+r} row_ror:8 row_mask:0xf bank_mask:0xf")
    for i in range(4):
        e(f"v_cndmask_b32_e64 v{vS+i}, v{vNINF}, v{vS+i}, {pr(sA+2*i)}")
    e(f"v_max3_f32 v{vMX}, v{vS}, v{vS+1}, v{vS+2}")
    e(f"v_max_f32 v{vMX}, v{vMX}, v{vS+3}")
    e(f"v_cmp_gt_f32 vcc, v{vMX}, v{vM}")
    e(f"s_cbranch_vccnz A_slow{tag}")
    lab(f"A_back{tag}")
    for i in range(4):
        e(f"v_fma_f32 v{vX+i}, v{vS+i}, s{sC2}, -v{vMC}")
    for i in range(4):
        e(f"v_exp_f32 v{vX+i}, v{vX+i}")
    if not last: k_loads(cfg.KSPLIT, 6, N)
    else: e("s_nop 0")
    e(f"v_cvt_pk_bf16_f32 v{vP}, v{vX}, v{vX+1}")
    e(f"v_cvt_pk_bf16_f32 v{vP+1}, v{vX+2}, v{vX+3}")
    e(f"v_add_f32 v{vX}, v{vX}, v{vX+1}")
    e(f"v_add_f32 v{vX+2}, v{vX+2}, v{vX+3}")
    e(f"v_add_f32 v{vL}, v{vL}, v{vX}")
    e(f"v_add_f32 v{vL}, v{vL}, v{vX+2}")
    if last:
        xreduce("v_add_f32", vL)
        e(f"s_lshl_b32 s{sT0}, s{sWAVE}, 3")
        e(f"v_mov_b32 v{vX+1}, s{sT0}")
        e(f"s_lshl_b32 s{sT0}, s{sWAVE}, 2")
        e(f"v_mov_b32 v{vX+2}, s{sT0}")
        e(f"v_mov_b32 v{vX+3}, 1")
        e(f"s_mov_b64 exec, {pr(sBM)}")
        e(f"ds_write_b64 v{vX+1}, v[{vMC}:{vMC+1}] offset:{L_STBML}")
        e("s_mov_b64 exec, -1")
        e(f"s_waitcnt vmcnt(0)")
        perm(0); perm(1)
        for t in range(12):
            if t+2 < 12: perm(t+2)
            pv(t)
    else:
        e(f"s_waitcnt vmcnt(6)")
        for t in range(12): perm(t)
        v_load1(0, N); v_load1(1, N)
        for t in range(12): pv(t)
        e(f"s_add_u32 s{sI}, s{sI}, 1")
        e(f"s_cmp_eq_u32 s{sI}, s{sCNTA}")
        e("s_cbranch_scc1 A_last")
        for k in range(2, 8): v_load1(k, N)
        lab("A_cont")
        e(f"s_cmp_lt_u32 s{sI}, s{sCNT}")
        e("s_cbranch_scc1 A_loop")

lab("A_loop")
body("A", False)
body("Z", True)
if cfg.MIDST: e(f"s_memrealtime {pr(sST+2)}")
prof(6)
e(f"s_mov_b64 exec, {pr(sBM)}")
for t in range(12):
    if t == 4: e("s_nop 3")
    e(f"ds_write_b128 v{vSB}, v[{vO+4*t}:{vO+4*t+3}] offset:{L_STB + 64*t}")
e("s_waitcnt lgkmcnt(0)")
e(f"ds_write_b32 v{vX+2}, v{vX+3} offset:{L_FB}")
prof(7)
dump_prof()
if cfg.STAMPS and cfg.MIDST:
    e(f"s_cmp_lg_u32 s{sWAVE}, 0")
    e("s_cbranch_scc1 A_end")
    dump_stamps()
lab("A_end")
e("s_endpgm")

lab("A_last")
prof(5)
v_load1(2, cfg.NOUT)
xreduce("v_add_f32", vL, dst=vMA+1)
e(f"v_mov_b32 v{vMA}, v{vMC}")
e(f"s_lshl_b32 s{sT0}, s{sWAVE}, 6")
e(f"v_lshl_add_u32 v{vX}, v{vLANE}, 3, s{sT0}")
e("s_mov_b64 exec, 0xff")
e(f"ds_write_b64 v{vX}, v[{vMA}:{vMA+1}] offset:{L_STGML}")
e("s_mov_b64 exec, -1")
for i in range(6):
    for r in range(4):
        e(f"v_mov_b32_dpp v{vO+8*i+r}, v{vO+8*i+4+r} row_ror:8 row_mask:0xf bank_mask:0xc")
    e(f"ds_write_b128 v{vPO}, v[{vO+8*i}:{vO+8*i+3}] offset:{L_STG + 128*i}")
e(f"s_lshl_b32 s{sT0}, s{sWAVE}, 2")
e(f"v_mov_b32 v{vX}, s{sT0}")
e(f"v_mov_b32 v{vX+1}, 1")
e("s_waitcnt lgkmcnt(0)")
e(f"ds_write_b32 v{vX}, v{vX+1} offset:{L_FA}")
for k in range(3, 8): v_load1(k, cfg.NOUT)
e("s_branch A_cont")

for tag in ("A", "Z"):
    lab(f"A_slow{tag}")
    xreduce("v_max_f32", vMX)
    e(f"v_max_f32 v{vM}, v{vM}, v{vMX}")
    e(f"v_mul_f32 v{vA}, s{sC2}, v{vM}")
    e(f"v_sub_f32 v{vB}, v{vMC}, v{vA}")
    e(f"v_exp_f32 v{vB}, v{vB}")
    e(f"v_mov_b32 v{vMC}, v{vA}")
    e(f"v_mul_f32 v{vL}, v{vL}, v{vB}")
    for i in range(24):
        e(f"v_pk_mul_f32 v[{vO+2*i}:{vO+2*i+1}], v[{vO+2*i}:{vO+2*i+1}], v[{vB}:{vB+1}] op_sel_hi:[1,0]")
    e(f"s_branch A_back{tag}")

lab("A_dyn")
e(f"s_cmp_ge_u32 s{sT0}, s{sCNTA}")
e("s_cbranch_scc1 A_phb")
e(f"s_cmp_lg_u32 s{sLF}, 0")
e("s_cbranch_scc1 A_dyn2")
e(f"s_mov_b32 s{sLF}, 1")
e(f"v_mov_b32 v{vA}, 0")
e("s_barrier")
e(f"ds_read_b32 v{vA}, v{vA} offset:{L_N}")
e(f"s_lshl_b32 s{sT1}, s{sB0}, 2")
e(f"s_add_u32 s{sT1}, s{sT1}, s{sWAVE}")
e(f"s_sub_u32 s{sT1}, s{sT1}, {32*KP}")
e(f"v_lshlrev_b32 v{vB}, 5, v{vLANE}")
e(f"v_add_lshl_u32 v{vB}, v{vB}, s{sT1}, 2")
e(f"v_min_u32 v{vB}, 8188, v{vB}")
e(f"ds_read_b32 v{vLIST}, v{vB}")
e("s_waitcnt lgkmcnt(0)")
e(f"v_readfirstlane_b32 s{sN}, v{vA}")
e(f"v_readlane_b32 s{sREC}, v{vLIST}, s{sT0}")
e("s_nop 0")
e(f"s_mul_i32 s{sT1}, s{sN}, {cfg.F}")
e(f"s_lshr_b32 s{sT1}, s{sT1}, 10")
e(f"s_lshl_b32 s{sP0}, s{sT1}, 5")
e(f"s_add_u32 s{sDS}, s{sT1}, {KP}")
e(f"s_add_u32 s{sT1}, s{sT0}, 1")
e(f"s_cmp_lt_u32 s{sT1}, s{sDS}")
e("s_cbranch_scc1 A_rec")
e(f"s_cmp_lg_u32 s{sT0}, s{sDS}")
e("s_cbranch_scc1 A_dyn2")
e(f"s_cmp_lg_u32 s{sWAVE}, 0")
e("s_cbranch_scc1 A_dyn2")
started_check()
e(f"s_mov_b32 s{sTK}, 1")
e(f"s_atomic_add s{sTK}, {pr(sTKB)}, 0 glc")
lab("A_dyn2")
e(f"s_sub_u32 s{sT1}, s{sT0}, s{sDS}")
e(f"s_lshl_b32 s{sT2}, s{sT1}, 2")
e(f"v_mov_b32 v{vA}, s{sT2}")
e(f"s_cmp_lg_u32 s{sWAVE}, 0")
e(f"s_cbranch_scc1 A_oth")
e(f"s_cmp_lt_i32 s{sT1}, 0")
e(f"s_cbranch_scc1 A_first")
e("s_waitcnt lgkmcnt(0)")
e(f"s_lshl_b32 s{sT2}, s{sTK}, 2")
e(f"s_add_u32 s{sT2}, s{sT2}, s{sP0}")
e(f"s_cmp_lt_u32 s{sT2}, s{sN}")
e(f"s_cselect_b32 s{sT2}, s{sT2}, {DONE}")
e(f"v_mov_b32 v{vB}, s{sT2}")
e(f"ds_write_b32 v{vA}, v{vB} offset:{L_SLOT}")
e(f"s_cbranch_scc0 A_fini")
e(f"s_lshl_b32 s{sT2}, s{sT2}, 2")
e(f"v_mov_b32 v{vB}, s{sT2}")
e(f"ds_read_b32 v{vB}, v{vB}")
e("s_waitcnt lgkmcnt(0)")
e(f"v_readfirstlane_b32 s{sREC}, v{vB}")
lab(f"A_iss")
e(f"s_mov_b32 s{sTK}, 1")
e(f"s_atomic_add s{sTK}, {pr(sTKB)}, 0 glc")
e(f"s_branch A_rec")
lab(f"A_first")
started_check()
e(f"s_branch A_iss")
lab(f"A_oth")
e(f"s_cmp_lt_i32 s{sT1}, 0")
e(f"s_cbranch_scc1 A_rec")
lab(f"A_poll")
e(f"ds_read_b32 v{vB}, v{vA} offset:{L_SLOT}")
e("s_waitcnt lgkmcnt(0)")
e(f"v_readfirstlane_b32 s{sT2}, v{vB}")
e("s_nop 1")
e(f"s_cmp_eq_u32 s{sT2}, {EMPTY}")
e(f"s_cbranch_scc1 A_poll")
e(f"s_cmp_eq_u32 s{sT2}, {DONE}")
e(f"s_cbranch_scc1 A_fini")
e(f"s_add_u32 s{sT2}, s{sT2}, s{sWAVE}")
e(f"s_lshl_b32 s{sT1}, s{sT2}, 2")
e(f"s_cmp_lt_u32 s{sT2}, s{sN}")
e(f"s_cselect_b32 s{sT1}, s{sT1}, {L_Z}")
e(f"v_mov_b32 v{vB}, s{sT1}")
e(f"ds_read_b32 v{vB}, v{vB}")
e("s_waitcnt lgkmcnt(0)")
e(f"v_readfirstlane_b32 s{sREC}, v{vB}")
e("s_nop 1")
e(f"s_branch A_rec")
lab(f"A_fini")
e(f"s_mov_b32 s{sCNTA}, s{sT0}")
e(f"s_add_u32 s{sCNT}, s{sT0}, {KB-1}")
lab("A_phb")
e(f"s_sub_u32 s{sT1}, s{sT0}, s{sCNTA}")
e(f"v_readlane_b32 s{sREC}, v{vLB}, s{sT1}")
e("s_nop 1")
e(f"s_branch A_rec")

pT, pM = 48, 56
pJ, pJX, pA, pB, pCNT, pJ4 = 64, 65, 66, 67, 68, 69
SRDO = 20
hA, hB, hP = 12, 13, 8
lab("P_start")
if cfg.PPRIO: e(f"s_setprio {cfg.PPRIO}")
if cfg.CODEPF:
    e("s_getpc_b64 s[40:41]")
    lab("P_pc")
    e(f"s_sub_u32 s40, s40, P_pc-{NAME}_kernel")
    e("s_subb_u32 s41, s41, 0")
    e(f"v_subrev_u32 v70, 256, v0")
    e(f"v_lshlrev_b32 v70, 6, v70")
    e(f"v_min_u32 v70, K_end-{NAME}_kernel-4, v70")
    e("global_load_dword v71, v70, s[40:41]")
e(f"v_subrev_u32 v{pJ}, 256, v0")
e(f"v_lshlrev_b32 v{pJ4}, 2, v{pJ}")
e(f"v_mov_b32 v{pA}, {EMPTY}")
e(f"v_mov_b32 v{pCNT}, 0")
for i in range(3):
    e(f"ds_write_b32 v{pJ4}, v{pA} offset:{L_SLOT + 1024*i}")
e(f"ds_write_b32 v{pJ4}, v{pCNT} offset:{L_CNT}")
e("s_waitcnt lgkmcnt(0)")
e("s_load_dwordx16 s[4:19], s[0:1], 0")
e("s_barrier")
e(f"v_add_u32 v{pB}, 4096, v{pJ4}")
e(f"v_lshlrev_b32 v{pJX}, 16, v{pJ}")
e(f"s_sub_u32 s{sI}, s{sWAVE}, 4")
e(f"s_lshl_b32 s{sT0}, s{sHEAD}, 11")
e(f"s_lshl_b32 s{sT1}, s{sB0}, 3")
e(f"s_add_u32 s{sDS}, s{sT0}, s{sT1}")
e(f"v_lshl_add_u32 v{hA}, v{vLANE}, 8, s{sDS}")
e(f"s_lshl_b32 s{sT0}, s{sHEAD}, 12")
e(f"s_add_u32 s{sT0}, s{sT0}, {TK_OFF}")
e(f"v_mov_b32 v{hP}, -1")
e(f"v_mov_b32 v{hP+1}, -1")
e(f"v_writelane_b32 v{hA}, s{sT0}, 8")
e(f"v_writelane_b32 v{hP}, 0, 8")
e(f"v_writelane_b32 v{hP+1}, 0, 8")
e(f"s_cmp_eq_u32 s{sB0}, 0")
e(f"s_cselect_b32 s{sEQ}, 0x100, 0")
e(f"s_or_b32 s{sEQ}, s{sEQ}, 0xff")
e(f"s_mov_b32 s{sEQ+1}, 0")
e(f"s_mov_b32 s{SRDW+2}, {WS_USED}")
e(f"s_mov_b32 s{SRDW+3}, 0x20000")
e(f"s_lshl_b32 s{sT2}, s{sHEAD}, 3")
for b in range(8):
    e(f"v_mov_b32 v{pM+b}, 0")
for b in range(1, 8):
    e(f"s_mov_b64 {pr(sNL+2*b)}, 0")
e("s_waitcnt lgkmcnt(0)")
e(f"s_load_dwordx8 s[{sC}:{sC+7}], {pr(sCTX)}, 0")
for b in range(8):
    e(f"global_load_dword v{pT+b}, v{pJ4 if b < 4 else pB}, {pr(sBT)} offset:{(b & 3)*1024}")
e(f"s_mov_b32 s{SRDW}, s{sWS}")
e(f"s_and_b32 s{SRDW+1}, s{sWS+1}, 0xffff")
e(f"s_cmp_lg_u32 s{sI}, 0")
e("s_cbranch_scc1 P_noclr")
e(f"s_mov_b64 exec, {pr(sEQ)}")
e(f"buffer_store_dwordx2 v[{hP}:{hP+1}], v{hA}, s[{SRDW}:{SRDW+3}], 0 offen sc1")
e("s_mov_b64 exec, -1")
lab("P_noclr")
e(f"s_add_u32 s{sDBG}, s{sDBG}, s{sT2}")
e(f"s_addc_u32 s{sDBG+1}, s{sDBG+1}, 0")
e("s_waitcnt lgkmcnt(0)")
for b in range(8):
    nblocks(sC+b)
    e(f"s_sub_u32 s{sC+b}, s{sC+b}, {4*KW}")
for b in range(8):
    e(f"v_cmp_gt_i32_e64 {pr(sVAL+2*b)}, s{sC+b}, v{pJ}")
e(f"s_waitcnt vmcnt(1)")
for b in range(7):
    e(f"v_cndmask_b32_e64 v{pT+b}, {-(b+1)}, v{pT+b}, {pr(sVAL+2*b)}")
e(f"s_cmp_eq_u32 s{sI}, 0")
e("s_cbranch_scc1 P_got")
e(f"s_waitcnt vmcnt(0)")
lab("P_got")
e(f"v_cndmask_b32_e64 v{pT+7}, -8, v{pT+7}, {pr(sVAL+14)}")
for b in range(7):
    hi = list(range(7, b, -1))
    for k, b2 in enumerate(hi):
        e(f"v_cmp_eq_u32_e64 {pr(sEQ+2*k)}, v{pT+b}, v{pT+b2}")
    if len(hi) < 3: e(f"s_nop {2-len(hi)}")
    for k, b2 in enumerate(hi):
        e(f"v_addc_co_u32_e64 v{pM+b}, vcc, v{pM+b}, v{pM+b}, {pr(sEQ+2*k)}")
    for k, b2 in enumerate(hi):
        e(f"s_or_b64 {pr(sNL+2*b2)}, {pr(sNL+2*b2)}, {pr(sEQ+2*k)}")
e(f"v_mov_b32 v{pCNT}, 0")
for b in range(8):
    if b: e(f"s_andn2_b64 {pr(sVAL+2*b)}, {pr(sVAL+2*b)}, {pr(sNL+2*b)}")
    e(f"s_bcnt1_i32_b64 s{sT0}, {pr(sVAL+2*b)}")
    e(f"s_or_b32 s{sT0}, s{sT0}, 0x10000")
    e(f"v_writelane_b32 v{pCNT}, s{sT0}, {b}")
e(f"s_lshl_b32 s{sT0}, s{sI}, 2")
e(f"s_add_u32 s{sT0}, s{sT0}, {L_CNT}")
e(f"v_lshl_add_u32 v{pA}, v{vLANE}, 4, s{sT0}")
e(f"s_mov_b64 exec, 0xff")
e(f"ds_write_b32 v{pA}, v{pCNT}")
e(f"s_mov_b64 exec, -1")
for b in range(8):
    e(f"v_lshl_or_b32 v{pM+b}, v{pM+b}, 1, 1")
    e(f"v_lshlrev_b32 v{pM+b}, {24+b}, v{pM+b}")
    e(f"v_or3_b32 v{pT+b}, v{pT+b}, v{pJX}, v{pM+b}")
    e(f"v_mbcnt_lo_u32_b32 v{pM+b}, s{sVAL+2*b}, 0")
    e(f"v_mbcnt_hi_u32_b32 v{pM+b}, s{sVAL+2*b+1}, v{pM+b}")
e(f"v_and_b32 v{pA}, 31, v{vLANE}")
e(f"v_lshlrev_b32 v{pA}, 2, v{pA}")
lab("P_cw")
e(f"ds_read_b32 v{pCNT}, v{pA} offset:{L_CNT}")
e("s_waitcnt lgkmcnt(0)")
e(f"v_cmp_eq_u32 vcc, 0, v{pCNT}")
e("s_cbranch_vccnz P_cw")
e(f"v_and_b32 v{pCNT}, 0xffff, v{pCNT}")
e(f"v_mov_b32 v{pB}, v{pCNT}")
for sh in (1, 2, 4, 8):
    e("s_nop 1")
    e(f"v_add_u32_dpp v{pB}, v{pB}, v{pB} row_shr:{sh} row_mask:0xf bank_mask:0xf bound_ctrl:0")
e("s_nop 1")
e(f"v_add_u32_dpp v{pB}, v{pB}, v{pB} row_bcast:15 row_mask:0xa bank_mask:0xf")
e("s_nop 1")
e(f"v_readlane_b32 s{sN}, v{pB}, 31")
e(f"v_sub_u32 v{pB}, v{pB}, v{pCNT}")
e(f"s_mov_b32 s{sT1}, s{sI}")
for b in range(8):
    e(f"v_readlane_b32 s{sEQ+b}, v{pB}, s{sT1}")
    e(f"s_add_u32 s{sT1}, s{sT1}, 4")
e(f"v_mov_b32 v{pA}, 0")
e(f"v_mov_b32 v{pCNT}, s{sN}")
e(f"ds_write_b32 v{pA}, v{pCNT} offset:{L_N}")
for b in range(8):
    e(f"v_add_lshl_u32 v{pM+b}, v{pM+b}, s{sEQ+b}, 2")
for b in range(8):
    e(f"s_mov_b64 exec, {pr(sVAL+2*b)}")
    e(f"ds_write_b32 v{pM+b}, v{pT+b}")
e(f"s_mov_b64 exec, -1")
prof(1)
e("s_waitcnt vmcnt(0) lgkmcnt(0)")
e(f"s_cmp_lg_u32 s{sI}, 0")
e("s_cbranch_scc1 P_b2")
e(f"s_mov_b32 s{sT2}, 1")
e(f"s_atomic_add s{sT2}, {pr(sDBG)}, 0")
lab("P_b2")
e("s_barrier")

hL16, hFL, hM, hW, hMA = 5, 6, 10, 11, 7
hO0, hO1, hO2, hO3 = 14, 15, 16, 17
hPOLL, hLA, hACC = 18, 19, 20
hQ = 24
hD = 40
hR = 72
hNEG, hMN, hP2, hSA = 4, 80, 2, 81
hML2 = 82
hBIG, hV = 84, 85
hsU, hsDONE, hsO, hsT, hsNEW, hsCNT, hsW = 32, 33, 34, 35, 36, 38, 39
hsIX = 40
e(f"v_lshlrev_b32 v{hL16}, 4, v{vLANE}")
e(f"v_mov_b32 v{hBIG}, 0x40000000")
e(f"v_cmp_gt_u32 vcc, 48, v{vLANE}")
e(f"v_and_b32 v{hM}, 3, v{vLANE}")
e(f"v_lshlrev_b32 v{hM}, 2, v{hM}")
e(f"v_cndmask_b32 v{hFL}, v{hBIG}, v{hL16}, vcc")
e(f"v_min_u32 v{hL16}, 752, v{hL16}")
e(f"s_mul_i32 s{sT0}, s{sI}, {2*RS}")
e(f"v_add_u32 v{hSA}, s{sT0}, v{hL16}")
e(f"s_lshl_b32 s{sT0}, s{sI}, 4")
e(f"v_mov_b32 v{hW}, s{sT0}")
e(f"s_lshl_b32 s{sT0}, s{sHEAD}, 3")
e(f"s_lshl_b32 s{sT1}, s{sI}, 1")
e(f"s_add_u32 s{sT0}, s{sT0}, s{sT1}")
e(f"s_lshl_b32 s{sT0}, s{sT0}, 3")
e(f"s_add_u32 s{sT0}, s{sT0}, s{sB0}")
e(f"s_mul_i32 s{hsO}, s{sT0}, 768")
e(f"s_add_u32 s{hsO}, s{hsO}, {O_OFF}")
e(f"s_add_u32 s{hsT}, s{hsO}, {8*768}")
e(f"s_cmp_eq_u32 s{sT1}, s{sB0}")
e(f"s_cselect_b32 s{hsO}, 0x{OOB:x}, s{hsO}")
e(f"s_add_u32 s{sT2}, s{sT1}, 1")
e(f"s_cmp_eq_u32 s{sT2}, s{sB0}")
e(f"s_cselect_b32 s{hsT}, 0x{OOB:x}, s{hsT}")
e(f"s_lshl_b32 s{sT1}, s{sT1}, 8")
e(f"s_add_u32 s{sDS}, s{sDS}, s{sT1}")
e(f"v_lshlrev_b32 v{hPOLL}, 8, v{vLANE}")
e(f"s_cmp_lg_u32 s{sI}, 0")
e("s_cbranch_scc1 H_wa0")
e(f"s_mov_b32 s{sSPIN}, 0")
lab("H_chk")
e(f"s_mov_b32 s{sT2}, 0")
e(f"s_atomic_add s{sT2}, {pr(sDBG)}, 0 glc")
e(f"s_add_u32 s{sSPIN}, s{sSPIN}, 1")
e("s_waitcnt lgkmcnt(0)")
e(f"s_cmp_ge_u32 s{sT2}, 8")
e(f"s_cbranch_scc1 H_chkok")
e(f"s_cmp_ge_u32 s{sSPIN}, {SPIN_MAX >> 1}")
e(f"s_cbranch_scc1 H_chkok")
e("s_sleep 32")
e(f"s_branch H_chk")
lab("H_chkok")
e(f"v_mov_b32 v{hA}, 0")
e(f"v_mov_b32 v{hB}, 1")
e(f"ds_write_b32 v{hA}, v{hB} offset:{L_OK}")
lab("H_wa0")
if cfg.NOHELP: e("s_endpgm")
def lds_wait(name, off, sleep):
    e(f"s_mov_b32 s{sSPIN}, 0")
    lab(name)
    e(f"ds_read_b32 v{hB}, v{hM} offset:{off}")
    e(f"s_add_u32 s{sSPIN}, s{sSPIN}, 1")
    e("s_waitcnt lgkmcnt(0)")
    e(f"v_cmp_eq_u32 vcc, 0, v{hB}")
    e(f"s_cmp_ge_u32 s{sSPIN}, {1 << 26}")
    e(f"s_cbranch_scc1 {name}_ok")
    if sleep:
        e(f"s_cbranch_vccz {name}_ok")
        e(f"s_sleep {sleep}")
        e(f"s_branch {name}")
    else:
        e(f"s_cbranch_vccnz {name}")
    lab(f"{name}_ok")
lds_wait("H_wa", L_FA, cfg.HSLEEP)
prof(2)
for w in range(4):
    e(f"ds_read_b128 v[{hQ+4*w}:{hQ+4*w+3}], v{hW} offset:{L_STGML + 64*w}")
for c in range(2):
    for w in range(4):
        e(f"ds_read_b128 v[{hD+16*c+4*w}:{hD+16*c+4*w+3}], v{hSA} offset:{L_STG + WSZ*w + RS*c}")
e("s_waitcnt lgkmcnt(8)")
for c in range(2):
    m = [hQ+4*w+2*c for w in range(4)]
    M, L = (hA, hB) if c == 0 else (hMA, hLA)
    e(f"v_max3_f32 v{M}, v{m[0]}, v{m[1]}, v{m[2]}")
    e(f"v_max_f32 v{M}, v{M}, v{m[3]}")
    for w in range(4): e(f"v_sub_f32 v{m[w]}, v{m[w]}, v{M}")
    for w in range(4): e(f"v_exp_f32 v{m[w]}, v{m[w]}")
    e(f"v_mul_f32 v{L}, v{m[0]}, v{m[0]+1}")
    for w in range(1, 4): e(f"v_fmac_f32 v{L}, v{m[w]}, v{m[w]+1}")
    e(f"v_and_b32 v{L}, 0x7fffffff, v{L}")
    e(f"v_cmp_lt_f32 vcc, 0, v{L}")
    e(f"s_waitcnt lgkmcnt({4-4*c})")
    for i in range(4): e(f"v_mul_f32 v{hR+4*c+i}, v{m[0]}, v{hD+16*c+i}")
    e(f"v_cndmask_b32 v{hV}, v{hBIG}, v{hFL}, vcc")
    for w in range(1, 4):
        for i in range(4): e(f"v_fmac_f32 v{hR+4*c+i}, v{m[w]}, v{hD+16*c+4*w+i}")
    e(f"buffer_store_dwordx4 v[{hR+4*c}:{hR+4*c+3}], v{hV}, s[{SRDW}:{SRDW+3}], s{hsO if c == 0 else hsT} offen sc1")
e(f"v_cmp_eq_u32 vcc, 0, v{vLANE}")
e("s_nop 1")
e(f"v_cndmask_b32 v{hML2}, v{hMA}, v{hA}, vcc")
e(f"v_cndmask_b32 v{hML2+1}, v{hLA}, v{hB}, vcc")
e("s_waitcnt vmcnt(0)")
e("s_mov_b64 exec, 3")
e(f"buffer_store_dwordx2 v[{hML2}:{hML2+1}], v{hPOLL}, s[{SRDW}:{SRDW+3}], s{sDS} offen sc1")
e("s_mov_b64 exec, -1")
e(f"s_cmp_eq_u32 s{sI}, 0")
e("s_cbranch_scc1 H_start")
e("s_endpgm")

lab("H_start")
prof(3)
e(f"v_and_b32 v{hPOLL}, 7, v{vLANE}")
e(f"v_lshlrev_b32 v{hPOLL}, 3, v{hPOLL}")
e(f"s_lshl_b32 s{sT1}, s2, 8")
e(f"buffer_load_dwordx2 v[{hP2}:{hP2+1}], v{hPOLL}, s[{SRDW}:{SRDW+3}], s{sT1} offen sc1")
e(f"s_mov_b32 s{SRDO}, s{sOUT}")
e(f"s_and_b32 s{SRDO+1}, s{sOUT+1}, 0xffff")
e(f"s_mov_b32 s{SRDO+2}, 98304")
e(f"s_mov_b32 s{SRDO+3}, 0x20000")
e(f"v_cmp_gt_u32 vcc, 48, v{vLANE}")
e(f"v_lshrrev_b32 v{hB}, 2, v{vLANE}")
e(f"v_and_b32 v{hW}, 3, v{vLANE}")
e(f"v_cndmask_b32_e64 v{hA}, v{hBIG}, 0, vcc")
e(f"v_lshl_add_u32 v{hO0}, v{hW}, 5, v{hB}")
e(f"v_lshl_add_u32 v{hO1}, v{hW}, 4, v{hB}")
e(f"v_add_u32 v{hO1}, 120, v{hO1}")
e(f"v_cmp_gt_u32 vcc, 8, v{hB}")
e(f"v_mov_b32 v{hO2}, 8")
e(f"v_mov_b32 v{hO3}, 16")
e(f"v_cndmask_b32 v{hO0}, v{hO1}, v{hO0}, vcc")
e(f"v_cndmask_b32 v{hO3}, v{hO2}, v{hO3}, vcc")
e(f"v_lshl_add_u32 v{hO0}, v{hO0}, 1, v{hA}")
e(f"v_add_u32 v{hO1}, v{hO0}, v{hO3}")
e(f"v_add_u32 v{hO2}, v{hO1}, v{hO3}")
e(f"v_add_u32 v{hO3}, v{hO2}, v{hO3}")
e(f"v_mov_b32 v{hNEG}, 0x{NEG:08x}")
e(f"v_mov_b32 v{hMA}, v{hNEG}")
e(f"v_mov_b32 v{hLA}, 0")
for i in range(4): e(f"v_mov_b32 v{hACC+i}, 0")
e(f"s_mul_i32 s{hsO}, s2, {8*768}")
e(f"s_add_u32 s{hsO}, s{hsO}, {O_OFF}")
e(f"s_lshl_b32 s{hsDONE}, 0x1010101, s{sB0}")
e(f"s_mov_b32 s{sSPIN}, 0")
e("s_branch H_poll2")
lab("H_poll")
e(f"buffer_load_dwordx2 v[{hP2}:{hP2+1}], v{hPOLL}, s[{SRDW}:{SRDW+3}], s{sT1} offen sc1")
lab("H_poll2")
e(f"s_add_u32 s{sSPIN}, s{sSPIN}, 1")
e(f"s_cmp_ge_u32 s{sSPIN}, {SPIN_MAX}")
e("s_cbranch_scc1 H_gath")
e("s_waitcnt vmcnt(0)")
e(f"v_cmp_le_i32_e64 {pr(hsNEW)}, 0, v{hP2+1}")
e(f"v_cmp_lt_f32 vcc, 0, v{hP2+1}")
e("s_nop 1")
e(f"s_andn2_b32 s{hsU}, vcc_lo, s{hsDONE}")
e(f"s_or_b32 s{hsDONE}, s{hsDONE}, s{hsNEW}")
e(f"s_mov_b32 s{hsNEW}, s{hsU}")
e(f"s_mov_b32 s{hsNEW+1}, s{hsU}")
e(f"s_and_b32 s{hsU}, s{hsU}, 0xff")
e("s_cbranch_scc0 H_next")
e(f"s_bcnt1_i32_b32 s{hsCNT}, s{hsU}")
for i in range(7):
    e(f"s_ff1_i32_b32 s{hsIX+i}, s{hsU}")
    e(f"s_bitset0_b32 s{hsU}, s{hsIX+i}")
    e(f"s_mul_i32 s{hsT}, s{hsIX+i}, 768")
    e(f"s_add_u32 s{hsT}, s{hsT}, s{hsO}")
    e(f"buffer_load_dwordx4 v[{hD+4*i}:{hD+4*i+3}], v{hFL}, s[{SRDW}:{SRDW+3}], s{hsT} offen sc1")
    if i < 6:
        e(f"s_cmp_eq_u32 s{hsU}, 0")
        e("s_cbranch_scc1 H_iss")
lab("H_iss")
e(f"v_cndmask_b32_e64 v{hP}, v{hNEG}, v{hP2}, {pr(hsNEW)}")
e(f"v_cndmask_b32_e64 v{hP+1}, 0, v{hP2+1}, {pr(hsNEW)}")
e(f"buffer_load_dwordx2 v[{hP2}:{hP2+1}], v{hPOLL}, s[{SRDW}:{SRDW+3}], s{sT1} offen sc1")
e(f"v_max_f32 v{hMN}, v{hP}, v{hMA}")
for sh in (4, 2, 1):
    e("s_nop 1")
    e(f"v_max_f32_dpp v{hMN}, v{hMN}, v{hMN} row_ror:{sh} row_mask:0xf bank_mask:0xf")
e(f"v_sub_f32 v{hW}, v{hP}, v{hMN}")
e(f"v_sub_f32 v{hMA}, v{hMA}, v{hMN}")
e(f"v_exp_f32 v{hW}, v{hW}")
e(f"v_exp_f32 v{hQ}, v{hMA}")
e(f"v_mov_b32 v{hMA}, v{hMN}")
e(f"v_mul_f32 v{hMN}, v{hW}, v{hP+1}")
for sh in (4, 2, 1):
    e("s_nop 1")
    e(f"v_add_f32_dpp v{hMN}, v{hMN}, v{hMN} row_ror:{sh} row_mask:0xf bank_mask:0xf")
e(f"v_fma_f32 v{hLA}, v{hLA}, v{hQ}, v{hMN}")
for i in range(4): e(f"v_mul_f32 v{hACC+i}, v{hACC+i}, v{hQ}")
e("s_waitcnt vmcnt(1)")
for i in range(7):
    e(f"v_readlane_b32 s{hsW}, v{hW}, s{hsIX+i}")
    e(f"s_cmp_eq_u32 s{hsCNT}, {i+1}")
    e("s_nop 0")
    for r in range(4):
        e(f"v_fmac_f32 v{hACC+r}, s{hsW}, v{hD+4*i+r}")
    if i < 6: e("s_cbranch_scc1 H_next2")
lab("H_next2")
e(f"s_cmp_eq_u32 s{hsDONE}, -1")
e("s_cbranch_scc0 H_poll2")
e("s_branch H_gath")
lab("H_next")
e(f"s_cmp_eq_u32 s{hsDONE}, -1")
e("s_cbranch_scc0 H_poll")
lab("H_gath")
prof(4)
e(f"s_lshl_b32 s{sT0}, s{sB0}, 5")
e(f"s_add_u32 s{sT0}, s{sT0}, s{sHEAD}")
e(f"s_mul_i32 s{sT0}, s{sT0}, 384")
e(f"v_mov_b32 v{hPOLL}, 0")
lds_wait("H_wb", L_FB, 0)
prof(5)
e(f"ds_read_b128 v[{hQ}:{hQ+3}], v{hPOLL} offset:{L_STBML}")
e(f"ds_read_b128 v[{hQ+4}:{hQ+7}], v{hPOLL} offset:{L_STBML+16}")
for w in range(4):
    e(f"ds_read_b128 v[{hD+4*w}:{hD+4*w+3}], v{hL16} offset:{L_STB + 768*w}")
e("s_waitcnt lgkmcnt(4)")
e(f"v_max3_f32 v{hW}, v{hQ}, v{hQ+2}, v{hMA}")
e(f"v_max3_f32 v{hW}, v{hQ+4}, v{hQ+6}, v{hW}")
e(f"v_sub_f32 v{hMA}, v{hMA}, v{hW}")
for w in range(4):
    e(f"v_sub_f32 v{hQ+2*w}, v{hQ+2*w}, v{hW}")
e(f"v_exp_f32 v{hMA}, v{hMA}")
for w in range(4):
    e(f"v_exp_f32 v{hQ+2*w}, v{hQ+2*w}")
e(f"v_mul_f32 v{hLA}, v{hLA}, v{hMA}")
for w in range(4):
    e(f"v_fmac_f32 v{hLA}, v{hQ+2*w}, v{hQ+2*w+1}")
for i in range(4):
    e(f"v_mul_f32 v{hACC+i}, v{hACC+i}, v{hMA}")
e(f"v_rcp_f32 v{hLA}, v{hLA}")
e("s_waitcnt lgkmcnt(0)")
for w in range(4):
    for i in range(4):
        e(f"v_fmac_f32 v{hACC+i}, v{hQ+2*w}, v{hD+4*w+i}")
for i in range(4):
    e(f"v_mul_f32 v{hACC+i}, v{hACC+i}, v{hLA}")
e(f"v_cvt_pk_bf16_f32 v{hA}, v{hACC}, v{hACC+1}")
e(f"v_cvt_pk_bf16_f32 v{hB}, v{hACC+2}, v{hACC+3}")
e(f"buffer_store_short v{hA}, v{hO0}, s[{SRDO}:{SRDO+3}], s{sT0} offen")
e(f"buffer_store_short_d16_hi v{hA}, v{hO1}, s[{SRDO}:{SRDO+3}], s{sT0} offen")
e(f"buffer_store_short v{hB}, v{hO2}, s[{SRDO}:{SRDO+3}], s{sT0} offen")
e(f"buffer_store_short_d16_hi v{hB}, v{hO3}, s[{SRDO}:{SRDO+3}], s{sT0} offen")
prof(6)
prof(7)
dump_prof()
if cfg.STAMPS and not cfg.MIDST:
    e("s_waitcnt vmcnt(0)")
    e(f"s_memrealtime {pr(sST+2)}")
    dump_stamps()
e("s_endpgm")
lab("K_end")

raw('.section .rodata,"a"')
raw(f""".p2align 6
.amdhsa_kernel {NAME}_kernel
  .amdhsa_next_free_vgpr {NFV}
  .amdhsa_next_free_sgpr 102
  .amdhsa_accum_offset {ACC}
  .amdhsa_group_segment_fixed_size 0
  .amdhsa_kernarg_size 64
  .amdhsa_user_sgpr_count 2
  .amdhsa_user_sgpr_kernarg_segment_ptr 1
  .amdhsa_system_sgpr_workgroup_id_x 1
.end_amdhsa_kernel""")
open(sys.argv[1], 'w').write("\n".join(out) + "\n")
print("LDS", LDS_BYTES, "NV", NV, "NFV", NFV)
```

```python
import sys, struct, math
NAME = "standalone__paged_block_table_kv_radixattention__sampling"
KV_BYTES = 1152*196608
def f2u(x): return struct.unpack('<I', struct.pack('<f', x))[0]
C2 = (192 ** -0.5) * math.log2(math.e)
NEG = f2u(-3e38)

class Cfg:
    KP = 2
    KB = 2
    STAMPS = False
    MIDST = False
    PROF = False
    F = 30
    HSLEEP = 4
    PPRIO = 3
    NOUT = 6
    NK = [7,7,7,6,6,6]
    NVL = [6,6,6,7,7,7,7,8]
    KSPLIT = 2
    NOHELP = 0
    CODEPF = 1
    TOK = 1
    BADD = 0
    LADD = 0
    PSLEEP = 0
    WT = 1
    HALVES = 0
cfg = Cfg()
for a in sys.argv[2:]:
    k, v = a.split('=')
    assert hasattr(cfg, k), k
    setattr(cfg, k, eval(v))
KP, KB = cfg.KP, cfg.KB
NKL = cfg.NK if cfg.NK else [cfg.NOUT]*6
NVL = cfg.NVL if cfg.NVL else [cfg.NOUT]*8
if isinstance(NKL, int): NKL = [NKL]*6
if isinstance(NVL, int): NVL = [NVL]*8
KW = KP + KB
TOFF = (0, 1, 8, 9) if cfg.TOK == 0 else (0, 4, 8, 12)
O_OFF = 0
RW = 896
TK_OFF = 256*8*RW
WS_USED = TK_OFF + 32*4096
SPIN_MAX = 1 << 17
OOB = 0xF0000000
EMPTY, DONE = -1, -2
RS, WSZ = 784, 8*784
L_CNT = 8192
L_N = 8320
L_FA = 8336
L_FB = 8352
L_OK = 8368
L_Z = 8384
L_SLOT = 9216
L_STB = 12288
L_STBML = L_STB + 4*768
L_STGML = L_STBML + 64
L_STG = L_STGML + 256
LDS_BYTES = L_STG + 4*WSZ

out = []
def e(s): out.append("    " + s)
def lab(s): out.append(s + ":")
def raw(s): out.append(s)
def pr(a): return f"s[{a}:{a+1}]"

hdr = open('cdna_kernels/%s.s.ref' % NAME).read().split('\n')
for l in hdr:
    if l.startswith('; Override') or l.startswith('; grid=') or l.startswith('; @launch'): continue
    if not l.startswith(';'): break
    raw(l)
raw(f"; @launch grid=(256,1,1) block=(512,1,1) lds={LDS_BYTES}")
raw('.amdgcn_target "amdgcn-amd-amdhsa--gfx950"')
raw('.text')
raw(f".globl {NAME}_kernel\n.p2align 8\n.type {NAME}_kernel,@function")
lab(f"{NAME}_kernel")

sQ, sK, sV, sBT, sCTX, sOUT, sDBG, sWS = 4, 6, 8, 10, 12, 14, 16, 18
SRDK, SRDV, SRDW = 20, 24, 28
sWAVE, sHOFF, sB0, sN, sDS, sCNT, sI, sT0, sT1, sT2, sHEAD, sTK = 86, 87, 88, 89, 90, 91, 92, 93, 94, 95, 96, 97
sST = 98
sP0 = 3
sTKB = 6
sSPIN = 8
sREC, sLF, sCNTA = 32, 33, 34
sHF, sH0, sCUR = 44, 45, 46
PHM = 0x3fff if cfg.HALVES else 0xffff
sJW, sPW = 36, 68
sMK = 48
sA = 50
sJ16 = 58
sTKO = 59
sO = 60
sC2, sSELLO, sSELHI = 64, 65, 66
sBM = 76
sC = 32
sVAL = 40
sNL = 56
sEQ = 72
vLANE, vC, vG = 1, 2, 3
vOK, vOV4, vOV2, vCTXM, vLIST, vM, vMC, vL, vNINF, vLIM, vMX, vA, vB, vPO = 4, 5, 6, 7, 8, 9, 10, 11, 12, 13, 14, 15, 42, 43
vQ = 16
vC1, vC2 = 28, 32
vS = 36
vP = 40
vX = 44
vO = 48
vT = 96
vMA, vLB, vSB = 120, 122, 123
vV = 124
NV = 148 + (1 if cfg.PROF else 0)
vPROF = NV-1
ACC = (NV + 3)//4*4
NFV = ACC + 24

def prof(n):
    if not cfg.PROF: return
    e('s_memtime s[100:101]')
    e('s_waitcnt lgkmcnt(0)')
    e(f'v_writelane_b32 v{vPROF}, s100, {n}')
ADD = [0]
def thr(n):
    if n: e(f"s_waitcnt vmcnt({n-1})")
def k_loads(lo=0, hi=6, t=0):
    for k in range(lo, hi):
        u, s = k // 3, k % 3
        r = u*12 + s*4
        thr(NKL[k] + ADD[0] if t else 0)
        e(f"buffer_load_dwordx4 a[{r}:{r+3}], v{vOK}, s[{SRDK}:{SRDK+3}], s{sO+2*u} offen offset:{128*s} nt")
def v_load1(k, t=0):
    i = k // 2
    thr(NVL[k] + ADD[0] if t else 0)
    if k % 2 == 0:
        r = vV + i*4
        e(f"buffer_load_dwordx4 v[{r}:{r+3}], v{vOV4}, s[{SRDV}:{SRDV+3}], s{sO+i} offen nt")
    else:
        r = vV + 16 + i*2
        e(f"buffer_load_dwordx2 v[{r}:{r+1}], v{vOV2}, s[{SRDV}:{SRDV+3}], s{sO+i} offen offset:256 nt")
def soffs():
    for i in range(1, 4):
        e(f"s_add_u32 s{sO+i}, s{sO}, {TOFF[i]*12288}")
def xreduce(op, reg, dst=None):
    for sw in ("v_permlane32_swap_b32", "v_permlane16_swap_b32"):
        e(f"v_mov_b32 v{vA}, v{reg}")
        e(f"v_mov_b32 v{vB}, v{reg}")
        e("s_nop 1")
        e(f"{sw} v{vA}, v{vB}")
        e("s_nop 1")
        if dst is not None: reg = dst
        e(f"{op} v{reg}, v{vA}, v{vB}")
def nblocks(r):
    e(f"s_cmp_lt_i32 s{r}, 1")
    e(f"s_cselect_b32 s{r}, 0x1000, s{r}")
    e(f"s_min_i32 s{r}, s{r}, 0x1000")
    e(f"s_add_u32 s{r}, s{r}, 15")
    e(f"s_lshr_b32 s{r}, s{r}, 4")
chk_n = [0]
def started_check():
    n = chk_n[0]; chk_n[0] += 1
    e(f"v_mov_b32 v{vB}, 0")
    lab(f"A_chk{n}")
    e(f"ds_read_b32 v{vLIM}, v{vB} offset:{L_OK}")
    e("s_waitcnt lgkmcnt(0)")
    e(f"v_cmp_eq_u32 vcc, 0, v{vLIM}")
    e(f"s_cbranch_vccnz A_chk{n}")
def dump_prof():
    if cfg.PROF:
        e("s_mov_b64 exec, -1")
        e(f"s_mul_i32 s{sT0}, s2, 5")
        e(f"s_add_u32 s{sT0}, s{sT0}, s{sWAVE}")
        e(f"s_lshl_b32 s{sT0}, s{sT0}, 8")
        e(f"s_add_u32 s{sT0}, s{sT0}, 0x2000000")
        e(f"v_lshl_add_u32 v{vX}, v{vLANE}, 2, s{sT0}")
        e(f"global_store_dword v{vX}, v{vPROF}, {pr(sWS)}")
def dump_stamps():
    e("s_mov_b64 exec, -1")
    e("s_waitcnt lgkmcnt(0)")
    e(f"s_add_u32 s{sWS}, s{sWS}, 0x20000000")
    e(f"s_addc_u32 s{sWS+1}, s{sWS+1}, 0")
    e(f"s_lshl_b32 s{sT0}, s2, 4")
    e(f"v_mov_b32 v{vX}, s{sT0}")
    for i in range(4): e(f"v_mov_b32 v{vS+i}, s{sST+i}")
    e("s_mov_b64 exec, 1")
    e(f"global_store_dwordx4 v{vX}, v[{vS}:{vS+3}], {pr(sWS)}")

e("s_cmp_ge_u32 s2, 256")
e("s_cbranch_scc1 A_end")
if cfg.STAMPS: e(f"s_memrealtime {pr(sST)}")
prof(0)
e(f"v_lshrrev_b32 v{vA}, 6, v0")
e(f"v_and_b32 v{vLANE}, 63, v0")
e(f"v_readfirstlane_b32 s{sWAVE}, v{vA}")
e(f"s_lshr_b32 s{sHEAD}, s2, 3")
e(f"s_and_b32 s{sB0}, s2, 7")
e(f"s_cmp_ge_u32 s{sWAVE}, 4")
e("s_cbranch_scc1 P_start")
e("s_load_dwordx16 s[4:19], s[0:1], 0")
e(f"v_and_b32 v{vC}, 15, v0")
e(f"v_lshrrev_b32 v{vG}, 4, v{vLANE}")
e(f"s_lshl_b32 s{sTKO}, s{sHEAD}, 12")
e(f"s_add_u32 s{sTKO}, s{sTKO}, {TK_OFF}")
e(f"s_mul_i32 s{sHOFF}, s{sHEAD}, 384")
e(f"s_lshl_b32 s{sT2}, s{sB0}, 2")
e(f"s_lshl_b32 s{sT0}, s{sB0}, 10")
if cfg.TOK == 0:
    e(f"v_lshrrev_b32 v{vOK}, 1, v{vC}")
else:
    e(f"v_and_b32 v{vOK}, 2, v{vC}")
    e(f"v_lshrrev_b32 v{vA}, 2, v{vC}")
    e(f"v_lshl_add_u32 v{vOK}, v{vOK}, 1, v{vA}")
e(f"v_mul_u32_u24 v{vOK}, 12288, v{vOK}")
e(f"v_lshl_add_u32 v{vOK}, v{vG}, 5, v{vOK}")
e(f"v_and_b32 v{vA}, 1, v{vC}")
e(f"v_lshl_add_u32 v{vOK}, v{vA}, 4, v{vOK}")
e(f"v_mul_u32_u24 v{vA}, {24576 if cfg.TOK == 0 else 12288}, v{vG}")
e(f"v_lshl_add_u32 v{vOV4}, v{vC}, 4, v{vA}")
e(f"v_lshl_add_u32 v{vOV2}, v{vC}, 3, v{vA}")
e(f"v_and_b32 v{vX}, 7, v{vC}")
e(f"v_mul_u32_u24 v{vX+1}, 12288, v{vX}")
e(f"v_lshl_add_u32 v{vX+1}, v{vG}, 5, v{vX+1}")
e(f"v_lshrrev_b32 v{vX+3}, 3, v{vC}")
e(f"v_lshl_add_u32 v{vX+1}, v{vX+3}, 4, v{vX+1}")
e(f"v_add_u32 v{vX+1}, s{sHOFF}, v{vX+1}")
e(f"s_mul_i32 s{sT1}, s{sWAVE}, {WSZ}")
e(f"v_mul_u32_u24 v{vPO}, {RS}, v{vX}")
e(f"v_lshl_add_u32 v{vPO}, v{vX+3}, 6, v{vPO}")
e(f"v_lshl_add_u32 v{vPO}, v{vG}, 4, v{vPO}")
e(f"v_add_u32 v{vPO}, s{sT1}, v{vPO}")
e(f"v_lshlrev_b32 v{vX}, 2, v{vX}")
for srd in (SRDK, SRDV):
    e(f"s_mov_b32 s{srd+2}, {KV_BYTES}")
    e(f"s_mov_b32 s{srd+3}, 0x20000")
e("s_barrier")
e("s_waitcnt lgkmcnt(0)")
prof(1)
e(f"s_load_dword s{sT1}, {pr(sCTX)}, s{sT2}")
e(f"global_load_dword v{vCTXM}, v{vX}, {pr(sCTX)}")
for s in range(3):
    e(f"global_load_dwordx4 v[{vQ+4*s}:{vQ+4*s+3}], v{vX+1}, {pr(sQ)} offset:{128*s}")
for srd, base in ((SRDK, sK), (SRDV, sV)):
    e(f"s_mov_b32 s{srd}, s{base}")
    e(f"s_and_b32 s{srd+1}, s{base+1}, 0xffff")
e(f"s_add_u32 s{sTKB}, s{sWS}, s{sTKO}")
e(f"s_addc_u32 s{sTKB+1}, s{sWS+1}, 0")
e(f"s_mov_b32 s{sC2}, 0x{f2u(C2):08x}")
e(f"s_mov_b32 s{sSELLO}, 0x05040100")
e(f"s_mov_b32 s{sSELHI}, 0x07060302")
e(f"v_mov_b32 v{vM}, 0x{NEG:08x}")
e(f"v_mul_f32 v{vMC}, s{sC2}, v{vM}")
e(f"v_mov_b32 v{vL}, 0")
e(f"v_mov_b32 v{vNINF}, 0xff800000")
e(f"v_mov_b32 v{vLIST}, 0")
e(f"v_mov_b32 v{vLB}, 0")
for i in range(24):
    e(f"v_mov_b32 v{vO+i}, 0")
e("s_waitcnt lgkmcnt(0)")
prof(2)
nblocks(sT1)
e(f"s_sub_u32 s{sT1}, s{sT1}, s{sWAVE}")
kk_of = [KB + k for k in range(KP)] + list(range(KB))
for k in range(KW):
    e(f"s_sub_u32 s{sJW+k}, s{sT1}, {1+4*kk_of[k]}")
    e(f"s_max_i32 s{sT2}, s{sJW+k}, 0")
    e(f"s_lshl_b32 s{sT2}, s{sT2}, 2")
    e(f"s_add_u32 s{sT2}, s{sT2}, s{sT0}")
    e(f"s_load_dword s{sPW+k}, {pr(sBT)}, s{sT2}")
e("s_waitcnt lgkmcnt(0)")
prof(3)
e(f"s_and_b32 s{sT1}, s{sPW}, 0xffff")
e(f"s_mul_i32 s{sT1}, s{sT1}, 196608")
e(f"s_add_u32 s{sT1}, s{sT1}, s{sHOFF}")
e(f"s_cmp_ge_i32 s{sJW}, 0")
e(f"s_cselect_b32 s{sO}, s{sT1}, 0x{OOB:x}")
soffs()
k_loads()
for k in range(8): v_load1(k)
prof(4)
e(f"s_lshl_b32 s{sT0}, 0x1000000, s{sB0}")
for k in range(KW):
    dst = sREC if k == 0 else sPW+k
    e(f"s_and_b32 s{sT1}, s{sPW+k}, 0x{PHM:x}")
    e(f"s_lshl_b32 s{sT2}, s{sJW+k}, 16")
    e(f"s_or_b32 s{sT1}, s{sT1}, s{sT2}")
    e(f"s_or_b32 s{sT1}, s{sT1}, s{sT0}")
    e(f"s_cmp_ge_i32 s{sJW+k}, 0")
    e(f"s_cselect_b32 s{dst}, s{sT1}, 0")
    if 0 < k < KP: e(f"v_writelane_b32 v{vLIST}, s{dst}, {k}")
    if k >= KP: e(f"v_writelane_b32 v{vLB}, s{dst}, {k-KP}")
for i in range(24, 48):
    e(f"v_mov_b32 v{vO+i}, 0")
e(f"s_lshl_b32 s{sBM}, 0x10001, s{sB0}")
e(f"s_mov_b32 s{sBM+1}, s{sBM}")
e(f"s_mul_i32 s{sT1}, s{sWAVE}, 768")
e(f"v_lshl_add_u32 v{vSB}, v{vG}, 4, s{sT1}")
e(f"s_waitcnt vmcnt(14)")
e(f"v_cmp_gt_i32 vcc, 1, v{vCTXM}")
e(f"v_mov_b32 v{vA}, 0x1000")
e(f"v_lshlrev_b32 v{vB}, {1 if cfg.TOK == 0 else 0}, v{vG}")
e(f"v_cndmask_b32 v{vCTXM}, v{vCTXM}, v{vA}, vcc")
for i in range(12):
    e(f"v_cndmask_b32_e64 v{vQ+i}, v{vQ+i}, 0, vcc")
e(f"v_sub_u32 v{vCTXM}, v{vCTXM}, v{vB}")
e(f"s_mov_b32 s{sI}, 0")
e(f"s_mov_b32 s{sLF}, 0")
e(f"s_mov_b32 s{sCNT}, 0x7fffffff")
e(f"s_mov_b32 s{sCNTA}, 0x7fffffff")
e(f"s_mov_b32 s{sDS}, {KP+1}")

def perm(t):
    if t < 8:
        q_, hsel = t >> 1, t & 1
        regs = [vV + i*4 + q_ for i in range(4)]
    else:
        q_, hsel = (t-8) >> 1, t & 1
        regs = [vV + 16 + i*2 + q_ for i in range(4)]
    sel = sSELHI if hsel else sSELLO
    e(f"v_perm_b32 v{vT+2*t}, v{regs[1]}, v{regs[0]}, s{sel}")
    e(f"v_perm_b32 v{vT+2*t+1}, v{regs[3]}, v{regs[2]}, s{sel}")
def pv(t):
    e(f"v_mfma_f32_16x16x16_bf16 v[{vO+4*t}:{vO+4*t+3}], v[{vT+2*t}:{vT+2*t+1}], v[{vP}:{vP+1}], v[{vO+4*t}:{vO+4*t+3}]")
def body(tag, last, phb=False):
    N = cfg.NOUT
    e(f"s_bfe_u32 s{sJ16}, s{sREC}, 0x80010")
    e(f"s_lshl_b32 s{sJ16}, s{sJ16}, 4")
    e(f"s_lshr_b32 s{sMK}, s{sREC}, 24")
    e(f"s_mul_i32 s{sMK}, s{sMK}, 0x10001")
    e(f"s_mov_b32 s{sMK+1}, s{sMK}")
    hv = cfg.HALVES and not phb and not last
    if hv: e(f"s_mov_b32 s{sCUR}, s{sREC}")
    if phb:
        e(f"s_sub_u32 s{sT1}, s{sI}, s{sCNTA}")
        e(f"s_add_u32 s{sT1}, s{sT1}, 1")
        e(f"v_readlane_b32 s{sREC}, v{vLB}, s{sT1}")
        e("s_nop 1")
    elif not last:
        e(f"s_add_u32 s{sT0}, s{sI}, 1")
        e(f"v_readlane_b32 s{sREC}, v{vLIST}, s{sT0}")
        e(f"s_add_u32 s{sT1}, s{sT0}, 1")
        e(f"s_cmp_ge_u32 s{sT1}, s{sDS}")
        e(f"s_cbranch_scc1 A_dyn")
        lab("A_rec")
    if not last:
        e(f"s_and_b32 s{sT1}, s{sREC}, 0x{PHM:x}")
        e(f"s_mul_i32 s{sT1}, s{sT1}, 196608")
        e(f"s_add_u32 s{sT1}, s{sT1}, s{sHOFF}")
        e(f"s_cmp_lg_u32 s{sREC}, 0")
        e(f"s_cselect_b32 s{sO}, s{sT1}, 0x{OOB:x}")
        soffs()
        if cfg.HALVES and not phb:
            e(f"s_bitcmp1_b32 s{sREC}, 15")
            e(f"s_cselect_b32 s{sO}, 0x{OOB:x}, s{sO}")
            e(f"s_cselect_b32 s{sO+1}, 0x{OOB:x}, s{sO+1}")
            e(f"s_bitcmp1_b32 s{sREC}, 14")
            e(f"s_cselect_b32 s{sO+2}, 0x{OOB:x}, s{sO+2}")
            e(f"s_cselect_b32 s{sO+3}, 0x{OOB:x}, s{sO+3}")
    e(f"v_subrev_u32 v{vLIM}, s{sJ16}, v{vCTXM}")
    e(f"v_cndmask_b32_e64 v{vLIM}, 0, v{vLIM}, {pr(sMK)}")
    for i, o in enumerate(TOFF):
        e(f"v_cmp_lt_i32_e64 {pr(sA+2*i)}, {o}, v{vLIM}")
    if hv:
        e(f"s_bitcmp1_b32 s{sCUR}, 15")
        e(f"s_cselect_b64 {pr(sA)}, 0, {pr(sA)}")
        e(f"s_cselect_b64 {pr(sA+2)}, 0, {pr(sA+2)}")
        e(f"s_bitcmp1_b32 s{sCUR}, 14")
        e(f"s_cselect_b64 {pr(sA+4)}, 0, {pr(sA+4)}")
        e(f"s_cselect_b64 {pr(sA+6)}, 0, {pr(sA+6)}")
    e(f"s_waitcnt vmcnt(8)")
    for s in range(3):
        for u, c in ((0, vC1), (1, vC2)):
            r = u*12 + s*4
            src = "0" if s == 0 else f"v[{c}:{c+3}]"
            e(f"v_mfma_f32_16x16x32_bf16 v[{c}:{c+3}], a[{r}:{r+3}], v[{vQ+4*s}:{vQ+4*s+3}], {src}")
    if not last: k_loads(0, cfg.KSPLIT, N)
    e(f"s_nop {8-(0 if last else cfg.KSPLIT)}")
    for i, (c, r) in enumerate(((vC1, 0), (vC1, 2), (vC2, 0), (vC2, 2))):
        e(f"v_add_f32_dpp v{vS+i}, v{c+r+1}, v{c+r} row_ror:8 row_mask:0xf bank_mask:0xf")
    for i in range(4):
        e(f"v_cndmask_b32_e64 v{vS+i}, v{vNINF}, v{vS+i}, {pr(sA+2*i)}")
    e(f"v_max3_f32 v{vMX}, v{vS}, v{vS+1}, v{vS+2}")
    e(f"v_max_f32 v{vMX}, v{vMX}, v{vS+3}")
    e(f"v_cmp_gt_f32 vcc, v{vMX}, v{vM}")
    e(f"s_cbranch_vccnz A_slow{tag}")
    lab(f"A_back{tag}")
    for i in range(4):
        e(f"v_fma_f32 v{vX+i}, v{vS+i}, s{sC2}, -v{vMC}")
    for i in range(4):
        e(f"v_exp_f32 v{vX+i}, v{vX+i}")
    if not last: k_loads(cfg.KSPLIT, 6, N)
    else: e("s_nop 0")
    e(f"v_cvt_pk_bf16_f32 v{vP}, v{vX}, v{vX+1}")
    e(f"v_cvt_pk_bf16_f32 v{vP+1}, v{vX+2}, v{vX+3}")
    e(f"v_add_f32 v{vX}, v{vX}, v{vX+1}")
    e(f"v_add_f32 v{vX+2}, v{vX+2}, v{vX+3}")
    e(f"v_add_f32 v{vL}, v{vL}, v{vX}")
    e(f"v_add_f32 v{vL}, v{vL}, v{vX+2}")
    if last:
        xreduce("v_add_f32", vL)
        e(f"s_lshl_b32 s{sT0}, s{sWAVE}, 3")
        e(f"v_mov_b32 v{vX+1}, s{sT0}")
        e(f"s_lshl_b32 s{sT0}, s{sWAVE}, 2")
        e(f"v_mov_b32 v{vX+2}, s{sT0}")
        e(f"v_mov_b32 v{vX+3}, 1")
        e(f"s_mov_b64 exec, {pr(sBM)}")
        e(f"ds_write_b64 v{vX+1}, v[{vMC}:{vMC+1}] offset:{L_STBML}")
        e("s_mov_b64 exec, -1")
        e(f"s_waitcnt vmcnt(0)")
        perm(0); perm(1)
        for t in range(12):
            if t+2 < 12: perm(t+2)
            pv(t)
    else:
        e(f"s_waitcnt vmcnt(6)")
        for t in range(12): perm(t)
        v_load1(0, N); v_load1(1, N)
        for t in range(12): pv(t)
        e(f"s_add_u32 s{sI}, s{sI}, 1")
        if not phb:
            e(f"s_cmp_eq_u32 s{sI}, s{sCNTA}")
            e("s_cbranch_scc1 A_last")
        for k in range(2, 8): v_load1(k, N)
        if cfg.BADD and not phb:
            e("s_branch A_loop")
        else:
            lab("A_cont")
            e(f"s_cmp_lt_u32 s{sI}, s{sCNT}")
            e(f"s_cbranch_scc1 {'B_loop' if phb else 'A_loop'}")

lab("A_loop")
body("A", False)
tags = ["A", "Z"]
if cfg.BADD:
    lab("B_loop")
    ADD[0] = cfg.BADD
    body("B", False, True)
    ADD[0] = 0
    tags.append("B")
body("Z", True)
if cfg.MIDST: e(f"s_memrealtime {pr(sST+2)}")
prof(6)
e(f"s_mov_b64 exec, {pr(sBM)}")
for t in range(12):
    if t == 4: e("s_nop 3")
    e(f"ds_write_b128 v{vSB}, v[{vO+4*t}:{vO+4*t+3}] offset:{L_STB + 64*t}")
e("s_waitcnt lgkmcnt(0)")
e(f"ds_write_b32 v{vX+2}, v{vX+3} offset:{L_FB}")
prof(7)
dump_prof()
if cfg.STAMPS and cfg.MIDST:
    e(f"s_cmp_lg_u32 s{sWAVE}, 0")
    e("s_cbranch_scc1 A_end")
    dump_stamps()
lab("A_end")
e("s_endpgm")

lab("A_last")
prof(5)
ADD[0] = cfg.LADD
v_load1(2, cfg.NOUT)
xreduce("v_add_f32", vL, dst=vMA+1)
e(f"v_mov_b32 v{vMA}, v{vMC}")
e(f"s_lshl_b32 s{sT0}, s{sWAVE}, 6")
e(f"v_lshl_add_u32 v{vX}, v{vLANE}, 3, s{sT0}")
e("s_mov_b64 exec, 0xff")
e(f"ds_write_b64 v{vX}, v[{vMA}:{vMA+1}] offset:{L_STGML}")
e("s_mov_b64 exec, -1")
for i in range(6):
    for r in range(4):
        e(f"v_mov_b32_dpp v{vO+8*i+r}, v{vO+8*i+4+r} row_ror:8 row_mask:0xf bank_mask:0xc")
    e(f"ds_write_b128 v{vPO}, v[{vO+8*i}:{vO+8*i+3}] offset:{L_STG + 128*i}")
e(f"s_lshl_b32 s{sT0}, s{sWAVE}, 2")
e(f"v_mov_b32 v{vX}, s{sT0}")
e(f"v_mov_b32 v{vX+1}, 1")
e("s_waitcnt lgkmcnt(0)")
e(f"ds_write_b32 v{vX}, v{vX+1} offset:{L_FA}")
for k in range(3, 8): v_load1(k, cfg.NOUT)
ADD[0] = 0
e("s_branch A_cont")

for tag in tags:
    lab(f"A_slow{tag}")
    xreduce("v_max_f32", vMX)
    e(f"v_max_f32 v{vM}, v{vM}, v{vMX}")
    e(f"v_mul_f32 v{vA}, s{sC2}, v{vM}")
    e(f"v_sub_f32 v{vB}, v{vMC}, v{vA}")
    e(f"v_exp_f32 v{vB}, v{vB}")
    e(f"v_mov_b32 v{vMC}, v{vA}")
    e(f"v_mul_f32 v{vL}, v{vL}, v{vB}")
    for i in range(24):
        e(f"v_pk_mul_f32 v[{vO+2*i}:{vO+2*i+1}], v[{vO+2*i}:{vO+2*i+1}], v[{vB}:{vB+1}] op_sel_hi:[1,0]")
    e(f"s_branch A_back{tag}")

lab("A_dyn")
e(f"s_cmp_ge_u32 s{sT0}, s{sCNTA}")
e("s_cbranch_scc1 A_phb")
e(f"s_cmp_lg_u32 s{sLF}, 0")
e("s_cbranch_scc1 A_dyn2")
e(f"s_mov_b32 s{sLF}, 1")
e(f"v_mov_b32 v{vA}, 0")
e("s_barrier")
e(f"ds_read_b32 v{vA}, v{vA} offset:{L_N}")
e(f"s_lshl_b32 s{sT1}, s{sB0}, 2")
e(f"s_add_u32 s{sT1}, s{sT1}, s{sWAVE}")
e(f"s_sub_u32 s{sT1}, s{sT1}, {32*KP}")
e(f"v_lshlrev_b32 v{vB}, 5, v{vLANE}")
e(f"v_add_lshl_u32 v{vB}, v{vB}, s{sT1}, 2")
e(f"v_min_u32 v{vB}, 8188, v{vB}")
e(f"ds_read_b32 v{vLIST}, v{vB}")
e("s_waitcnt lgkmcnt(0)")
e(f"v_readfirstlane_b32 s{sN}, v{vA}")
e(f"v_readlane_b32 s{sREC}, v{vLIST}, s{sT0}")
e("s_nop 0")
e(f"s_mul_i32 s{sT1}, s{sN}, {cfg.F}")
e(f"s_lshr_b32 s{sT1}, s{sT1}, 10")
e(f"s_lshl_b32 s{sP0}, s{sT1}, 5")
e(f"s_add_u32 s{sDS}, s{sT1}, {KP}")
if cfg.HALVES:
    e(f"s_sub_i32 s{sH0}, s{sN}, {cfg.HALVES}")
    e(f"s_max_i32 s{sH0}, s{sH0}, s{sP0}")
e(f"s_add_u32 s{sT1}, s{sT0}, 1")
e(f"s_cmp_lt_u32 s{sT1}, s{sDS}")
e("s_cbranch_scc1 A_rec")
if cfg.WT:
    e(f"s_cmp_lg_u32 s{sT0}, s{sDS}")
    e("s_cbranch_scc1 A_dyn2")
    started_check()
    e(f"s_mov_b32 s{sTK}, 1")
    e(f"s_atomic_add s{sTK}, {pr(sTKB)}, 0 glc")
    lab("A_dyn2")
    e(f"s_cmp_lt_u32 s{sT0}, s{sDS}")
    e(f"s_cbranch_scc1 A_first")
    e("s_waitcnt lgkmcnt(0)")
    e(f"s_add_u32 s{sT2}, s{sTK}, s{sP0}")
    if cfg.HALVES:
        e(f"s_mov_b32 s{sHF}, 0")
        e(f"s_cmp_lt_u32 s{sT2}, s{sH0}")
        e("s_cbranch_scc1 A_full")
        e(f"s_sub_u32 s{sT1}, s{sT2}, s{sH0}")
        e(f"s_and_b32 s{sHF}, s{sT1}, 1")
        e(f"s_add_u32 s{sHF}, s{sHF}, 1")
        e(f"s_lshl_b32 s{sHF}, s{sHF}, 14")
        e(f"s_lshr_b32 s{sT1}, s{sT1}, 1")
        e(f"s_add_u32 s{sT2}, s{sT1}, s{sH0}")
        lab("A_full")
    e(f"s_cmp_ge_u32 s{sT2}, s{sN}")
    e(f"s_cbranch_scc1 A_fini")
    e(f"s_lshl_b32 s{sT2}, s{sT2}, 2")
    e(f"v_mov_b32 v{vB}, s{sT2}")
    e(f"ds_read_b32 v{vB}, v{vB}")
    e("s_waitcnt lgkmcnt(0)")
    e(f"v_readfirstlane_b32 s{sREC}, v{vB}")
    if cfg.HALVES:
        e("s_nop 1")
        e(f"s_or_b32 s{sREC}, s{sREC}, s{sHF}")
    lab(f"A_iss")
    e(f"s_mov_b32 s{sTK}, 1")
    e(f"s_atomic_add s{sTK}, {pr(sTKB)}, 0 glc")
    e(f"s_branch A_rec")
    lab(f"A_first")
    started_check()
    e(f"s_branch A_iss")
else:
    e(f"s_cmp_lg_u32 s{sT0}, s{sDS}")
    e("s_cbranch_scc1 A_dyn2")
    e(f"s_cmp_lg_u32 s{sWAVE}, 0")
    e("s_cbranch_scc1 A_dyn2")
    started_check()
    e(f"s_mov_b32 s{sTK}, 1")
    e(f"s_atomic_add s{sTK}, {pr(sTKB)}, 0 glc")
    lab("A_dyn2")
    e(f"s_sub_u32 s{sT1}, s{sT0}, s{sDS}")
    e(f"s_lshl_b32 s{sT2}, s{sT1}, 2")
    e(f"v_mov_b32 v{vA}, s{sT2}")
    e(f"s_cmp_lg_u32 s{sWAVE}, 0")
    e(f"s_cbranch_scc1 A_oth")
    e(f"s_cmp_lt_i32 s{sT1}, 0")
    e(f"s_cbranch_scc1 A_first")
    e("s_waitcnt lgkmcnt(0)")
    e(f"s_lshl_b32 s{sT2}, s{sTK}, 2")
    e(f"s_add_u32 s{sT2}, s{sT2}, s{sP0}")
    e(f"s_cmp_lt_u32 s{sT2}, s{sN}")
    e(f"s_cselect_b32 s{sT2}, s{sT2}, {DONE}")
    e(f"v_mov_b32 v{vB}, s{sT2}")
    e(f"ds_write_b32 v{vA}, v{vB} offset:{L_SLOT}")
    e(f"s_cbranch_scc0 A_fini")
    e(f"s_lshl_b32 s{sT2}, s{sT2}, 2")
    e(f"v_mov_b32 v{vB}, s{sT2}")
    e(f"ds_read_b32 v{vB}, v{vB}")
    e("s_waitcnt lgkmcnt(0)")
    e(f"v_readfirstlane_b32 s{sREC}, v{vB}")
    lab(f"A_iss")
    e(f"s_mov_b32 s{sTK}, 1")
    e(f"s_atomic_add s{sTK}, {pr(sTKB)}, 0 glc")
    e(f"s_branch A_rec")
    lab(f"A_first")
    started_check()
    e(f"s_branch A_iss")
    lab(f"A_oth")
    e(f"s_cmp_lt_i32 s{sT1}, 0")
    e(f"s_cbranch_scc1 A_rec")
    lab(f"A_poll")
    e(f"ds_read_b32 v{vB}, v{vA} offset:{L_SLOT}")
    e("s_waitcnt lgkmcnt(0)")
    e(f"v_readfirstlane_b32 s{sT2}, v{vB}")
    e("s_nop 1")
    e(f"s_cmp_eq_u32 s{sT2}, {EMPTY}")
    e(f"s_cbranch_scc1 A_poll")
    e(f"s_cmp_eq_u32 s{sT2}, {DONE}")
    e(f"s_cbranch_scc1 A_fini")
    e(f"s_add_u32 s{sT2}, s{sT2}, s{sWAVE}")
    e(f"s_lshl_b32 s{sT1}, s{sT2}, 2")
    e(f"s_cmp_lt_u32 s{sT2}, s{sN}")
    e(f"s_cselect_b32 s{sT1}, s{sT1}, {L_Z}")
    e(f"v_mov_b32 v{vB}, s{sT1}")
    e(f"ds_read_b32 v{vB}, v{vB}")
    e("s_waitcnt lgkmcnt(0)")
    e(f"v_readfirstlane_b32 s{sREC}, v{vB}")
    e("s_nop 1")
    e(f"s_branch A_rec")
lab(f"A_fini")
e(f"s_mov_b32 s{sCNTA}, s{sT0}")
e(f"s_add_u32 s{sCNT}, s{sT0}, {KB-1}")
lab("A_phb")
e(f"s_sub_u32 s{sT1}, s{sT0}, s{sCNTA}")
e(f"v_readlane_b32 s{sREC}, v{vLB}, s{sT1}")
e("s_nop 1")
e(f"s_branch A_rec")

pT, pM = 48, 56
pJ, pJX, pA, pB, pCNT, pJ4 = 64, 65, 66, 67, 68, 69
SRDO = 20
hA, hB, hP = 12, 13, 8
lab("P_start")
if cfg.PPRIO: e(f"s_setprio {cfg.PPRIO}")
if cfg.CODEPF:
    e("s_getpc_b64 s[40:41]")
    lab("P_pc")
    e(f"s_sub_u32 s40, s40, P_pc-{NAME}_kernel")
    e("s_subb_u32 s41, s41, 0")
    e(f"v_subrev_u32 v70, 256, v0")
    e(f"v_lshlrev_b32 v70, 6, v70")
    e(f"v_min_u32 v70, K_end-{NAME}_kernel-4, v70")
    e("global_load_dword v71, v70, s[40:41]")
e(f"v_subrev_u32 v{pJ}, 256, v0")
e(f"v_lshlrev_b32 v{pJ4}, 2, v{pJ}")
e(f"v_mov_b32 v{pA}, {EMPTY}")
e(f"v_mov_b32 v{pCNT}, 0")
for i in range(3):
    e(f"ds_write_b32 v{pJ4}, v{pA} offset:{L_SLOT + 1024*i}")
e(f"ds_write_b32 v{pJ4}, v{pCNT} offset:{L_CNT}")
e("s_waitcnt lgkmcnt(0)")
e("s_load_dwordx16 s[4:19], s[0:1], 0")
e("s_barrier")
e(f"v_add_u32 v{pB}, 4096, v{pJ4}")
e(f"v_lshlrev_b32 v{pJX}, 16, v{pJ}")
e(f"s_sub_u32 s{sI}, s{sWAVE}, 4")
hFL, hBIG = 6, 84
hsO, hsT = 84, 85
e(f"v_lshlrev_b32 v{hFL}, 4, v{vLANE}")
e(f"v_mov_b32 v{hBIG}, 0x40000000")
e(f"v_cmp_gt_u32 vcc, 49, v{vLANE}")
e(f"s_lshl_b32 s{sT0}, s{sHEAD}, 3")
e(f"s_lshl_b32 s{sT1}, s{sI}, 1")
e(f"v_cndmask_b32 v{hFL}, v{hBIG}, v{hFL}, vcc")
e(f"s_add_u32 s{sT0}, s{sT0}, s{sT1}")
e(f"s_lshl_b32 s{sT0}, s{sT0}, 3")
e(f"s_add_u32 s{sT0}, s{sT0}, s{sB0}")
e(f"s_mul_i32 s{sDS}, s{sT0}, {RW}")
e(f"s_add_u32 s{sCNT}, s{sDS}, {8*RW}")
e(f"s_cmp_eq_u32 s{sT1}, s{sB0}")
e(f"s_cselect_b32 s{sDS}, 0x{OOB:x}, s{sDS}")
e(f"s_add_u32 s{sT1}, s{sT1}, 1")
e(f"s_cmp_eq_u32 s{sT1}, s{sB0}")
e(f"s_cselect_b32 s{sCNT}, 0x{OOB:x}, s{sCNT}")
for i in range(4): e(f"v_mov_b32 v{hP+i}, -1")
e(f"s_lshl_b32 s{sTK}, s{sHEAD}, 12")
e(f"s_add_u32 s{sTK}, s{sTK}, {TK_OFF}")
e(f"s_or_b32 s{sT0}, s{sB0}, s{sI}")
e(f"s_cmp_eq_u32 s{sT0}, 0")
e(f"s_cselect_b32 s{sTK}, s{sTK}, 0x{OOB:x}")
e(f"v_mov_b32 v{hA}, 0")
e(f"s_mov_b32 s{SRDW+2}, {WS_USED}")
e(f"s_mov_b32 s{SRDW+3}, 0x20000")
e(f"s_lshl_b32 s{sT2}, s{sHEAD}, 3")
for b in range(8):
    e(f"v_mov_b32 v{pM+b}, 0")
for b in range(1, 8):
    e(f"s_mov_b64 {pr(sNL+2*b)}, 0")
e("s_waitcnt lgkmcnt(0)")
e(f"s_load_dwordx8 s[{sC}:{sC+7}], {pr(sCTX)}, 0")
for b in range(8):
    e(f"global_load_dword v{pT+b}, v{pJ4 if b < 4 else pB}, {pr(sBT)} offset:{(b & 3)*1024}")
e(f"s_mov_b32 s{SRDW}, s{sWS}")
e(f"s_and_b32 s{SRDW+1}, s{sWS+1}, 0xffff")
e(f"buffer_store_dwordx4 v[{hP}:{hP+3}], v{hFL}, s[{SRDW}:{SRDW+3}], s{sDS} offen sc1")
e(f"buffer_store_dwordx4 v[{hP}:{hP+3}], v{hFL}, s[{SRDW}:{SRDW+3}], s{sCNT} offen sc1")
e(f"buffer_store_dword v{hA}, v{hA}, s[{SRDW}:{SRDW+3}], s{sTK} offen sc1")
e(f"s_add_u32 s{sDBG}, s{sDBG}, s{sT2}")
e(f"s_addc_u32 s{sDBG+1}, s{sDBG+1}, 0")
e("s_waitcnt lgkmcnt(0)")
for b in range(8):
    nblocks(sC+b)
    e(f"s_sub_u32 s{sC+b}, s{sC+b}, {4*KW}")
for b in range(8):
    e(f"v_cmp_gt_i32_e64 {pr(sVAL+2*b)}, s{sC+b}, v{pJ}")
e(f"s_waitcnt vmcnt(3)")
for b in range(8):
    e(f"v_cndmask_b32_e64 v{pT+b}, {-(b+1)}, v{pT+b}, {pr(sVAL+2*b)}")
for b in range(7):
    hi = list(range(7, b, -1))
    for k, b2 in enumerate(hi):
        e(f"v_cmp_eq_u32_e64 {pr(sEQ+2*k)}, v{pT+b}, v{pT+b2}")
    if len(hi) < 3: e(f"s_nop {2-len(hi)}")
    for k, b2 in enumerate(hi):
        e(f"v_addc_co_u32_e64 v{pM+b}, vcc, v{pM+b}, v{pM+b}, {pr(sEQ+2*k)}")
    for k, b2 in enumerate(hi):
        e(f"s_or_b64 {pr(sNL+2*b2)}, {pr(sNL+2*b2)}, {pr(sEQ+2*k)}")
e(f"v_mov_b32 v{pCNT}, 0")
for b in range(8):
    if b: e(f"s_andn2_b64 {pr(sVAL+2*b)}, {pr(sVAL+2*b)}, {pr(sNL+2*b)}")
    e(f"s_bcnt1_i32_b64 s{sT0}, {pr(sVAL+2*b)}")
    e(f"s_or_b32 s{sT0}, s{sT0}, 0x10000")
    e(f"v_writelane_b32 v{pCNT}, s{sT0}, {b}")
e(f"s_lshl_b32 s{sT0}, s{sI}, 2")
e(f"s_add_u32 s{sT0}, s{sT0}, {L_CNT}")
e(f"v_lshl_add_u32 v{pA}, v{vLANE}, 4, s{sT0}")
e(f"s_mov_b64 exec, 0xff")
e(f"ds_write_b32 v{pA}, v{pCNT}")
e(f"s_mov_b64 exec, -1")
for b in range(8):
    e(f"v_lshl_or_b32 v{pM+b}, v{pM+b}, 1, 1")
    e(f"v_lshlrev_b32 v{pM+b}, {24+b}, v{pM+b}")
    e(f"v_or3_b32 v{pT+b}, v{pT+b}, v{pJX}, v{pM+b}")
    e(f"v_mbcnt_lo_u32_b32 v{pM+b}, s{sVAL+2*b}, 0")
    e(f"v_mbcnt_hi_u32_b32 v{pM+b}, s{sVAL+2*b+1}, v{pM+b}")
e(f"v_and_b32 v{pA}, 31, v{vLANE}")
e(f"v_lshlrev_b32 v{pA}, 2, v{pA}")
lab("P_cw")
e(f"ds_read_b32 v{pCNT}, v{pA} offset:{L_CNT}")
e("s_waitcnt lgkmcnt(0)")
e(f"v_cmp_eq_u32 vcc, 0, v{pCNT}")
e("s_cbranch_vccnz P_cw")
e(f"v_and_b32 v{pCNT}, 0xffff, v{pCNT}")
e(f"v_mov_b32 v{pB}, v{pCNT}")
for sh in (1, 2, 4, 8):
    e("s_nop 1")
    e(f"v_add_u32_dpp v{pB}, v{pB}, v{pB} row_shr:{sh} row_mask:0xf bank_mask:0xf bound_ctrl:0")
e("s_nop 1")
e(f"v_add_u32_dpp v{pB}, v{pB}, v{pB} row_bcast:15 row_mask:0xa bank_mask:0xf")
e("s_nop 1")
e(f"v_readlane_b32 s{sN}, v{pB}, 31")
e(f"v_sub_u32 v{pB}, v{pB}, v{pCNT}")
e(f"s_mov_b32 s{sT1}, s{sI}")
for b in range(8):
    e(f"v_readlane_b32 s{sEQ+b}, v{pB}, s{sT1}")
    e(f"s_add_u32 s{sT1}, s{sT1}, 4")
e(f"v_mov_b32 v{pA}, 0")
e(f"v_mov_b32 v{pCNT}, s{sN}")
e(f"ds_write_b32 v{pA}, v{pCNT} offset:{L_N}")
for b in range(8):
    e(f"v_add_lshl_u32 v{pM+b}, v{pM+b}, s{sEQ+b}, 2")
for b in range(8):
    e(f"s_mov_b64 exec, {pr(sVAL+2*b)}")
    e(f"ds_write_b32 v{pM+b}, v{pT+b}")
e(f"s_mov_b64 exec, -1")
prof(1)
e("s_waitcnt vmcnt(0) lgkmcnt(0)")
e("s_barrier")

hL16, hM, hW, hMA = 5, 10, 11, 7
hO0, hO1, hO2, hO3 = 14, 15, 16, 17
hZ, hLA, hACC = 18, 19, 20
hQ = 24
hD = 40
hR = 72
hSA = 81
hsP, hsO, hsT = 32, 34, 35
hsML = 40
e(f"v_lshlrev_b32 v{hL16}, 4, v{vLANE}")
e(f"v_and_b32 v{hM}, 3, v{vLANE}")
e(f"v_lshlrev_b32 v{hM}, 2, v{hM}")
e(f"v_min_u32 v{hL16}, 752, v{hL16}")
e(f"s_mul_i32 s{sT0}, s{sI}, {2*RS}")
e(f"v_add_u32 v{hSA}, s{sT0}, v{hL16}")
e(f"s_lshl_b32 s{sT0}, s{sI}, 4")
e(f"v_mov_b32 v{hW}, s{sT0}")
e(f"v_cmp_eq_u32_e64 {pr(36)}, 48, v{vLANE}")
e(f"s_cmp_lg_u32 s{sI}, 0")
e("s_cbranch_scc1 H_wa0")
e(f"s_mov_b32 s{sT2}, 1")
e(f"s_mov_b32 s{sSPIN}, 0")
lab("H_chk")
e(f"s_mov_b32 s{sT1}, s{sT2}")
e(f"s_atomic_add s{sT2}, {pr(sDBG)}, 0 glc")
e(f"s_add_u32 s{sSPIN}, s{sSPIN}, 1")
e("s_waitcnt lgkmcnt(0)")
e(f"s_add_u32 s{sT1}, s{sT1}, s{sT2}")
e(f"s_mov_b32 s{sT2}, 0")
e(f"s_cmp_ge_u32 s{sT1}, 8")
e(f"s_cbranch_scc1 H_chkok")
e(f"s_cmp_ge_u32 s{sSPIN}, {SPIN_MAX >> 1}")
e(f"s_cbranch_scc1 H_chkok")
e("s_sleep 32")
e(f"s_branch H_chk")
lab("H_chkok")
e(f"v_mov_b32 v{hA}, 0")
e(f"v_mov_b32 v{hB}, 1")
e(f"ds_write_b32 v{hA}, v{hB} offset:{L_OK}")
e(f"s_mov_b32 s{SRDO}, s{sOUT}")
e(f"s_and_b32 s{SRDO+1}, s{sOUT+1}, 0xffff")
e(f"s_mov_b32 s{SRDO+2}, 98304")
e(f"s_mov_b32 s{SRDO+3}, 0x20000")
e(f"v_cmp_gt_u32 vcc, 48, v{vLANE}")
e(f"v_lshrrev_b32 v{hB}, 2, v{vLANE}")
e(f"v_and_b32 v{hZ}, 3, v{vLANE}")
e(f"v_cndmask_b32_e64 v{hA}, v{hBIG}, 0, vcc")
e(f"v_lshl_add_u32 v{hO0}, v{hZ}, 5, v{hB}")
e(f"v_lshl_add_u32 v{hO1}, v{hZ}, 4, v{hB}")
e(f"v_add_u32 v{hO1}, 120, v{hO1}")
e(f"v_cmp_gt_u32 vcc, 8, v{hB}")
e(f"v_mov_b32 v{hO2}, 8")
e(f"v_mov_b32 v{hO3}, 16")
e(f"v_cndmask_b32 v{hO0}, v{hO1}, v{hO0}, vcc")
e(f"v_cndmask_b32 v{hO3}, v{hO2}, v{hO3}, vcc")
e(f"v_lshl_add_u32 v{hO0}, v{hO0}, 1, v{hA}")
e(f"v_add_u32 v{hO1}, v{hO0}, v{hO3}")
e(f"v_add_u32 v{hO2}, v{hO1}, v{hO3}")
e(f"v_add_u32 v{hO3}, v{hO2}, v{hO3}")
e(f"v_mov_b32 v{hZ}, 0")
lab("H_wa0")
if cfg.NOHELP: e("s_endpgm")
def lds_wait(name, off, sleep):
    e(f"s_mov_b32 s{sSPIN}, 0")
    lab(name)
    e(f"ds_read_b32 v{hB}, v{hM} offset:{off}")
    e(f"s_add_u32 s{sSPIN}, s{sSPIN}, 1")
    e("s_waitcnt lgkmcnt(0)")
    e(f"v_cmp_eq_u32 vcc, 0, v{hB}")
    e(f"s_cmp_ge_u32 s{sSPIN}, {1 << 26}")
    e(f"s_cbranch_scc1 {name}_ok")
    if sleep:
        e(f"s_cbranch_vccz {name}_ok")
        e(f"s_sleep {sleep}")
        e(f"s_branch {name}")
    else:
        e(f"s_cbranch_vccnz {name}")
    lab(f"{name}_ok")
lds_wait("H_wa", L_FA, cfg.HSLEEP)
prof(2)
for w in range(4):
    e(f"ds_read_b128 v[{hQ+4*w}:{hQ+4*w+3}], v{hW} offset:{L_STGML + 64*w}")
for c in range(2):
    for w in range(4):
        e(f"ds_read_b128 v[{hD+16*c+4*w}:{hD+16*c+4*w+3}], v{hSA} offset:{L_STG + WSZ*w + RS*c}")
e("s_waitcnt lgkmcnt(8)")
for c in range(2):
    m = [hQ+4*w+2*c for w in range(4)]
    M, L = hMA, hLA
    e(f"v_max3_f32 v{M}, v{m[0]}, v{m[1]}, v{m[2]}")
    e(f"v_max_f32 v{M}, v{M}, v{m[3]}")
    for w in range(4): e(f"v_sub_f32 v{m[w]}, v{m[w]}, v{M}")
    for w in range(4): e(f"v_exp_f32 v{m[w]}, v{m[w]}")
    e(f"v_mul_f32 v{L}, v{m[0]}, v{m[0]+1}")
    for w in range(1, 4): e(f"v_fmac_f32 v{L}, v{m[w]}, v{m[w]+1}")
    e(f"s_waitcnt lgkmcnt({4-4*c})")
    for i in range(4): e(f"v_mul_f32 v{hR+4*c+i}, v{m[0]}, v{hD+16*c+i}")
    for w in range(1, 4):
        for i in range(4): e(f"v_fmac_f32 v{hR+4*c+i}, v{m[w]}, v{hD+16*c+4*w+i}")
    e(f"v_cndmask_b32_e64 v{hR+4*c}, v{hR+4*c}, v{M}, {pr(36)}")
    e(f"v_cndmask_b32_e64 v{hR+4*c+1}, v{hR+4*c+1}, v{L}, {pr(36)}")
    for i in range(4): e(f"v_min_u32 v{hR+4*c+i}, -2, v{hR+4*c+i}")
    e(f"buffer_store_dwordx4 v[{hR+4*c}:{hR+4*c+3}], v{hFL}, s[{SRDW}:{SRDW+3}], s{sDS if c == 0 else sCNT} offen sc1")
e(f"s_cmp_eq_u32 s{sI}, 0")
e("s_cbranch_scc1 H_start")
e("s_endpgm")

lab("H_start")
prof(3)
e(f"s_mul_i32 s{hsO}, s2, {8*RW}")
e(f"s_lshl_b32 s{hsP}, 1, s{sB0}")
e(f"s_xor_b32 s{hsP}, s{hsP}, 0xff")
e(f"s_mov_b32 s{sSPIN}, 0")
for i in range(32): e(f"v_mov_b32 v{hD+i}, 0")
lab("H_poll")
for s_ in range(8):
    e(f"s_bitcmp1_b32 s{hsP}, {s_}")
    e(f"s_cbranch_scc0 H_sk{s_}")
    if s_*RW < 4096:
        e(f"buffer_load_dwordx4 v[{hD+4*s_}:{hD+4*s_+3}], v{hFL}, s[{SRDW}:{SRDW+3}], s{hsO} offen offset:{s_*RW} sc1")
    else:
        e(f"s_add_u32 s{hsT}, s{hsO}, {s_*RW}")
        e(f"buffer_load_dwordx4 v[{hD+4*s_}:{hD+4*s_+3}], v{hFL}, s[{SRDW}:{SRDW+3}], s{hsT} offen sc1")
    lab(f"H_sk{s_}")
e(f"s_add_u32 s{sSPIN}, s{sSPIN}, 1")
e(f"s_mov_b32 s{hsP}, 0")
e("s_waitcnt vmcnt(0)")
for s_ in range(8):
    e(f"v_max3_u32 v{hQ+s_}, v{hD+4*s_}, v{hD+4*s_+1}, v{hD+4*s_+2}")
for s_ in range(8):
    e(f"v_max_u32 v{hQ+s_}, v{hQ+s_}, v{hD+4*s_+3}")
for s_ in range(8):
    e(f"v_cmp_eq_u32_e64 {pr(hsML+2*s_)}, -1, v{hQ+s_}")
for s_ in range(8):
    e(f"s_cmp_lg_u64 {pr(hsML+2*s_)}, 0")
    e(f"s_cselect_b32 s{hsT}, {1 << s_}, 0")
    e(f"s_or_b32 s{hsP}, s{hsP}, s{hsT}")
e("s_cbranch_scc0 H_gath")
e(f"s_cmp_ge_u32 s{sSPIN}, {SPIN_MAX}")
if cfg.PSLEEP:
    e("s_cbranch_scc1 H_gath")
    e(f"s_sleep {cfg.PSLEEP}")
    e("s_branch H_poll")
else:
    e("s_cbranch_scc0 H_poll")
lab("H_gath")
prof(4)
for s_ in range(8):
    e(f"v_readlane_b32 s{hsML+2*s_}, v{hD+4*s_}, 48")
    e(f"v_readlane_b32 s{hsML+2*s_+1}, v{hD+4*s_+1}, 48")
for s_ in range(8):
    e(f"s_cmp_eq_u32 s{sB0}, {s_}")
    e(f"s_cselect_b32 s{hsML+2*s_}, 0x{NEG:08x}, s{hsML+2*s_}")
e(f"v_mov_b32 v{hMA}, s{hsML}")
for s_ in range(1, 8):
    e(f"v_max_f32 v{hMA}, s{hsML+2*s_}, v{hMA}")
for s_ in range(8):
    e(f"v_sub_f32 v{hQ+s_}, s{hsML+2*s_}, v{hMA}")
for s_ in range(8):
    e(f"v_exp_f32 v{hQ+s_}, v{hQ+s_}")
e(f"v_mul_f32 v{hLA}, s{hsML+1}, v{hQ}")
for s_ in range(1, 8):
    e(f"v_fmac_f32 v{hLA}, s{hsML+2*s_+1}, v{hQ+s_}")
for i in range(4): e(f"v_mul_f32 v{hACC+i}, v{hQ}, v{hD+i}")
for s_ in range(1, 8):
    for i in range(4): e(f"v_fmac_f32 v{hACC+i}, v{hQ+s_}, v{hD+4*s_+i}")
e(f"s_lshl_b32 s{sT0}, s{sB0}, 5")
e(f"s_add_u32 s{sT0}, s{sT0}, s{sHEAD}")
e(f"s_mul_i32 s{sT0}, s{sT0}, 384")
lds_wait("H_wb", L_FB, 0)
prof(5)
e(f"ds_read_b128 v[{hQ}:{hQ+3}], v{hZ} offset:{L_STBML}")
e(f"ds_read_b128 v[{hQ+4}:{hQ+7}], v{hZ} offset:{L_STBML+16}")
for w in range(4):
    e(f"ds_read_b128 v[{hD+4*w}:{hD+4*w+3}], v{hL16} offset:{L_STB + 768*w}")
e("s_waitcnt lgkmcnt(4)")
e(f"v_max3_f32 v{hW}, v{hQ}, v{hQ+2}, v{hMA}")
e(f"v_max3_f32 v{hW}, v{hQ+4}, v{hQ+6}, v{hW}")
e(f"v_sub_f32 v{hMA}, v{hMA}, v{hW}")
for w in range(4):
    e(f"v_sub_f32 v{hQ+2*w}, v{hQ+2*w}, v{hW}")
e(f"v_exp_f32 v{hMA}, v{hMA}")
for w in range(4):
    e(f"v_exp_f32 v{hQ+2*w}, v{hQ+2*w}")
e(f"v_mul_f32 v{hLA}, v{hLA}, v{hMA}")
for w in range(4):
    e(f"v_fmac_f32 v{hLA}, v{hQ+2*w}, v{hQ+2*w+1}")
for i in range(4):
    e(f"v_mul_f32 v{hACC+i}, v{hACC+i}, v{hMA}")
e(f"v_rcp_f32 v{hLA}, v{hLA}")
e("s_waitcnt lgkmcnt(0)")
for w in range(4):
    for i in range(4):
        e(f"v_fmac_f32 v{hACC+i}, v{hQ+2*w}, v{hD+4*w+i}")
for i in range(4):
    e(f"v_mul_f32 v{hACC+i}, v{hACC+i}, v{hLA}")
e(f"v_cvt_pk_bf16_f32 v{hA}, v{hACC}, v{hACC+1}")
e(f"v_cvt_pk_bf16_f32 v{hB}, v{hACC+2}, v{hACC+3}")
e(f"buffer_store_short v{hA}, v{hO0}, s[{SRDO}:{SRDO+3}], s{sT0} offen")
e(f"buffer_store_short_d16_hi v{hA}, v{hO1}, s[{SRDO}:{SRDO+3}], s{sT0} offen")
e(f"buffer_store_short v{hB}, v{hO2}, s[{SRDO}:{SRDO+3}], s{sT0} offen")
e(f"buffer_store_short_d16_hi v{hB}, v{hO3}, s[{SRDO}:{SRDO+3}], s{sT0} offen")
prof(6)
prof(7)
dump_prof()
if cfg.STAMPS and not cfg.MIDST:
    e("s_waitcnt vmcnt(0)")
    e(f"s_memrealtime {pr(sST+2)}")
    dump_stamps()
e("s_endpgm")
lab("K_end")

raw('.section .rodata,"a"')
raw(f""".p2align 6
.amdhsa_kernel {NAME}_kernel
  .amdhsa_next_free_vgpr {NFV}
  .amdhsa_next_free_sgpr 102
  .amdhsa_accum_offset {ACC}
  .amdhsa_group_segment_fixed_size 0
  .amdhsa_kernarg_size 64
  .amdhsa_user_sgpr_count 2
  .amdhsa_user_sgpr_kernarg_segment_ptr 1
  .amdhsa_system_sgpr_workgroup_id_x 1
.end_amdhsa_kernel""")
open(sys.argv[1], 'w').write("\n".join(out) + "\n")
print("LDS", LDS_BYTES, "NV", NV, "NFV", NFV)
```

```python
import sys, struct, math
NAME = "standalone__paged_block_table_kv_radixattention__sampling"
KV_BYTES = 1152*196608
def f2u(x): return struct.unpack('<I', struct.pack('<f', x))[0]
C2 = (192 ** -0.5) * math.log2(math.e)
NEG = f2u(-3e38)

class Cfg:
    KP = 2
    KB = 2
    STAMPS = False
    MIDST = False
    PROF = False
    F = 30
    HSLEEP = 4
    PPRIO = 3
    NOUT = 6
    NK = [7,7,7,6,6,6]
    NVL = [6,6,6,7,7,7,7,8]
    KSPLIT = 2
    NOHELP = 0
    CODEPF = 1
    TOK = 1
    BADD = 0
    LADD = 0
    PSLEEP = 0
    WT = 1
    TLBPF = 0
    NOCOMP = 0
    THR0 = 1
    VROW = 0
    HALVES = 0
    HADD = 4
    ZRE = 0
cfg = Cfg()
for a in sys.argv[2:]:
    k, v = a.split('=')
    assert hasattr(cfg, k), k
    setattr(cfg, k, eval(v))
KP, KB = cfg.KP, cfg.KB
NKL = cfg.NK if cfg.NK else [cfg.NOUT]*6
NVL = cfg.NVL if cfg.NVL else [cfg.NOUT]*8
if isinstance(NKL, int): NKL = [NKL]*6
if isinstance(NVL, int): NVL = [NVL]*8
KW = KP + KB
TOFF = (0, 1, 8, 9) if cfg.TOK == 0 else (0, 4, 8, 12)
O_OFF = 0
RW = 896
TK_OFF = 256*8*RW
WS_USED = TK_OFF + 32*4096
SPIN_MAX = 1 << 17
OOB = 0xF0000000
EMPTY, DONE = -1, -2
RS, WSZ = 784, 8*784
L_CNT = 8192
L_N = 8320
L_FA = 8336
L_FB = 8352
L_OK = 8368
L_Z = 8384
L_SLOT = 9216
L_STB = 12288
L_STBML = L_STB + 4*768
L_STGML = L_STBML + 64
L_STG = L_STGML + 256
LDS_BYTES = L_STG + 4*WSZ

out = []
inbody = [False]
def e(s):
    if inbody[0] and cfg.NOCOMP and s.split()[0].startswith(("v_mfma", "v_perm", "v_add_f32", "v_cndmask", "v_max", "v_fma", "v_exp", "v_cvt", "v_cmp", "v_subrev", "s_cbranch_vccnz", "s_nop")): return
    out.append("    " + s)
def lab(s): out.append(s + ":")
def raw(s): out.append(s)
def pr(a): return f"s[{a}:{a+1}]"

hdr = open('cdna_kernels/%s.s.ref' % NAME).read().split('\n')
for l in hdr:
    if l.startswith('; Override') or l.startswith('; grid=') or l.startswith('; @launch'): continue
    if not l.startswith(';'): break
    raw(l)
raw(f"; @launch grid=(256,1,1) block=(512,1,1) lds={LDS_BYTES}")
raw('.amdgcn_target "amdgcn-amd-amdhsa--gfx950"')
raw('.text')
raw(f".globl {NAME}_kernel\n.p2align 8\n.type {NAME}_kernel,@function")
lab(f"{NAME}_kernel")

sQ, sK, sV, sBT, sCTX, sOUT, sDBG, sWS = 4, 6, 8, 10, 12, 14, 16, 18
SRDK, SRDV, SRDW = 20, 24, 28
sWAVE, sHOFF, sB0, sN, sDS, sCNT, sI, sT0, sT1, sT2, sHEAD, sTK = 86, 87, 88, 89, 90, 91, 92, 93, 94, 95, 96, 97
sST = 98
sP0 = 3
sTKB = 6
sSPIN = 8
sREC, sLF, sCNTA = 32, 33, 34
sHF, sH0, sCUR = 44, 45, 46
PHM = 0x3fff if cfg.HALVES else 0xffff
sJW, sPW = 36, 68
sMK = 48
sA = 50
sJ16 = 58
sTKO = 59
sO = 60
sC2, sSELLO, sSELHI = 64, 65, 66
sBM = 76
sC = 32
sVAL = 40
sNL = 56
sEQ = 72
vLANE, vC, vG = 1, 2, 3
vOK, vOV4, vOV2, vCTXM, vLIST, vM, vMC, vL, vNINF, vLIM, vMX, vA, vB, vPO = 4, 5, 6, 7, 8, 9, 10, 11, 12, 13, 14, 15, 42, 43
vQ = 16
vC1, vC2 = 28, 32
vS = 36
vP = 40
vX = 44
vO = 48
vT = 96
vMA, vLB, vSB = 120, 122, 123
vV = 124
NV = 148 + (1 if cfg.PROF else 0)
vPROF = NV-1
ACC = (NV + 3)//4*4
NFV = ACC + 24

def prof(n):
    if not cfg.PROF: return
    e('s_memtime s[100:101]')
    e('s_waitcnt lgkmcnt(0)')
    e(f'v_writelane_b32 v{vPROF}, s100, {n}')
ADD = [0]
def thr(n):
    if n: e(f"s_waitcnt vmcnt({n-1})")
def k_loads(lo=0, hi=6, t=0):
    for k in range(lo, hi):
        u, s = k // 3, k % 3
        r = u*12 + s*4
        thr(NKL[k] + ADD[0] if t else 0)
        e(f"buffer_load_dwordx4 a[{r}:{r+3}], v{vOK}, s[{SRDK}:{SRDK+3}], s{sO+2*u} offen offset:{128*s} nt")
def v_load1(k, t=0):
    i = k // 2
    thr(NVL[k] + ADD[0] if t else 0)
    if k % 2 == 0:
        r = vV + i*4
        e(f"buffer_load_dwordx4 v[{r}:{r+3}], v{vOV4}, s[{SRDV}:{SRDV+3}], s{sO+i} offen nt")
    else:
        r = vV + 16 + i*2
        e(f"buffer_load_dwordx2 v[{r}:{r+1}], v{vOV2}, s[{SRDV}:{SRDV+3}], s{sO+i} offen offset:256 nt")
def soffs():
    for i in range(1, 4):
        e(f"s_add_u32 s{sO+i}, s{sO}, {TOFF[i]*12288}")
def xreduce(op, reg, dst=None):
    for sw in ("v_permlane32_swap_b32", "v_permlane16_swap_b32"):
        e(f"v_mov_b32 v{vA}, v{reg}")
        e(f"v_mov_b32 v{vB}, v{reg}")
        e("s_nop 1")
        e(f"{sw} v{vA}, v{vB}")
        e("s_nop 1")
        if dst is not None: reg = dst
        e(f"{op} v{reg}, v{vA}, v{vB}")
def nblocks(r):
    e(f"s_cmp_lt_i32 s{r}, 1")
    e(f"s_cselect_b32 s{r}, 0x1000, s{r}")
    e(f"s_min_i32 s{r}, s{r}, 0x1000")
    e(f"s_add_u32 s{r}, s{r}, 15")
    e(f"s_lshr_b32 s{r}, s{r}, 4")
chk_n = [0]
def started_check():
    n = chk_n[0]; chk_n[0] += 1
    e(f"v_mov_b32 v{vB}, 0")
    lab(f"A_chk{n}")
    e(f"ds_read_b32 v{vLIM}, v{vB} offset:{L_OK}")
    e("s_waitcnt lgkmcnt(0)")
    e(f"v_cmp_eq_u32 vcc, 0, v{vLIM}")
    e(f"s_cbranch_vccnz A_chk{n}")
def dump_prof():
    if cfg.PROF:
        e("s_mov_b64 exec, -1")
        e(f"s_mul_i32 s{sT0}, s2, 5")
        e(f"s_add_u32 s{sT0}, s{sT0}, s{sWAVE}")
        e(f"s_lshl_b32 s{sT0}, s{sT0}, 8")
        e(f"s_add_u32 s{sT0}, s{sT0}, 0x2000000")
        e(f"v_lshl_add_u32 v{vX}, v{vLANE}, 2, s{sT0}")
        e(f"global_store_dword v{vX}, v{vPROF}, {pr(sWS)}")
def dump_stamps():
    e("s_mov_b64 exec, -1")
    e("s_waitcnt lgkmcnt(0)")
    e(f"s_add_u32 s{sWS}, s{sWS}, 0x20000000")
    e(f"s_addc_u32 s{sWS+1}, s{sWS+1}, 0")
    e(f"s_lshl_b32 s{sT0}, s2, 4")
    e(f"v_mov_b32 v{vX}, s{sT0}")
    for i in range(4): e(f"v_mov_b32 v{vS+i}, s{sST+i}")
    e("s_mov_b64 exec, 1")
    e(f"global_store_dwordx4 v{vX}, v[{vS}:{vS+3}], {pr(sWS)}")

e("s_cmp_ge_u32 s2, 256")
e("s_cbranch_scc1 A_end")
if cfg.STAMPS: e(f"s_memrealtime {pr(sST)}")
prof(0)
e(f"v_lshrrev_b32 v{vA}, 6, v0")
e(f"v_and_b32 v{vLANE}, 63, v0")
e(f"v_readfirstlane_b32 s{sWAVE}, v{vA}")
e(f"s_lshr_b32 s{sHEAD}, s2, 3")
e(f"s_and_b32 s{sB0}, s2, 7")
e(f"s_cmp_ge_u32 s{sWAVE}, 4")
e("s_cbranch_scc1 P_start")
e("s_load_dwordx16 s[4:19], s[0:1], 0")
e(f"v_and_b32 v{vC}, 15, v0")
e(f"v_lshrrev_b32 v{vG}, 4, v{vLANE}")
e(f"s_lshl_b32 s{sTKO}, s{sHEAD}, 12")
e(f"s_add_u32 s{sTKO}, s{sTKO}, {TK_OFF}")
e(f"s_mul_i32 s{sHOFF}, s{sHEAD}, 384")
e(f"s_lshl_b32 s{sT2}, s{sB0}, 2")
e(f"s_lshl_b32 s{sT0}, s{sB0}, 10")
if cfg.TOK == 0:
    e(f"v_lshrrev_b32 v{vOK}, 1, v{vC}")
else:
    e(f"v_and_b32 v{vOK}, 2, v{vC}")
    e(f"v_lshrrev_b32 v{vA}, 2, v{vC}")
    e(f"v_lshl_add_u32 v{vOK}, v{vOK}, 1, v{vA}")
e(f"v_mul_u32_u24 v{vOK}, 12288, v{vOK}")
e(f"v_lshl_add_u32 v{vOK}, v{vG}, 5, v{vOK}")
e(f"v_and_b32 v{vA}, 1, v{vC}")
e(f"v_lshl_add_u32 v{vOK}, v{vA}, 4, v{vOK}")
e(f"v_mul_u32_u24 v{vA}, {24576 if cfg.TOK == 0 else 12288}, v{vG}")
e(f"v_lshl_add_u32 v{vOV4}, v{vC}, 4, v{vA}")
e(f"v_lshl_add_u32 v{vOV2}, v{vC}, 3, v{vA}")
e(f"v_and_b32 v{vX}, 7, v{vC}")
e(f"v_mul_u32_u24 v{vX+1}, 12288, v{vX}")
e(f"v_lshl_add_u32 v{vX+1}, v{vG}, 5, v{vX+1}")
e(f"v_lshrrev_b32 v{vX+3}, 3, v{vC}")
e(f"v_lshl_add_u32 v{vX+1}, v{vX+3}, 4, v{vX+1}")
e(f"v_add_u32 v{vX+1}, s{sHOFF}, v{vX+1}")
e(f"s_mul_i32 s{sT1}, s{sWAVE}, {WSZ}")
e(f"v_mul_u32_u24 v{vPO}, {RS}, v{vX}")
e(f"v_lshl_add_u32 v{vPO}, v{vX+3}, 6, v{vPO}")
e(f"v_lshl_add_u32 v{vPO}, v{vG}, 4, v{vPO}")
e(f"v_add_u32 v{vPO}, s{sT1}, v{vPO}")
e(f"v_lshlrev_b32 v{vX}, 2, v{vX}")
e(f"v_lshl_add_u32 v{vT+4}, v{vLANE}, 4, s{sT0}")
for srd in (SRDK, SRDV):
    e(f"s_mov_b32 s{srd+2}, {KV_BYTES}")
    e(f"s_mov_b32 s{srd+3}, 0x20000")
e("s_barrier")
e("s_waitcnt lgkmcnt(0)")
prof(1)
e(f"s_load_dword s{sT1}, {pr(sCTX)}, s{sT2}")
if cfg.VROW:
    e(f"global_load_dwordx4 v[{vT}:{vT+3}], v{vT+4}, {pr(sBT)}")
e(f"global_load_dword v{vCTXM}, v{vX}, {pr(sCTX)}")
for s in range(3):
    e(f"global_load_dwordx4 v[{vQ+4*s}:{vQ+4*s+3}], v{vX+1}, {pr(sQ)} offset:{128*s}")
for srd, base in ((SRDK, sK), (SRDV, sV)):
    e(f"s_mov_b32 s{srd}, s{base}")
    e(f"s_and_b32 s{srd+1}, s{base+1}, 0xffff")
e(f"s_add_u32 s{sTKB}, s{sWS}, s{sTKO}")
e(f"s_addc_u32 s{sTKB+1}, s{sWS+1}, 0")
e(f"s_mov_b32 s{sC2}, 0x{f2u(C2):08x}")
e(f"s_mov_b32 s{sSELLO}, 0x05040100")
e(f"s_mov_b32 s{sSELHI}, 0x07060302")
e(f"v_mov_b32 v{vM}, 0x{NEG:08x}")
e(f"v_mul_f32 v{vMC}, s{sC2}, v{vM}")
e(f"v_mov_b32 v{vL}, 0")
e(f"v_mov_b32 v{vNINF}, 0xff800000")
e(f"v_mov_b32 v{vLIST}, 0")
e(f"v_mov_b32 v{vLB}, 0")
for i in range(24):
    e(f"v_mov_b32 v{vO+i}, 0")
e("s_waitcnt lgkmcnt(0)")
prof(2)
nblocks(sT1)
e(f"s_sub_u32 s{sT1}, s{sT1}, s{sWAVE}")
kk_of = [KB + k for k in range(KP)] + list(range(KB))
if cfg.VROW:
    for k in range(KW):
        e(f"s_sub_u32 s{sJW+k}, s{sT1}, {1+4*kk_of[k]}")
    e(f"s_and_b32 s{sT2}, s{sJW}, 3")
    for c in range(1, 4):
        e(f"s_cmp_eq_u32 s{sT2}, {c}")
        e(f"s_cselect_b64 {pr(sA+2*c)}, -1, 0")
    e(f"s_lshr_b32 s{sT2}, s{sJW}, 2")
    e("s_waitcnt vmcnt(4)")
    for c in range(1, 4):
        e(f"v_cndmask_b32_e64 v{vT}, v{vT}, v{vT+c}, {pr(sA+2*c)}")
    e("s_nop 0")
    e(f"v_readlane_b32 s{sPW}, v{vT}, s{sT2}")
    e("s_nop 0")
else:
    for k in range(KW):
        e(f"s_sub_u32 s{sJW+k}, s{sT1}, {1+4*kk_of[k]}")
        e(f"s_max_i32 s{sT2}, s{sJW+k}, 0")
        e(f"s_lshl_b32 s{sT2}, s{sT2}, 2")
        e(f"s_add_u32 s{sT2}, s{sT2}, s{sT0}")
        e(f"s_load_dword s{sPW+k}, {pr(sBT)}, s{sT2}")
    e("s_waitcnt lgkmcnt(0)")
prof(3)
e(f"s_and_b32 s{sT1}, s{sPW}, 0xffff")
e(f"s_mul_i32 s{sT1}, s{sT1}, 196608")
e(f"s_add_u32 s{sT1}, s{sT1}, s{sHOFF}")
e(f"s_cmp_ge_i32 s{sJW}, 0")
e(f"s_cselect_b32 s{sO}, s{sT1}, 0x{OOB:x}")
soffs()
k_loads()
if not cfg.THR0:
    for k in range(8): v_load1(k)
prof(4)
if cfg.VROW:
    for k in range(1, KW):
        e(f"s_lshr_b32 s{sT2}, s{sJW+k}, 2")
        e(f"v_readlane_b32 s{sPW+k}, v{vT}, s{sT2}")
e(f"s_lshl_b32 s{sT0}, 0x1000000, s{sB0}")
for k in range(KW):
    dst = sREC if k == 0 else sPW+k
    e(f"s_and_b32 s{sT1}, s{sPW+k}, 0x{PHM:x}")
    e(f"s_lshl_b32 s{sT2}, s{sJW+k}, 16")
    e(f"s_or_b32 s{sT1}, s{sT1}, s{sT2}")
    e(f"s_or_b32 s{sT1}, s{sT1}, s{sT0}")
    e(f"s_cmp_ge_i32 s{sJW+k}, 0")
    e(f"s_cselect_b32 s{dst}, s{sT1}, 0")
    if 0 < k < KP: e(f"v_writelane_b32 v{vLIST}, s{dst}, {k}")
    if k >= KP: e(f"v_writelane_b32 v{vLB}, s{dst}, {k-KP}")
for i in range(24, 48):
    e(f"v_mov_b32 v{vO+i}, 0")
e(f"s_lshl_b32 s{sBM}, 0x10001, s{sB0}")
e(f"s_mov_b32 s{sBM+1}, s{sBM}")
e(f"s_mul_i32 s{sT1}, s{sWAVE}, 768")
e(f"v_lshl_add_u32 v{vSB}, v{vG}, 4, s{sT1}")
e(f"s_waitcnt vmcnt({6 if cfg.THR0 else 14})")
e(f"v_cmp_gt_i32 vcc, 1, v{vCTXM}")
e(f"v_mov_b32 v{vA}, 0x1000")
e(f"v_lshlrev_b32 v{vB}, {1 if cfg.TOK == 0 else 0}, v{vG}")
e(f"v_cndmask_b32 v{vCTXM}, v{vCTXM}, v{vA}, vcc")
for i in range(12):
    e(f"v_cndmask_b32_e64 v{vQ+i}, v{vQ+i}, 0, vcc")
e(f"v_sub_u32 v{vCTXM}, v{vCTXM}, v{vB}")
e(f"s_mov_b32 s{sI}, 0")
e(f"s_mov_b32 s{sLF}, 0")
e(f"s_mov_b32 s{sCNT}, 0x7fffffff")
e(f"s_mov_b32 s{sCNTA}, 0x7fffffff")
e(f"s_mov_b32 s{sDS}, {KP+1}")
if cfg.THR0:
    ADD[0] = cfg.THR0 - 1
    for k in range(8): v_load1(k, 1)
    ADD[0] = 0

def perm(t):
    if t < 8:
        q_, hsel = t >> 1, t & 1
        regs = [vV + i*4 + q_ for i in range(4)]
    else:
        q_, hsel = (t-8) >> 1, t & 1
        regs = [vV + 16 + i*2 + q_ for i in range(4)]
    sel = sSELHI if hsel else sSELLO
    e(f"v_perm_b32 v{vT+2*t}, v{regs[1]}, v{regs[0]}, s{sel}")
    e(f"v_perm_b32 v{vT+2*t+1}, v{regs[3]}, v{regs[2]}, s{sel}")
def pv(t):
    e(f"v_mfma_f32_16x16x16_bf16 v[{vO+4*t}:{vO+4*t+3}], v[{vT+2*t}:{vT+2*t+1}], v[{vP}:{vP+1}], v[{vO+4*t}:{vO+4*t+3}]")
def body(tag, last, phb=False, half=False):
    N = cfg.NOUT
    hv = cfg.HALVES and not phb and not last
    if not half:
        e(f"s_bfe_u32 s{sJ16}, s{sREC}, 0x80010")
        e(f"s_lshl_b32 s{sJ16}, s{sJ16}, 4")
        e(f"s_lshr_b32 s{sMK}, s{sREC}, 24")
        e(f"s_mul_i32 s{sMK}, s{sMK}, 0x10001")
        e(f"s_mov_b32 s{sMK+1}, s{sMK}")
        if hv:
            e(f"s_and_b32 s{sCUR}, s{sREC}, 0xc000")
            e(f"s_bfe_u32 s{sT1}, s{sREC}, 0x1000e")
            e(f"s_lshl_b32 s{sT1}, s{sT1}, 3")
            e(f"s_sub_u32 s{sJ16}, s{sJ16}, s{sT1}")
    if phb:
        e(f"s_sub_u32 s{sT1}, s{sI}, s{sCNTA}")
        e(f"s_add_u32 s{sT1}, s{sT1}, 1")
        e(f"v_readlane_b32 s{sREC}, v{vLB}, s{sT1}")
        e("s_nop 1")
    elif half:
        lab("A_recH")
    elif not last:
        e(f"s_add_u32 s{sT0}, s{sI}, 1")
        e(f"v_readlane_b32 s{sREC}, v{vLIST}, s{sT0}")
        e(f"s_add_u32 s{sT1}, s{sT0}, 1")
        e(f"s_cmp_ge_u32 s{sT1}, s{sDS}")
        e(f"s_cbranch_scc1 A_dyn")
        lab("A_rec")
    if not last:
        e(f"s_and_b32 s{sT1}, s{sREC}, 0x{PHM:x}")
        e(f"s_mul_i32 s{sT1}, s{sT1}, 196608")
        e(f"s_add_u32 s{sT1}, s{sT1}, s{sHOFF}")
        if half:
            e(f"s_bitcmp1_b32 s{sREC}, 15")
            e(f"s_cselect_b32 s{sT2}, {8*12288}, 0")
            e(f"s_add_u32 s{sO+2}, s{sT1}, s{sT2}")
            e(f"s_add_u32 s{sO+3}, s{sO+2}, {(TOFF[3]-TOFF[2])*12288}")
            e(f"s_mov_b32 s{sO}, 0x{OOB:x}")
            e(f"s_mov_b32 s{sO+1}, 0x{OOB:x}")
        else:
            e(f"s_cmp_lg_u32 s{sREC}, 0")
            e(f"s_cselect_b32 s{sO}, s{sT1}, 0x{OOB:x}")
            soffs()
    e(f"v_subrev_u32 v{vLIM}, s{sJ16}, v{vCTXM}")
    e(f"v_cndmask_b32_e64 v{vLIM}, 0, v{vLIM}, {pr(sMK)}")
    for i, o in enumerate(TOFF):
        e(f"v_cmp_lt_i32_e64 {pr(sA+2*i)}, {o}, v{vLIM}")
    if hv:
        e(f"s_cmp_lg_u32 s{sCUR}, 0")
        e(f"s_cselect_b64 {pr(sA)}, 0, {pr(sA)}")
        e(f"s_cselect_b64 {pr(sA+2)}, 0, {pr(sA+2)}")
    e(f"s_waitcnt vmcnt(8)")
    for s in range(3):
        for u, c in ((0, vC1), (1, vC2)):
            r = u*12 + s*4
            src = "0" if s == 0 else f"v[{c}:{c+3}]"
            e(f"v_mfma_f32_16x16x32_bf16 v[{c}:{c+3}], a[{r}:{r+3}], v[{vQ+4*s}:{vQ+4*s+3}], {src}")
    if not last: k_loads(0, cfg.KSPLIT, N)
    e(f"s_nop {8-(0 if last else cfg.KSPLIT)}")
    for i, (c, r) in enumerate(((vC1, 0), (vC1, 2), (vC2, 0), (vC2, 2))):
        e(f"v_add_f32_dpp v{vS+i}, v{c+r+1}, v{c+r} row_ror:8 row_mask:0xf bank_mask:0xf")
    for i in range(4):
        e(f"v_cndmask_b32_e64 v{vS+i}, v{vNINF}, v{vS+i}, {pr(sA+2*i)}")
    e(f"v_max3_f32 v{vMX}, v{vS}, v{vS+1}, v{vS+2}")
    e(f"v_max_f32 v{vMX}, v{vMX}, v{vS+3}")
    e(f"v_cmp_gt_f32 vcc, v{vMX}, v{vM}")
    e(f"s_cbranch_vccnz A_slow{tag}")
    lab(f"A_back{tag}")
    for i in range(4):
        e(f"v_fma_f32 v{vX+i}, v{vS+i}, s{sC2}, -v{vMC}")
    for i in range(4):
        e(f"v_exp_f32 v{vX+i}, v{vX+i}")
    if not last: k_loads(cfg.KSPLIT, 6, N)
    else: e("s_nop 0")
    e(f"v_cvt_pk_bf16_f32 v{vP}, v{vX}, v{vX+1}")
    e(f"v_cvt_pk_bf16_f32 v{vP+1}, v{vX+2}, v{vX+3}")
    e(f"v_add_f32 v{vX}, v{vX}, v{vX+1}")
    e(f"v_add_f32 v{vX+2}, v{vX+2}, v{vX+3}")
    e(f"v_add_f32 v{vL}, v{vL}, v{vX}")
    e(f"v_add_f32 v{vL}, v{vL}, v{vX+2}")
    if last:
        xreduce("v_add_f32", vL)
        e(f"s_lshl_b32 s{sT0}, s{sWAVE}, 3")
        e(f"v_mov_b32 v{vX+1}, s{sT0}")
        e(f"s_lshl_b32 s{sT0}, s{sWAVE}, 2")
        e(f"v_mov_b32 v{vX+2}, s{sT0}")
        e(f"v_mov_b32 v{vX+3}, 1")
        e(f"s_mov_b64 exec, {pr(sBM)}")
        e(f"ds_write_b64 v{vX+1}, v[{vMC}:{vMC+1}] offset:{L_STBML}")
        e("s_mov_b64 exec, -1")
        e(f"s_waitcnt vmcnt(0)")
        perm(0); perm(1)
        for t in range(12):
            if t+2 < 12: perm(t+2)
            pv(t)
    else:
        e(f"s_waitcnt vmcnt(6)")
        for t in range(12): perm(t)
        v_load1(0, N); v_load1(1, N)
        for t in range(12): pv(t)
        e(f"s_add_u32 s{sI}, s{sI}, 1")
        if not phb and not half and cfg.ZRE:
            e(f"s_cmp_ge_u32 s{sI}, s{sCNTA}")
            e("s_cbranch_scc1 A_late")
            lab("A_more")
        elif not phb and not half:
            e(f"s_cmp_eq_u32 s{sI}, s{sCNTA}")
            e("s_cbranch_scc1 A_last")
        for k in range(2, 8): v_load1(k, N)
        if cfg.ZRE and not half:
            lab("A_cont")
            e("s_branch A_loop")
        elif half or (cfg.BADD and not phb):
            e("s_branch A_loop")
        else:
            lab("A_cont")
            e(f"s_cmp_lt_u32 s{sI}, s{sCNT}")
            e(f"s_cbranch_scc1 {'B_loop' if phb else 'A_loop'}")

lab("A_loop")
inbody[0] = True
body("A", False)
inbody[0] = False
tags = ["A", "Z"]
if cfg.BADD:
    lab("B_loop")
    ADD[0] = cfg.BADD
    body("B", False, True)
    ADD[0] = 0
    tags.append("B")
if cfg.ZRE:
    tags.remove("Z")
    lab("A_late")
    e(f"s_cmp_eq_u32 s{sI}, s{sCNTA}")
    e("s_cbranch_scc1 A_last")
    e(f"s_cmp_le_u32 s{sI}, s{sCNT}")
    e("s_cbranch_scc1 A_more")
else:
    body("Z", True)
if cfg.MIDST: e(f"s_memrealtime {pr(sST+2)}")
prof(6)
e(f"s_mov_b64 exec, {pr(sBM)}")
for t in range(12):
    if t == 4: e("s_nop 3")
    e(f"ds_write_b128 v{vSB}, v[{vO+4*t}:{vO+4*t+3}] offset:{L_STB + 64*t}")
if cfg.ZRE:
    e("s_mov_b64 exec, -1")
    xreduce("v_add_f32", vL)
    e(f"s_lshl_b32 s{sT0}, s{sWAVE}, 3")
    e(f"v_mov_b32 v{vX+1}, s{sT0}")
    e(f"s_lshl_b32 s{sT0}, s{sWAVE}, 2")
    e(f"v_mov_b32 v{vX+2}, s{sT0}")
    e(f"v_mov_b32 v{vX+3}, 1")
    e(f"s_mov_b64 exec, {pr(sBM)}")
    e(f"ds_write_b64 v{vX+1}, v[{vMC}:{vMC+1}] offset:{L_STBML}")
e("s_waitcnt lgkmcnt(0)")
e(f"ds_write_b32 v{vX+2}, v{vX+3} offset:{L_FB}")
prof(7)
dump_prof()
if cfg.STAMPS and cfg.MIDST:
    e(f"s_cmp_lg_u32 s{sWAVE}, 0")
    e("s_cbranch_scc1 A_end")
    dump_stamps()
lab("A_end")
e("s_endpgm")

if cfg.HALVES:
    ADD[0] = cfg.HADD
    body("H", False, half=True)
    ADD[0] = 0
    tags.append("H")
lab("A_last")
prof(5)
ADD[0] = cfg.LADD
v_load1(2, cfg.NOUT)
xreduce("v_add_f32", vL, dst=vMA+1)
e(f"v_mov_b32 v{vMA}, v{vMC}")
e(f"s_lshl_b32 s{sT0}, s{sWAVE}, 6")
e(f"v_lshl_add_u32 v{vX}, v{vLANE}, 3, s{sT0}")
e("s_mov_b64 exec, 0xff")
e(f"ds_write_b64 v{vX}, v[{vMA}:{vMA+1}] offset:{L_STGML}")
e("s_mov_b64 exec, -1")
for i in range(6):
    for r in range(4):
        e(f"v_mov_b32_dpp v{vO+8*i+r}, v{vO+8*i+4+r} row_ror:8 row_mask:0xf bank_mask:0xc")
    e(f"ds_write_b128 v{vPO}, v[{vO+8*i}:{vO+8*i+3}] offset:{L_STG + 128*i}")
e(f"s_lshl_b32 s{sT0}, s{sWAVE}, 2")
e(f"v_mov_b32 v{vX}, s{sT0}")
e(f"v_mov_b32 v{vX+1}, 1")
e("s_waitcnt lgkmcnt(0)")
e(f"ds_write_b32 v{vX}, v{vX+1} offset:{L_FA}")
for k in range(3, 8): v_load1(k, cfg.NOUT)
ADD[0] = 0
e("s_branch A_cont")

for tag in tags:
    lab(f"A_slow{tag}")
    xreduce("v_max_f32", vMX)
    e(f"v_max_f32 v{vM}, v{vM}, v{vMX}")
    e(f"v_mul_f32 v{vA}, s{sC2}, v{vM}")
    e(f"v_sub_f32 v{vB}, v{vMC}, v{vA}")
    e(f"v_exp_f32 v{vB}, v{vB}")
    e(f"v_mov_b32 v{vMC}, v{vA}")
    e(f"v_mul_f32 v{vL}, v{vL}, v{vB}")
    for i in range(24):
        e(f"v_pk_mul_f32 v[{vO+2*i}:{vO+2*i+1}], v[{vO+2*i}:{vO+2*i+1}], v[{vB}:{vB+1}] op_sel_hi:[1,0]")
    e(f"s_branch A_back{tag}")

lab("A_dyn")
e(f"s_cmp_ge_u32 s{sT0}, s{sCNTA}")
e("s_cbranch_scc1 A_phb")
e(f"s_cmp_lg_u32 s{sLF}, 0")
e("s_cbranch_scc1 A_dyn2")
e(f"s_mov_b32 s{sLF}, 1")
e(f"v_mov_b32 v{vA}, 0")
e("s_barrier")
e(f"ds_read_b32 v{vA}, v{vA} offset:{L_N}")
e(f"s_lshl_b32 s{sT1}, s{sB0}, 2")
e(f"s_add_u32 s{sT1}, s{sT1}, s{sWAVE}")
e(f"s_sub_u32 s{sT1}, s{sT1}, {32*KP}")
e(f"v_lshlrev_b32 v{vB}, 5, v{vLANE}")
e(f"v_add_lshl_u32 v{vB}, v{vB}, s{sT1}, 2")
e(f"v_min_u32 v{vB}, 8188, v{vB}")
e(f"ds_read_b32 v{vLIST}, v{vB}")
e("s_waitcnt lgkmcnt(0)")
e(f"v_readfirstlane_b32 s{sN}, v{vA}")
e(f"v_readlane_b32 s{sREC}, v{vLIST}, s{sT0}")
e("s_nop 0")
e(f"s_mul_i32 s{sT1}, s{sN}, {cfg.F}")
e(f"s_lshr_b32 s{sT1}, s{sT1}, 10")
e(f"s_lshl_b32 s{sP0}, s{sT1}, 5")
e(f"s_add_u32 s{sDS}, s{sT1}, {KP}")
if cfg.HALVES:
    e(f"s_sub_i32 s{sH0}, s{sN}, {cfg.HALVES}")
    e(f"s_max_i32 s{sH0}, s{sH0}, s{sP0}")
e(f"s_add_u32 s{sT1}, s{sT0}, 1")
e(f"s_cmp_lt_u32 s{sT1}, s{sDS}")
e("s_cbranch_scc1 A_rec")
if cfg.WT:
    e(f"s_cmp_lg_u32 s{sT0}, s{sDS}")
    e("s_cbranch_scc1 A_dyn2")
    started_check()
    e(f"s_mov_b32 s{sTK}, 1")
    e(f"s_atomic_add s{sTK}, {pr(sTKB)}, 0 glc")
    lab("A_dyn2")
    e(f"s_cmp_lt_u32 s{sT0}, s{sDS}")
    e(f"s_cbranch_scc1 A_first")
    e("s_waitcnt lgkmcnt(0)")
    e(f"s_add_u32 s{sT2}, s{sTK}, s{sP0}")
    if cfg.HALVES:
        e(f"s_mov_b32 s{sHF}, 0")
        e(f"s_cmp_lt_u32 s{sT2}, s{sH0}")
        e("s_cbranch_scc1 A_full")
        e(f"s_sub_u32 s{sT1}, s{sT2}, s{sH0}")
        e(f"s_and_b32 s{sHF}, s{sT1}, 1")
        e(f"s_add_u32 s{sHF}, s{sHF}, 1")
        e(f"s_lshl_b32 s{sHF}, s{sHF}, 14")
        e(f"s_lshr_b32 s{sT1}, s{sT1}, 1")
        e(f"s_add_u32 s{sT2}, s{sT1}, s{sH0}")
        lab("A_full")
    e(f"s_cmp_ge_u32 s{sT2}, s{sN}")
    e(f"s_cbranch_scc1 A_fini")
    e(f"s_lshl_b32 s{sT2}, s{sT2}, 2")
    e(f"v_mov_b32 v{vB}, s{sT2}")
    e(f"ds_read_b32 v{vB}, v{vB}")
    e("s_waitcnt lgkmcnt(0)")
    e(f"v_readfirstlane_b32 s{sREC}, v{vB}")
    if cfg.HALVES:
        e(f"s_mov_b32 s{sTK}, 1")
        e(f"s_atomic_add s{sTK}, {pr(sTKB)}, 0 glc")
        e(f"s_or_b32 s{sREC}, s{sREC}, s{sHF}")
        e(f"s_cmp_lg_u32 s{sHF}, 0")
        e("s_cbranch_scc1 A_recH")
        e("s_branch A_rec")
    lab(f"A_iss")
    e(f"s_mov_b32 s{sTK}, 1")
    e(f"s_atomic_add s{sTK}, {pr(sTKB)}, 0 glc")
    e(f"s_branch A_rec")
    lab(f"A_first")
    started_check()
    e(f"s_branch A_iss")
else:
    e(f"s_cmp_lg_u32 s{sT0}, s{sDS}")
    e("s_cbranch_scc1 A_dyn2")
    e(f"s_cmp_lg_u32 s{sWAVE}, 0")
    e("s_cbranch_scc1 A_dyn2")
    started_check()
    e(f"s_mov_b32 s{sTK}, 1")
    e(f"s_atomic_add s{sTK}, {pr(sTKB)}, 0 glc")
    lab("A_dyn2")
    e(f"s_sub_u32 s{sT1}, s{sT0}, s{sDS}")
    e(f"s_lshl_b32 s{sT2}, s{sT1}, 2")
    e(f"v_mov_b32 v{vA}, s{sT2}")
    e(f"s_cmp_lg_u32 s{sWAVE}, 0")
    e(f"s_cbranch_scc1 A_oth")
    e(f"s_cmp_lt_i32 s{sT1}, 0")
    e(f"s_cbranch_scc1 A_first")
    e("s_waitcnt lgkmcnt(0)")
    e(f"s_lshl_b32 s{sT2}, s{sTK}, 2")
    e(f"s_add_u32 s{sT2}, s{sT2}, s{sP0}")
    e(f"s_cmp_lt_u32 s{sT2}, s{sN}")
    e(f"s_cselect_b32 s{sT2}, s{sT2}, {DONE}")
    e(f"v_mov_b32 v{vB}, s{sT2}")
    e(f"ds_write_b32 v{vA}, v{vB} offset:{L_SLOT}")
    e(f"s_cbranch_scc0 A_fini")
    e(f"s_lshl_b32 s{sT2}, s{sT2}, 2")
    e(f"v_mov_b32 v{vB}, s{sT2}")
    e(f"ds_read_b32 v{vB}, v{vB}")
    e("s_waitcnt lgkmcnt(0)")
    e(f"v_readfirstlane_b32 s{sREC}, v{vB}")
    lab(f"A_iss")
    e(f"s_mov_b32 s{sTK}, 1")
    e(f"s_atomic_add s{sTK}, {pr(sTKB)}, 0 glc")
    e(f"s_branch A_rec")
    lab(f"A_first")
    started_check()
    e(f"s_branch A_iss")
    lab(f"A_oth")
    e(f"s_cmp_lt_i32 s{sT1}, 0")
    e(f"s_cbranch_scc1 A_rec")
    lab(f"A_poll")
    e(f"ds_read_b32 v{vB}, v{vA} offset:{L_SLOT}")
    e("s_waitcnt lgkmcnt(0)")
    e(f"v_readfirstlane_b32 s{sT2}, v{vB}")
    e("s_nop 1")
    e(f"s_cmp_eq_u32 s{sT2}, {EMPTY}")
    e(f"s_cbranch_scc1 A_poll")
    e(f"s_cmp_eq_u32 s{sT2}, {DONE}")
    e(f"s_cbranch_scc1 A_fini")
    e(f"s_add_u32 s{sT2}, s{sT2}, s{sWAVE}")
    e(f"s_lshl_b32 s{sT1}, s{sT2}, 2")
    e(f"s_cmp_lt_u32 s{sT2}, s{sN}")
    e(f"s_cselect_b32 s{sT1}, s{sT1}, {L_Z}")
    e(f"v_mov_b32 v{vB}, s{sT1}")
    e(f"ds_read_b32 v{vB}, v{vB}")
    e("s_waitcnt lgkmcnt(0)")
    e(f"v_readfirstlane_b32 s{sREC}, v{vB}")
    e("s_nop 1")
    e(f"s_branch A_rec")
lab(f"A_fini")
e(f"s_mov_b32 s{sCNTA}, s{sT0}")
e(f"s_add_u32 s{sCNT}, s{sT0}, {KB-1}")
lab("A_phb")
e(f"s_sub_u32 s{sT1}, s{sT0}, s{sCNTA}")
e(f"v_readlane_b32 s{sREC}, v{vLB}, s{sT1}")
e("s_nop 1")
e(f"s_branch A_rec")

pT, pM = 48, 56
pJ, pJX, pA, pB, pCNT, pJ4 = 64, 65, 66, 67, 68, 69
SRDO = 20
hA, hB, hP = 12, 13, 8
lab("P_start")
if cfg.PPRIO: e(f"s_setprio {cfg.PPRIO}")
if cfg.CODEPF:
    e("s_getpc_b64 s[40:41]")
    lab("P_pc")
    e(f"s_sub_u32 s40, s40, P_pc-{NAME}_kernel")
    e("s_subb_u32 s41, s41, 0")
    e(f"v_subrev_u32 v70, 256, v0")
    e(f"v_lshlrev_b32 v70, 6, v70")
    e(f"v_min_u32 v70, K_end-{NAME}_kernel-4, v70")
    e("global_load_dword v71, v70, s[40:41]")
e(f"v_subrev_u32 v{pJ}, 256, v0")
e(f"v_lshlrev_b32 v{pJ4}, 2, v{pJ}")
e(f"v_mov_b32 v{pA}, {EMPTY}")
e(f"v_mov_b32 v{pCNT}, 0")
for i in range(0 if cfg.WT else 3):
    e(f"ds_write_b32 v{pJ4}, v{pA} offset:{L_SLOT + 1024*i}")
e(f"ds_write_b32 v{pJ4}, v{pCNT} offset:{L_CNT}")
e("s_waitcnt lgkmcnt(0)")
e("s_load_dwordx16 s[4:19], s[0:1], 0")
e("s_barrier")
e(f"v_add_u32 v{pB}, 4096, v{pJ4}")
e(f"v_lshlrev_b32 v{pJX}, 16, v{pJ}")
e(f"s_sub_u32 s{sI}, s{sWAVE}, 4")
hFL, hBIG = 6, 84
hsO, hsT = 84, 85
e(f"v_lshlrev_b32 v{hFL}, 4, v{vLANE}")
e(f"v_mov_b32 v{hBIG}, 0x40000000")
e(f"v_cmp_gt_u32 vcc, 49, v{vLANE}")
e(f"s_lshl_b32 s{sT0}, s{sHEAD}, 3")
e(f"s_lshl_b32 s{sT1}, s{sI}, 1")
e(f"v_cndmask_b32 v{hFL}, v{hBIG}, v{hFL}, vcc")
e(f"s_add_u32 s{sT0}, s{sT0}, s{sT1}")
e(f"s_lshl_b32 s{sT0}, s{sT0}, 3")
e(f"s_add_u32 s{sT0}, s{sT0}, s{sB0}")
e(f"s_mul_i32 s{sDS}, s{sT0}, {RW}")
e(f"s_add_u32 s{sCNT}, s{sDS}, {8*RW}")
e(f"s_cmp_eq_u32 s{sT1}, s{sB0}")
e(f"s_cselect_b32 s{sDS}, 0x{OOB:x}, s{sDS}")
e(f"s_add_u32 s{sT1}, s{sT1}, 1")
e(f"s_cmp_eq_u32 s{sT1}, s{sB0}")
e(f"s_cselect_b32 s{sCNT}, 0x{OOB:x}, s{sCNT}")
for i in range(4): e(f"v_mov_b32 v{hP+i}, -1")
e(f"s_lshl_b32 s{sTK}, s{sHEAD}, 12")
e(f"s_add_u32 s{sTK}, s{sTK}, {TK_OFF}")
e(f"s_or_b32 s{sT0}, s{sB0}, s{sI}")
e(f"s_cmp_eq_u32 s{sT0}, 0")
e(f"s_cselect_b32 s{sTK}, s{sTK}, 0x{OOB:x}")
e(f"v_mov_b32 v{hA}, 0")
e(f"s_mov_b32 s{SRDW+2}, {WS_USED}")
e(f"s_mov_b32 s{SRDW+3}, 0x20000")
e(f"s_lshl_b32 s{sT2}, s{sHEAD}, 3")
for b in range(8):
    e(f"v_mov_b32 v{pM+b}, 0")
for b in range(1, 8):
    e(f"s_mov_b64 {pr(sNL+2*b)}, 0")
e("s_waitcnt lgkmcnt(0)")
e(f"s_load_dwordx8 s[{sC}:{sC+7}], {pr(sCTX)}, 0")
for b in range(8):
    e(f"global_load_dword v{pT+b}, v{pJ4 if b < 4 else pB}, {pr(sBT)} offset:{(b & 3)*1024}")
e(f"s_mov_b32 s{SRDW}, s{sWS}")
e(f"s_and_b32 s{SRDW+1}, s{sWS+1}, 0xffff")
e(f"buffer_store_dwordx4 v[{hP}:{hP+3}], v{hFL}, s[{SRDW}:{SRDW+3}], s{sDS} offen sc1")
e(f"buffer_store_dwordx4 v[{hP}:{hP+3}], v{hFL}, s[{SRDW}:{SRDW+3}], s{sCNT} offen sc1")
e(f"buffer_store_dword v{hA}, v{hA}, s[{SRDW}:{SRDW+3}], s{sTK} offen sc1")
e(f"s_add_u32 s{sDBG}, s{sDBG}, s{sT2}")
e(f"s_addc_u32 s{sDBG+1}, s{sDBG+1}, 0")
NPF = 0
if cfg.TLBPF:
    sh = cfg.TLBPF
    NPF = max(1, (KV_BYTES >> sh) // 128 + 1)
    e(f"s_bitcmp1_b32 s{sI}, 0")
    e(f"s_cselect_b32 s24, s{sV}, s{sK}")
    e(f"s_cselect_b32 s25, s{sV+1}, s{sK+1}")
    e(f"s_and_b32 s25, s25, 0xffff")
    e(f"s_mov_b32 s26, {KV_BYTES}")
    e(f"s_mov_b32 s27, 0x20000")
    e(f"s_lshr_b32 s{sT0}, s{sI}, 1")
    e(f"s_lshl_b32 s{sT0}, s{sT0}, {sh+6}")
    e(f"v_lshlrev_b32 v72, {sh}, v{vLANE}")
    for i in range(NPF):
        e(f"buffer_load_dword v73, v72, s[24:27], s{sT0} offen")
        if i+1 < NPF: e(f"s_add_u32 s{sT0}, s{sT0}, {128 << sh}")
e("s_waitcnt lgkmcnt(0)")
for b in range(8):
    nblocks(sC+b)
    e(f"s_sub_u32 s{sC+b}, s{sC+b}, {4*KW}")
for b in range(8):
    e(f"v_cmp_gt_i32_e64 {pr(sVAL+2*b)}, s{sC+b}, v{pJ}")
e(f"s_waitcnt vmcnt({3+NPF})")
for b in range(8):
    e(f"v_cndmask_b32_e64 v{pT+b}, {-(b+1)}, v{pT+b}, {pr(sVAL+2*b)}")
for b in range(7):
    hi = list(range(7, b, -1))
    for k, b2 in enumerate(hi):
        e(f"v_cmp_eq_u32_e64 {pr(sEQ+2*k)}, v{pT+b}, v{pT+b2}")
    if len(hi) < 3: e(f"s_nop {2-len(hi)}")
    for k, b2 in enumerate(hi):
        e(f"v_addc_co_u32_e64 v{pM+b}, vcc, v{pM+b}, v{pM+b}, {pr(sEQ+2*k)}")
    for k, b2 in enumerate(hi):
        e(f"s_or_b64 {pr(sNL+2*b2)}, {pr(sNL+2*b2)}, {pr(sEQ+2*k)}")
e(f"v_mov_b32 v{pCNT}, 0")
for b in range(8):
    if b: e(f"s_andn2_b64 {pr(sVAL+2*b)}, {pr(sVAL+2*b)}, {pr(sNL+2*b)}")
    e(f"s_bcnt1_i32_b64 s{sT0}, {pr(sVAL+2*b)}")
    e(f"s_or_b32 s{sT0}, s{sT0}, 0x10000")
    e(f"v_writelane_b32 v{pCNT}, s{sT0}, {b}")
e(f"s_lshl_b32 s{sT0}, s{sI}, 2")
e(f"s_add_u32 s{sT0}, s{sT0}, {L_CNT}")
e(f"v_lshl_add_u32 v{pA}, v{vLANE}, 4, s{sT0}")
e(f"s_mov_b64 exec, 0xff")
e(f"ds_write_b32 v{pA}, v{pCNT}")
e(f"s_mov_b64 exec, -1")
for b in range(8):
    e(f"v_lshl_or_b32 v{pM+b}, v{pM+b}, 1, 1")
    e(f"v_lshlrev_b32 v{pM+b}, {24+b}, v{pM+b}")
    e(f"v_or3_b32 v{pT+b}, v{pT+b}, v{pJX}, v{pM+b}")
    e(f"v_mbcnt_lo_u32_b32 v{pM+b}, s{sVAL+2*b}, 0")
    e(f"v_mbcnt_hi_u32_b32 v{pM+b}, s{sVAL+2*b+1}, v{pM+b}")
e(f"v_and_b32 v{pA}, 31, v{vLANE}")
e(f"v_lshlrev_b32 v{pA}, 2, v{pA}")
lab("P_cw")
e(f"ds_read_b32 v{pCNT}, v{pA} offset:{L_CNT}")
e("s_waitcnt lgkmcnt(0)")
e(f"v_cmp_eq_u32 vcc, 0, v{pCNT}")
e("s_cbranch_vccnz P_cw")
e(f"v_and_b32 v{pCNT}, 0xffff, v{pCNT}")
e(f"v_mov_b32 v{pB}, v{pCNT}")
for sh in (1, 2, 4, 8):
    e("s_nop 1")
    e(f"v_add_u32_dpp v{pB}, v{pB}, v{pB} row_shr:{sh} row_mask:0xf bank_mask:0xf bound_ctrl:0")
e("s_nop 1")
e(f"v_add_u32_dpp v{pB}, v{pB}, v{pB} row_bcast:15 row_mask:0xa bank_mask:0xf")
e("s_nop 1")
e(f"v_readlane_b32 s{sN}, v{pB}, 31")
e(f"v_sub_u32 v{pB}, v{pB}, v{pCNT}")
e(f"s_mov_b32 s{sT1}, s{sI}")
for b in range(8):
    e(f"v_readlane_b32 s{sEQ+b}, v{pB}, s{sT1}")
    e(f"s_add_u32 s{sT1}, s{sT1}, 4")
e(f"v_mov_b32 v{pA}, 0")
e(f"v_mov_b32 v{pCNT}, s{sN}")
e(f"ds_write_b32 v{pA}, v{pCNT} offset:{L_N}")
for b in range(8):
    e(f"v_add_lshl_u32 v{pM+b}, v{pM+b}, s{sEQ+b}, 2")
for b in range(8):
    e(f"s_mov_b64 exec, {pr(sVAL+2*b)}")
    e(f"ds_write_b32 v{pM+b}, v{pT+b}")
e(f"s_mov_b64 exec, -1")
prof(1)
e("s_waitcnt vmcnt(0) lgkmcnt(0)")
e("s_barrier")

hL16, hM, hW, hMA = 5, 10, 11, 7
hO0, hO1, hO2, hO3 = 14, 15, 16, 17
hZ, hLA, hACC = 18, 19, 20
hQ = 24
hD = 40
hR = 72
hSA = 81
hsP, hsO, hsT = 32, 34, 35
hsML = 40
e(f"v_lshlrev_b32 v{hL16}, 4, v{vLANE}")
e(f"v_and_b32 v{hM}, 3, v{vLANE}")
e(f"v_lshlrev_b32 v{hM}, 2, v{hM}")
e(f"v_min_u32 v{hL16}, 752, v{hL16}")
e(f"s_mul_i32 s{sT0}, s{sI}, {2*RS}")
e(f"v_add_u32 v{hSA}, s{sT0}, v{hL16}")
e(f"s_lshl_b32 s{sT0}, s{sI}, 4")
e(f"v_mov_b32 v{hW}, s{sT0}")
e(f"v_cmp_eq_u32_e64 {pr(36)}, 48, v{vLANE}")
e(f"s_cmp_lg_u32 s{sI}, 0")
e("s_cbranch_scc1 H_wa0")
e(f"s_mov_b32 s{sT2}, 1")
e(f"s_mov_b32 s{sSPIN}, 0")
lab("H_chk")
e(f"s_mov_b32 s{sT1}, s{sT2}")
e(f"s_atomic_add s{sT2}, {pr(sDBG)}, 0 glc")
e(f"s_add_u32 s{sSPIN}, s{sSPIN}, 1")
e("s_waitcnt lgkmcnt(0)")
e(f"s_add_u32 s{sT1}, s{sT1}, s{sT2}")
e(f"s_mov_b32 s{sT2}, 0")
e(f"s_cmp_ge_u32 s{sT1}, 8")
e(f"s_cbranch_scc1 H_chkok")
e(f"s_cmp_ge_u32 s{sSPIN}, {SPIN_MAX >> 1}")
e(f"s_cbranch_scc1 H_chkok")
e("s_sleep 32")
e(f"s_branch H_chk")
lab("H_chkok")
e(f"v_mov_b32 v{hA}, 0")
e(f"v_mov_b32 v{hB}, 1")
e(f"ds_write_b32 v{hA}, v{hB} offset:{L_OK}")
e(f"s_mov_b32 s{SRDO}, s{sOUT}")
e(f"s_and_b32 s{SRDO+1}, s{sOUT+1}, 0xffff")
e(f"s_mov_b32 s{SRDO+2}, 98304")
e(f"s_mov_b32 s{SRDO+3}, 0x20000")
e(f"v_cmp_gt_u32 vcc, 48, v{vLANE}")
e(f"v_lshrrev_b32 v{hB}, 2, v{vLANE}")
e(f"v_and_b32 v{hZ}, 3, v{vLANE}")
e(f"v_cndmask_b32_e64 v{hA}, v{hBIG}, 0, vcc")
e(f"v_lshl_add_u32 v{hO0}, v{hZ}, 5, v{hB}")
e(f"v_lshl_add_u32 v{hO1}, v{hZ}, 4, v{hB}")
e(f"v_add_u32 v{hO1}, 120, v{hO1}")
e(f"v_cmp_gt_u32 vcc, 8, v{hB}")
e(f"v_mov_b32 v{hO2}, 8")
e(f"v_mov_b32 v{hO3}, 16")
e(f"v_cndmask_b32 v{hO0}, v{hO1}, v{hO0}, vcc")
e(f"v_cndmask_b32 v{hO3}, v{hO2}, v{hO3}, vcc")
e(f"v_lshl_add_u32 v{hO0}, v{hO0}, 1, v{hA}")
e(f"v_add_u32 v{hO1}, v{hO0}, v{hO3}")
e(f"v_add_u32 v{hO2}, v{hO1}, v{hO3}")
e(f"v_add_u32 v{hO3}, v{hO2}, v{hO3}")
e(f"v_mov_b32 v{hZ}, 0")
lab("H_wa0")
if cfg.NOHELP: e("s_endpgm")
def lds_wait(name, off, sleep):
    e(f"s_mov_b32 s{sSPIN}, 0")
    lab(name)
    e(f"ds_read_b32 v{hB}, v{hM} offset:{off}")
    e(f"s_add_u32 s{sSPIN}, s{sSPIN}, 1")
    e("s_waitcnt lgkmcnt(0)")
    e(f"v_cmp_eq_u32 vcc, 0, v{hB}")
    e(f"s_cmp_ge_u32 s{sSPIN}, {1 << 26}")
    e(f"s_cbranch_scc1 {name}_ok")
    if sleep:
        e(f"s_cbranch_vccz {name}_ok")
        e(f"s_sleep {sleep}")
        e(f"s_branch {name}")
    else:
        e(f"s_cbranch_vccnz {name}")
    lab(f"{name}_ok")
lds_wait("H_wa", L_FA, cfg.HSLEEP)
prof(2)
for w in range(4):
    e(f"ds_read_b128 v[{hQ+4*w}:{hQ+4*w+3}], v{hW} offset:{L_STGML + 64*w}")
for c in range(2):
    for w in range(4):
        e(f"ds_read_b128 v[{hD+16*c+4*w}:{hD+16*c+4*w+3}], v{hSA} offset:{L_STG + WSZ*w + RS*c}")
e("s_waitcnt lgkmcnt(8)")
for c in range(2):
    m = [hQ+4*w+2*c for w in range(4)]
    M, L = hMA, hLA
    e(f"v_max3_f32 v{M}, v{m[0]}, v{m[1]}, v{m[2]}")
    e(f"v_max_f32 v{M}, v{M}, v{m[3]}")
    for w in range(4): e(f"v_sub_f32 v{m[w]}, v{m[w]}, v{M}")
    for w in range(4): e(f"v_exp_f32 v{m[w]}, v{m[w]}")
    e(f"v_mul_f32 v{L}, v{m[0]}, v{m[0]+1}")
    for w in range(1, 4): e(f"v_fmac_f32 v{L}, v{m[w]}, v{m[w]+1}")
    e(f"s_waitcnt lgkmcnt({4-4*c})")
    for i in range(4): e(f"v_mul_f32 v{hR+4*c+i}, v{m[0]}, v{hD+16*c+i}")
    for w in range(1, 4):
        for i in range(4): e(f"v_fmac_f32 v{hR+4*c+i}, v{m[w]}, v{hD+16*c+4*w+i}")
    e(f"v_cndmask_b32_e64 v{hR+4*c}, v{hR+4*c}, v{M}, {pr(36)}")
    e(f"v_cndmask_b32_e64 v{hR+4*c+1}, v{hR+4*c+1}, v{L}, {pr(36)}")
    for i in range(4): e(f"v_min_u32 v{hR+4*c+i}, -2, v{hR+4*c+i}")
    e(f"buffer_store_dwordx4 v[{hR+4*c}:{hR+4*c+3}], v{hFL}, s[{SRDW}:{SRDW+3}], s{sDS if c == 0 else sCNT} offen sc1")
e(f"s_cmp_eq_u32 s{sI}, 0")
e("s_cbranch_scc1 H_start")
e("s_endpgm")

lab("H_start")
prof(3)
e(f"s_mul_i32 s{hsO}, s2, {8*RW}")
e(f"s_lshl_b32 s{hsP}, 1, s{sB0}")
e(f"s_xor_b32 s{hsP}, s{hsP}, 0xff")
e(f"s_mov_b32 s{sSPIN}, 0")
for i in range(32): e(f"v_mov_b32 v{hD+i}, 0")
lab("H_poll")
for s_ in range(8):
    e(f"s_bitcmp1_b32 s{hsP}, {s_}")
    e(f"s_cbranch_scc0 H_sk{s_}")
    if s_*RW < 4096:
        e(f"buffer_load_dwordx4 v[{hD+4*s_}:{hD+4*s_+3}], v{hFL}, s[{SRDW}:{SRDW+3}], s{hsO} offen offset:{s_*RW} sc1")
    else:
        e(f"s_add_u32 s{hsT}, s{hsO}, {s_*RW}")
        e(f"buffer_load_dwordx4 v[{hD+4*s_}:{hD+4*s_+3}], v{hFL}, s[{SRDW}:{SRDW+3}], s{hsT} offen sc1")
    lab(f"H_sk{s_}")
e(f"s_add_u32 s{sSPIN}, s{sSPIN}, 1")
e(f"s_mov_b32 s{hsP}, 0")
e("s_waitcnt vmcnt(0)")
for s_ in range(8):
    e(f"v_max3_u32 v{hQ+s_}, v{hD+4*s_}, v{hD+4*s_+1}, v{hD+4*s_+2}")
for s_ in range(8):
    e(f"v_max_u32 v{hQ+s_}, v{hQ+s_}, v{hD+4*s_+3}")
for s_ in range(8):
    e(f"v_cmp_eq_u32_e64 {pr(hsML+2*s_)}, -1, v{hQ+s_}")
for s_ in range(8):
    e(f"s_cmp_lg_u64 {pr(hsML+2*s_)}, 0")
    e(f"s_cselect_b32 s{hsT}, {1 << s_}, 0")
    e(f"s_or_b32 s{hsP}, s{hsP}, s{hsT}")
e("s_cbranch_scc0 H_gath")
e(f"s_cmp_ge_u32 s{sSPIN}, {SPIN_MAX}")
if cfg.PSLEEP:
    e("s_cbranch_scc1 H_gath")
    e(f"s_sleep {cfg.PSLEEP}")
    e("s_branch H_poll")
else:
    e("s_cbranch_scc0 H_poll")
lab("H_gath")
prof(4)
for s_ in range(8):
    e(f"v_readlane_b32 s{hsML+2*s_}, v{hD+4*s_}, 48")
    e(f"v_readlane_b32 s{hsML+2*s_+1}, v{hD+4*s_+1}, 48")
for s_ in range(8):
    e(f"s_cmp_eq_u32 s{sB0}, {s_}")
    e(f"s_cselect_b32 s{hsML+2*s_}, 0x{NEG:08x}, s{hsML+2*s_}")
e(f"v_mov_b32 v{hMA}, s{hsML}")
for s_ in range(1, 8):
    e(f"v_max_f32 v{hMA}, s{hsML+2*s_}, v{hMA}")
for s_ in range(8):
    e(f"v_sub_f32 v{hQ+s_}, s{hsML+2*s_}, v{hMA}")
for s_ in range(8):
    e(f"v_exp_f32 v{hQ+s_}, v{hQ+s_}")
e(f"v_mul_f32 v{hLA}, s{hsML+1}, v{hQ}")
for s_ in range(1, 8):
    e(f"v_fmac_f32 v{hLA}, s{hsML+2*s_+1}, v{hQ+s_}")
for i in range(4): e(f"v_mul_f32 v{hACC+i}, v{hQ}, v{hD+i}")
for s_ in range(1, 8):
    for i in range(4): e(f"v_fmac_f32 v{hACC+i}, v{hQ+s_}, v{hD+4*s_+i}")
e(f"s_lshl_b32 s{sT0}, s{sB0}, 5")
e(f"s_add_u32 s{sT0}, s{sT0}, s{sHEAD}")
e(f"s_mul_i32 s{sT0}, s{sT0}, 384")
lds_wait("H_wb", L_FB, 0)
prof(5)
e(f"ds_read_b128 v[{hQ}:{hQ+3}], v{hZ} offset:{L_STBML}")
e(f"ds_read_b128 v[{hQ+4}:{hQ+7}], v{hZ} offset:{L_STBML+16}")
for w in range(4):
    e(f"ds_read_b128 v[{hD+4*w}:{hD+4*w+3}], v{hL16} offset:{L_STB + 768*w}")
e("s_waitcnt lgkmcnt(4)")
e(f"v_max3_f32 v{hW}, v{hQ}, v{hQ+2}, v{hMA}")
e(f"v_max3_f32 v{hW}, v{hQ+4}, v{hQ+6}, v{hW}")
e(f"v_sub_f32 v{hMA}, v{hMA}, v{hW}")
for w in range(4):
    e(f"v_sub_f32 v{hQ+2*w}, v{hQ+2*w}, v{hW}")
e(f"v_exp_f32 v{hMA}, v{hMA}")
for w in range(4):
    e(f"v_exp_f32 v{hQ+2*w}, v{hQ+2*w}")
e(f"v_mul_f32 v{hLA}, v{hLA}, v{hMA}")
for w in range(4):
    e(f"v_fmac_f32 v{hLA}, v{hQ+2*w}, v{hQ+2*w+1}")
for i in range(4):
    e(f"v_mul_f32 v{hACC+i}, v{hACC+i}, v{hMA}")
e(f"v_rcp_f32 v{hLA}, v{hLA}")
e("s_waitcnt lgkmcnt(0)")
for w in range(4):
    for i in range(4):
        e(f"v_fmac_f32 v{hACC+i}, v{hQ+2*w}, v{hD+4*w+i}")
for i in range(4):
    e(f"v_mul_f32 v{hACC+i}, v{hACC+i}, v{hLA}")
e(f"v_cvt_pk_bf16_f32 v{hA}, v{hACC}, v{hACC+1}")
e(f"v_cvt_pk_bf16_f32 v{hB}, v{hACC+2}, v{hACC+3}")
e(f"buffer_store_short v{hA}, v{hO0}, s[{SRDO}:{SRDO+3}], s{sT0} offen")
e(f"buffer_store_short_d16_hi v{hA}, v{hO1}, s[{SRDO}:{SRDO+3}], s{sT0} offen")
e(f"buffer_store_short v{hB}, v{hO2}, s[{SRDO}:{SRDO+3}], s{sT0} offen")
e(f"buffer_store_short_d16_hi v{hB}, v{hO3}, s[{SRDO}:{SRDO+3}], s{sT0} offen")
prof(6)
prof(7)
dump_prof()
if cfg.STAMPS and not cfg.MIDST:
    e("s_waitcnt vmcnt(0)")
    e(f"s_memrealtime {pr(sST+2)}")
    dump_stamps()
e("s_endpgm")
lab("K_end")

raw('.section .rodata,"a"')
raw(f""".p2align 6
.amdhsa_kernel {NAME}_kernel
  .amdhsa_next_free_vgpr {NFV}
  .amdhsa_next_free_sgpr 102
  .amdhsa_accum_offset {ACC}
  .amdhsa_group_segment_fixed_size 0
  .amdhsa_kernarg_size 64
  .amdhsa_user_sgpr_count 2
  .amdhsa_user_sgpr_kernarg_segment_ptr 1
  .amdhsa_system_sgpr_workgroup_id_x 1
.end_amdhsa_kernel""")
open(sys.argv[1], 'w').write("\n".join(out) + "\n")
print("LDS", LDS_BYTES, "NV", NV, "NFV", NFV)
```

```python
import sys, struct, math
NAME = "standalone__paged_block_table_kv_radixattention__sampling"
KV_BYTES = 1152*196608
def f2u(x): return struct.unpack('<I', struct.pack('<f', x))[0]
C2 = (192 ** -0.5) * math.log2(math.e)
NEG = f2u(-3e38)

class Cfg:
    KP = 2
    KB = 2
    STAMPS = False
    MIDST = False
    PROF = False
    F = 28
    HSLEEP = 4
    PPRIO = 3
    NOUT = 6
    NK = [7,7,7,6,6,6]
    NVL = [6,6,6,7,7,7,7,8]
    KSPLIT = 2
    NOHELP = 0
    CODEPF = 1
    TOK = 1
    BADD = 0
    LADD = 0
    PSLEEP = 0
    WT = 1
    TLBPF = 0
    NOCOMP = 0
    THR0 = 1
    VROW = 0
    HALVES = 0
    HADD = 4
    ZRE = 0
    RT = 0
    OSC = ''
cfg = Cfg()
for a in sys.argv[2:]:
    k, v = a.split('=')
    assert hasattr(cfg, k), k
    setattr(cfg, k, eval(v))
KP, KB = cfg.KP, cfg.KB
NKL = cfg.NK if cfg.NK else [cfg.NOUT]*6
NVL = cfg.NVL if cfg.NVL else [cfg.NOUT]*8
if isinstance(NKL, int): NKL = [NKL]*6
if isinstance(NVL, int): NVL = [NVL]*8
KW = KP + KB
TOFF = (0, 1, 8, 9) if cfg.TOK == 0 else (0, 4, 8, 12)
O_OFF = 0
RW = 896
TK_OFF = 256*8*RW
WS_USED = TK_OFF + 32*4096
SPIN_MAX = 1 << 17
OOB = 0xF0000000
EMPTY, DONE = -1, -2
RS, WSZ = 784, 8*784
L_CNT = 8192
L_N = 8320
L_FA = 8336
L_FB = 8352
L_OK = 8368
L_Z = 8384
L_SLOT = 9216
L_STB = 12288
L_STBML = L_STB + 4*768
L_STGML = L_STBML + 64
L_STG = L_STGML + 256
LDS_BYTES = L_STG + 4*WSZ

out = []
inbody = [False]
def e(s):
    if inbody[0] and cfg.NOCOMP and s.split()[0].startswith(("v_mfma", "v_perm", "v_add_f32", "v_cndmask", "v_max", "v_fma", "v_exp", "v_cvt", "v_cmp", "v_subrev", "s_cbranch_vccnz", "s_nop")): return
    out.append("    " + s)
def lab(s): out.append(s + ":")
def raw(s): out.append(s)
def pr(a): return f"s[{a}:{a+1}]"

hdr = open('cdna_kernels/%s.s.ref' % NAME).read().split('\n')
for l in hdr:
    if l.startswith('; Override') or l.startswith('; grid=') or l.startswith('; @launch'): continue
    if not l.startswith(';'): break
    raw(l)
raw(f"; @launch grid=(256,1,1) block=(512,1,1) lds={LDS_BYTES}")
raw('.amdgcn_target "amdgcn-amd-amdhsa--gfx950"')
raw('.text')
raw(f".globl {NAME}_kernel\n.p2align 8\n.type {NAME}_kernel,@function")
lab(f"{NAME}_kernel")

sQ, sK, sV, sBT, sCTX, sOUT, sDBG, sWS = 4, 6, 8, 10, 12, 14, 16, 18
SRDK, SRDV, SRDW = 20, 24, 28
sWAVE, sHOFF, sB0, sN, sDS, sCNT, sI, sT0, sT1, sT2, sHEAD, sTK = 86, 87, 88, 89, 90, 91, 92, 93, 94, 95, 96, 97
sST = 98
sP0 = 3
sTKB = 6
sSPIN = 8
sREC, sLF, sCNTA = 32, 33, 34
sHF, sH0, sCUR = 44, 45, 46
PHM = 0x3fff if cfg.HALVES else 0xffff
sJW, sPW = 36, 68
sMK = 48
sA = 50
sJ16 = 58
sTKO = 59
sO = 60
sC2, sSELLO, sSELHI = 64, 65, 66
sBM = 76
sC = 32
sVAL = 40
sNL = 56
sEQ = 72
vLANE, vC, vG = 1, 2, 3
vOK, vOV4, vOV2, vCTXM, vLIST, vM, vMC, vL, vNINF, vLIM, vMX, vA, vB, vPO = 4, 5, 6, 7, 8, 9, 10, 11, 12, 13, 14, 15, 42, 43
vQ = 16
vC1, vC2 = 28, 32
vS = 36
vP = 40
vX = 44
vO = 48
vT = 96
vMA, vLB, vSB = 120, 122, 123
vV = 124
NV = 148 + (1 if cfg.PROF else 0)
vPROF = NV-1
ACC = (NV + 3)//4*4
NFV = ACC + 24

inhelper = [False]
def prof(n):
    if not cfg.PROF: return
    if cfg.RT and n in (1, 2, 3, 4) and not inhelper[0]: return
    e('s_memrealtime s[100:101]' if cfg.RT else 's_memtime s[100:101]')
    e('s_waitcnt lgkmcnt(0)')
    e(f'v_writelane_b32 v{vPROF}, s100, {n}')
ADD = [0]
def thr(n):
    if n: e(f"s_waitcnt vmcnt({n-1})")
def k_loads(lo=0, hi=6, t=0):
    for k in range(lo, hi):
        u, s = k // 3, k % 3
        r = u*12 + s*4
        thr(NKL[k] + ADD[0] if t else 0)
        e(f"buffer_load_dwordx4 a[{r}:{r+3}], v{vOK}, s[{SRDK}:{SRDK+3}], s{sO+2*u} offen offset:{128*s} nt")
def v_load1(k, t=0):
    i = k // 2
    thr(NVL[k] + ADD[0] if t else 0)
    if k % 2 == 0:
        r = vV + i*4
        e(f"buffer_load_dwordx4 v[{r}:{r+3}], v{vOV4}, s[{SRDV}:{SRDV+3}], s{sO+i} offen nt")
    else:
        r = vV + 16 + i*2
        e(f"buffer_load_dwordx2 v[{r}:{r+1}], v{vOV2}, s[{SRDV}:{SRDV+3}], s{sO+i} offen offset:256 nt")
def soffs():
    for i in range(1, 4):
        e(f"s_add_u32 s{sO+i}, s{sO}, {TOFF[i]*12288}")
def xreduce(op, reg, dst=None):
    for sw in ("v_permlane32_swap_b32", "v_permlane16_swap_b32"):
        e(f"v_mov_b32 v{vA}, v{reg}")
        e(f"v_mov_b32 v{vB}, v{reg}")
        e("s_nop 1")
        e(f"{sw} v{vA}, v{vB}")
        e("s_nop 1")
        if dst is not None: reg = dst
        e(f"{op} v{reg}, v{vA}, v{vB}")
def nblocks(r):
    e(f"s_cmp_lt_i32 s{r}, 1")
    e(f"s_cselect_b32 s{r}, 0x1000, s{r}")
    e(f"s_min_i32 s{r}, s{r}, 0x1000")
    e(f"s_add_u32 s{r}, s{r}, 15")
    e(f"s_lshr_b32 s{r}, s{r}, 4")
chk_n = [0]
def started_check():
    n = chk_n[0]; chk_n[0] += 1
    e(f"v_mov_b32 v{vB}, 0")
    lab(f"A_chk{n}")
    e(f"ds_read_b32 v{vLIM}, v{vB} offset:{L_OK}")
    e("s_waitcnt lgkmcnt(0)")
    e(f"v_cmp_eq_u32 vcc, 0, v{vLIM}")
    e(f"s_cbranch_vccnz A_chk{n}")
def dump_prof():
    if cfg.PROF:
        e("s_mov_b64 exec, -1")
        e(f"v_writelane_b32 v{vPROF}, s{sCNT}, 63")
        e(f"s_mul_i32 s{sT0}, s2, 5")
        e(f"s_add_u32 s{sT0}, s{sT0}, s{sWAVE}")
        e(f"s_lshl_b32 s{sT0}, s{sT0}, 8")
        e(f"s_add_u32 s{sT0}, s{sT0}, 0x2000000")
        e(f"v_lshl_add_u32 v{vX}, v{vLANE}, 2, s{sT0}")
        e(f"global_store_dword v{vX}, v{vPROF}, {pr(sWS)}")
def dump_stamps():
    e("s_mov_b64 exec, -1")
    e("s_waitcnt lgkmcnt(0)")
    e(f"s_add_u32 s{sWS}, s{sWS}, 0x20000000")
    e(f"s_addc_u32 s{sWS+1}, s{sWS+1}, 0")
    e(f"s_lshl_b32 s{sT0}, s2, 4")
    e(f"v_mov_b32 v{vX}, s{sT0}")
    for i in range(4): e(f"v_mov_b32 v{vS+i}, s{sST+i}")
    e("s_mov_b64 exec, 1")
    e(f"global_store_dwordx4 v{vX}, v[{vS}:{vS+3}], {pr(sWS)}")

e("s_cmp_ge_u32 s2, 256")
e("s_cbranch_scc1 A_end")
if cfg.STAMPS: e(f"s_memrealtime {pr(sST)}")
prof(0)
e(f"v_lshrrev_b32 v{vA}, 6, v0")
e(f"v_and_b32 v{vLANE}, 63, v0")
e(f"v_readfirstlane_b32 s{sWAVE}, v{vA}")
e(f"s_lshr_b32 s{sHEAD}, s2, 3")
e(f"s_and_b32 s{sB0}, s2, 7")
e(f"s_cmp_ge_u32 s{sWAVE}, 4")
e("s_cbranch_scc1 P_start")
e("s_load_dwordx16 s[4:19], s[0:1], 0")
e(f"v_and_b32 v{vC}, 15, v0")
e(f"v_lshrrev_b32 v{vG}, 4, v{vLANE}")
e(f"s_lshl_b32 s{sTKO}, s{sHEAD}, 12")
e(f"s_add_u32 s{sTKO}, s{sTKO}, {TK_OFF}")
e(f"s_mul_i32 s{sHOFF}, s{sHEAD}, 384")
e(f"s_lshl_b32 s{sT2}, s{sB0}, 2")
e(f"s_lshl_b32 s{sT0}, s{sB0}, 10")
if cfg.TOK == 0:
    e(f"v_lshrrev_b32 v{vOK}, 1, v{vC}")
else:
    e(f"v_and_b32 v{vOK}, 2, v{vC}")
    e(f"v_lshrrev_b32 v{vA}, 2, v{vC}")
    e(f"v_lshl_add_u32 v{vOK}, v{vOK}, 1, v{vA}")
e(f"v_mul_u32_u24 v{vOK}, 12288, v{vOK}")
e(f"v_lshl_add_u32 v{vOK}, v{vG}, 5, v{vOK}")
e(f"v_and_b32 v{vA}, 1, v{vC}")
e(f"v_lshl_add_u32 v{vOK}, v{vA}, 4, v{vOK}")
e(f"v_mul_u32_u24 v{vA}, {24576 if cfg.TOK == 0 else 12288}, v{vG}")
e(f"v_lshl_add_u32 v{vOV4}, v{vC}, 4, v{vA}")
e(f"v_lshl_add_u32 v{vOV2}, v{vC}, 3, v{vA}")
e(f"v_and_b32 v{vX}, 7, v{vC}")
e(f"v_mul_u32_u24 v{vX+1}, 12288, v{vX}")
e(f"v_lshl_add_u32 v{vX+1}, v{vG}, 5, v{vX+1}")
e(f"v_lshrrev_b32 v{vX+3}, 3, v{vC}")
e(f"v_lshl_add_u32 v{vX+1}, v{vX+3}, 4, v{vX+1}")
e(f"v_add_u32 v{vX+1}, s{sHOFF}, v{vX+1}")
e(f"s_mul_i32 s{sT1}, s{sWAVE}, {WSZ}")
e(f"v_mul_u32_u24 v{vPO}, {RS}, v{vX}")
e(f"v_lshl_add_u32 v{vPO}, v{vX+3}, 6, v{vPO}")
e(f"v_lshl_add_u32 v{vPO}, v{vG}, 4, v{vPO}")
e(f"v_add_u32 v{vPO}, s{sT1}, v{vPO}")
e(f"v_lshlrev_b32 v{vX}, 2, v{vX}")
e(f"v_lshl_add_u32 v{vT+4}, v{vLANE}, 4, s{sT0}")
for srd in (SRDK, SRDV):
    e(f"s_mov_b32 s{srd+2}, {KV_BYTES}")
    e(f"s_mov_b32 s{srd+3}, 0x20000")
e("s_barrier")
e("s_waitcnt lgkmcnt(0)")
prof(1)
e(f"s_load_dword s{sT1}, {pr(sCTX)}, s{sT2}")
if cfg.VROW:
    e(f"global_load_dwordx4 v[{vT}:{vT+3}], v{vT+4}, {pr(sBT)}")
e(f"global_load_dword v{vCTXM}, v{vX}, {pr(sCTX)}")
for s in range(3):
    e(f"global_load_dwordx4 v[{vQ+4*s}:{vQ+4*s+3}], v{vX+1}, {pr(sQ)} offset:{128*s}")
for srd, base in ((SRDK, sK), (SRDV, sV)):
    e(f"s_mov_b32 s{srd}, s{base}")
    e(f"s_and_b32 s{srd+1}, s{base+1}, 0xffff")
e(f"s_add_u32 s{sTKB}, s{sWS}, s{sTKO}")
e(f"s_addc_u32 s{sTKB+1}, s{sWS+1}, 0")
e(f"s_mov_b32 s{sC2}, 0x{f2u(C2):08x}")
e(f"s_mov_b32 s{sSELLO}, 0x05040100")
e(f"s_mov_b32 s{sSELHI}, 0x07060302")
e(f"v_mov_b32 v{vM}, 0x{NEG:08x}")
e(f"v_mul_f32 v{vMC}, s{sC2}, v{vM}")
e(f"v_mov_b32 v{vL}, 0")
e(f"v_mov_b32 v{vNINF}, 0xff800000")
e(f"v_mov_b32 v{vLIST}, 0")
e(f"v_mov_b32 v{vLB}, 0")
for i in range(24):
    e(f"v_mov_b32 v{vO+i}, 0")
e("s_waitcnt lgkmcnt(0)")
prof(2)
nblocks(sT1)
e(f"s_sub_u32 s{sT1}, s{sT1}, s{sWAVE}")
kk_of = [KB + k for k in range(KP)] + list(range(KB))
if cfg.VROW:
    for k in range(KW):
        e(f"s_sub_u32 s{sJW+k}, s{sT1}, {1+4*kk_of[k]}")
    e(f"s_and_b32 s{sT2}, s{sJW}, 3")
    for c in range(1, 4):
        e(f"s_cmp_eq_u32 s{sT2}, {c}")
        e(f"s_cselect_b64 {pr(sA+2*c)}, -1, 0")
    e(f"s_lshr_b32 s{sT2}, s{sJW}, 2")
    e("s_waitcnt vmcnt(4)")
    for c in range(1, 4):
        e(f"v_cndmask_b32_e64 v{vT}, v{vT}, v{vT+c}, {pr(sA+2*c)}")
    e("s_nop 0")
    e(f"v_readlane_b32 s{sPW}, v{vT}, s{sT2}")
    e("s_nop 0")
else:
    for k in range(KW):
        e(f"s_sub_u32 s{sJW+k}, s{sT1}, {1+4*kk_of[k]}")
        e(f"s_max_i32 s{sT2}, s{sJW+k}, 0")
        e(f"s_lshl_b32 s{sT2}, s{sT2}, 2")
        e(f"s_add_u32 s{sT2}, s{sT2}, s{sT0}")
        e(f"s_load_dword s{sPW+k}, {pr(sBT)}, s{sT2}")
    e("s_waitcnt lgkmcnt(0)")
prof(3)
e(f"s_and_b32 s{sT1}, s{sPW}, 0xffff")
e(f"s_mul_i32 s{sT1}, s{sT1}, 196608")
e(f"s_add_u32 s{sT1}, s{sT1}, s{sHOFF}")
e(f"s_cmp_ge_i32 s{sJW}, 0")
e(f"s_cselect_b32 s{sO}, s{sT1}, 0x{OOB:x}")
soffs()
k_loads()
if not cfg.THR0:
    for k in range(8): v_load1(k)
prof(4)
if cfg.VROW:
    for k in range(1, KW):
        e(f"s_lshr_b32 s{sT2}, s{sJW+k}, 2")
        e(f"v_readlane_b32 s{sPW+k}, v{vT}, s{sT2}")
e(f"s_lshl_b32 s{sT0}, 0x1000000, s{sB0}")
for k in range(KW):
    dst = sREC if k == 0 else sPW+k
    e(f"s_and_b32 s{sT1}, s{sPW+k}, 0x{PHM:x}")
    e(f"s_lshl_b32 s{sT2}, s{sJW+k}, 16")
    e(f"s_or_b32 s{sT1}, s{sT1}, s{sT2}")
    e(f"s_or_b32 s{sT1}, s{sT1}, s{sT0}")
    e(f"s_cmp_ge_i32 s{sJW+k}, 0")
    e(f"s_cselect_b32 s{dst}, s{sT1}, 0")
    if 0 < k < KP: e(f"v_writelane_b32 v{vLIST}, s{dst}, {k}")
    if k >= KP: e(f"v_writelane_b32 v{vLB}, s{dst}, {k-KP}")
for i in range(24, 48):
    e(f"v_mov_b32 v{vO+i}, 0")
e(f"s_lshl_b32 s{sBM}, 0x10001, s{sB0}")
e(f"s_mov_b32 s{sBM+1}, s{sBM}")
e(f"s_mul_i32 s{sT1}, s{sWAVE}, 768")
e(f"v_lshl_add_u32 v{vSB}, v{vG}, 4, s{sT1}")
e(f"s_waitcnt vmcnt({6 if cfg.THR0 else 14})")
e(f"v_cmp_gt_i32 vcc, 1, v{vCTXM}")
e(f"v_mov_b32 v{vA}, 0x1000")
e(f"v_lshlrev_b32 v{vB}, {1 if cfg.TOK == 0 else 0}, v{vG}")
e(f"v_cndmask_b32 v{vCTXM}, v{vCTXM}, v{vA}, vcc")
for i in range(12):
    e(f"v_cndmask_b32_e64 v{vQ+i}, v{vQ+i}, 0, vcc")
e(f"v_sub_u32 v{vCTXM}, v{vCTXM}, v{vB}")
e(f"s_mov_b32 s{sI}, 0")
e(f"s_mov_b32 s{sLF}, 0")
e(f"s_mov_b32 s{sCNT}, 0x7fffffff")
e(f"s_mov_b32 s{sCNTA}, 0x7fffffff")
e(f"s_mov_b32 s{sDS}, {KP+1}")
if cfg.THR0:
    ADD[0] = cfg.THR0 - 1
    for k in range(8): v_load1(k, 1)
    ADD[0] = 0

def perm(t):
    if t < 8:
        q_, hsel = t >> 1, t & 1
        regs = [vV + i*4 + q_ for i in range(4)]
    else:
        q_, hsel = (t-8) >> 1, t & 1
        regs = [vV + 16 + i*2 + q_ for i in range(4)]
    sel = sSELHI if hsel else sSELLO
    e(f"v_perm_b32 v{vT+2*t}, v{regs[1]}, v{regs[0]}, s{sel}")
    e(f"v_perm_b32 v{vT+2*t+1}, v{regs[3]}, v{regs[2]}, s{sel}")
def pv(t):
    e(f"v_mfma_f32_16x16x16_bf16 v[{vO+4*t}:{vO+4*t+3}], v[{vT+2*t}:{vT+2*t+1}], v[{vP}:{vP+1}], v[{vO+4*t}:{vO+4*t+3}]")
def body(tag, last, phb=False, half=False):
    N = cfg.NOUT
    hv = cfg.HALVES and not phb and not last
    if not half:
        e(f"s_bfe_u32 s{sJ16}, s{sREC}, 0x80010")
        e(f"s_lshl_b32 s{sJ16}, s{sJ16}, 4")
        e(f"s_lshr_b32 s{sMK}, s{sREC}, 24")
        e(f"s_mul_i32 s{sMK}, s{sMK}, 0x10001")
        e(f"s_mov_b32 s{sMK+1}, s{sMK}")
        if hv:
            e(f"s_and_b32 s{sCUR}, s{sREC}, 0xc000")
            e(f"s_bfe_u32 s{sT1}, s{sREC}, 0x1000e")
            e(f"s_lshl_b32 s{sT1}, s{sT1}, 3")
            e(f"s_sub_u32 s{sJ16}, s{sJ16}, s{sT1}")
    if phb:
        e(f"s_sub_u32 s{sT1}, s{sI}, s{sCNTA}")
        e(f"s_add_u32 s{sT1}, s{sT1}, 1")
        e(f"v_readlane_b32 s{sREC}, v{vLB}, s{sT1}")
        e("s_nop 1")
    elif half:
        lab("A_recH")
    elif not last:
        e(f"s_add_u32 s{sT0}, s{sI}, 1")
        e(f"v_readlane_b32 s{sREC}, v{vLIST}, s{sT0}")
        e(f"s_add_u32 s{sT1}, s{sT0}, 1")
        e(f"s_cmp_ge_u32 s{sT1}, s{sDS}")
        e(f"s_cbranch_scc1 A_dyn")
        lab("A_rec")
    if not last:
        e(f"s_and_b32 s{sT1}, s{sREC}, 0x{PHM:x}")
        e(f"s_mul_i32 s{sT1}, s{sT1}, 196608")
        e(f"s_add_u32 s{sT1}, s{sT1}, s{sHOFF}")
        if half:
            e(f"s_bitcmp1_b32 s{sREC}, 15")
            e(f"s_cselect_b32 s{sT2}, {8*12288}, 0")
            e(f"s_add_u32 s{sO+2}, s{sT1}, s{sT2}")
            e(f"s_add_u32 s{sO+3}, s{sO+2}, {(TOFF[3]-TOFF[2])*12288}")
            e(f"s_mov_b32 s{sO}, 0x{OOB:x}")
            e(f"s_mov_b32 s{sO+1}, 0x{OOB:x}")
        else:
            e(f"s_cmp_lg_u32 s{sREC}, 0")
            e(f"s_cselect_b32 s{sO}, s{sT1}, 0x{OOB:x}")
            soffs()
    e(f"v_subrev_u32 v{vLIM}, s{sJ16}, v{vCTXM}")
    e(f"v_cndmask_b32_e64 v{vLIM}, 0, v{vLIM}, {pr(sMK)}")
    for i, o in enumerate(TOFF):
        e(f"v_cmp_lt_i32_e64 {pr(sA+2*i)}, {o}, v{vLIM}")
    if hv:
        e(f"s_cmp_lg_u32 s{sCUR}, 0")
        e(f"s_cselect_b64 {pr(sA)}, 0, {pr(sA)}")
        e(f"s_cselect_b64 {pr(sA+2)}, 0, {pr(sA+2)}")
    e(f"s_waitcnt vmcnt(8)")
    for s in range(3):
        for u, c in ((0, vC1), (1, vC2)):
            r = u*12 + s*4
            src = "0" if s == 0 else f"v[{c}:{c+3}]"
            e(f"v_mfma_f32_16x16x32_bf16 v[{c}:{c+3}], a[{r}:{r+3}], v[{vQ+4*s}:{vQ+4*s+3}], {src}")
    if not last: k_loads(0, cfg.KSPLIT, N)
    e(f"s_nop {8-(0 if last else cfg.KSPLIT)}")
    for i, (c, r) in enumerate(((vC1, 0), (vC1, 2), (vC2, 0), (vC2, 2))):
        e(f"v_add_f32_dpp v{vS+i}, v{c+r+1}, v{c+r} row_ror:8 row_mask:0xf bank_mask:0xf")
    for i in range(4):
        e(f"v_cndmask_b32_e64 v{vS+i}, v{vNINF}, v{vS+i}, {pr(sA+2*i)}")
    e(f"v_max3_f32 v{vMX}, v{vS}, v{vS+1}, v{vS+2}")
    e(f"v_max_f32 v{vMX}, v{vMX}, v{vS+3}")
    e(f"v_cmp_gt_f32 vcc, v{vMX}, v{vM}")
    e(f"s_cbranch_vccnz A_slow{tag}")
    lab(f"A_back{tag}")
    for i in range(4):
        e(f"v_fma_f32 v{vX+i}, v{vS+i}, s{sC2}, -v{vMC}")
    for i in range(4):
        e(f"v_exp_f32 v{vX+i}, v{vX+i}")
    if not last: k_loads(cfg.KSPLIT, 6, N)
    else: e("s_nop 0")
    e(f"v_cvt_pk_bf16_f32 v{vP}, v{vX}, v{vX+1}")
    e(f"v_cvt_pk_bf16_f32 v{vP+1}, v{vX+2}, v{vX+3}")
    e(f"v_add_f32 v{vX}, v{vX}, v{vX+1}")
    e(f"v_add_f32 v{vX+2}, v{vX+2}, v{vX+3}")
    e(f"v_add_f32 v{vL}, v{vL}, v{vX}")
    e(f"v_add_f32 v{vL}, v{vL}, v{vX+2}")
    if last:
        xreduce("v_add_f32", vL)
        e(f"s_lshl_b32 s{sT0}, s{sWAVE}, 3")
        e(f"v_mov_b32 v{vX+1}, s{sT0}")
        e(f"s_lshl_b32 s{sT0}, s{sWAVE}, 2")
        e(f"v_mov_b32 v{vX+2}, s{sT0}")
        e(f"v_mov_b32 v{vX+3}, 1")
        e(f"s_mov_b64 exec, {pr(sBM)}")
        e(f"ds_write_b64 v{vX+1}, v[{vMC}:{vMC+1}] offset:{L_STBML}")
        e("s_mov_b64 exec, -1")
        e(f"s_waitcnt vmcnt(0)")
        perm(0); perm(1)
        for t in range(12):
            if t+2 < 12: perm(t+2)
            pv(t)
    else:
        e(f"s_waitcnt vmcnt(6)")
        for t in range(12): perm(t)
        v_load1(0, N); v_load1(1, N)
        for t in range(12): pv(t)
        e(f"s_add_u32 s{sI}, s{sI}, 1")
        if not phb and not half and cfg.ZRE:
            e(f"s_cmp_ge_u32 s{sI}, s{sCNTA}")
            e("s_cbranch_scc1 A_late")
            lab("A_more")
        elif not phb and not half:
            e(f"s_cmp_eq_u32 s{sI}, s{sCNTA}")
            e("s_cbranch_scc1 A_last")
        for k in range(2, 8): v_load1(k, N)
        if cfg.ZRE and not half:
            lab("A_cont")
            e("s_branch A_loop")
        elif half or (cfg.BADD and not phb):
            e("s_branch A_loop")
        else:
            lab("A_cont")
            e(f"s_cmp_lt_u32 s{sI}, s{sCNT}")
            e(f"s_cbranch_scc1 {'B_loop' if phb else 'A_loop'}")

lab("A_loop")
inbody[0] = True
body("A", False)
inbody[0] = False
tags = ["A", "Z"]
if cfg.BADD:
    lab("B_loop")
    ADD[0] = cfg.BADD
    body("B", False, True)
    ADD[0] = 0
    tags.append("B")
if cfg.ZRE:
    tags.remove("Z")
    lab("A_late")
    e(f"s_cmp_eq_u32 s{sI}, s{sCNTA}")
    e("s_cbranch_scc1 A_last")
    e(f"s_cmp_le_u32 s{sI}, s{sCNT}")
    e("s_cbranch_scc1 A_more")
else:
    body("Z", True)
if cfg.MIDST: e(f"s_memrealtime {pr(sST+2)}")
prof(6)
e(f"s_mov_b64 exec, {pr(sBM)}")
for t in range(12):
    if t == 4: e("s_nop 3")
    e(f"ds_write_b128 v{vSB}, v[{vO+4*t}:{vO+4*t+3}] offset:{L_STB + 64*t}")
if cfg.ZRE:
    e("s_mov_b64 exec, -1")
    xreduce("v_add_f32", vL)
    e(f"s_lshl_b32 s{sT0}, s{sWAVE}, 3")
    e(f"v_mov_b32 v{vX+1}, s{sT0}")
    e(f"s_lshl_b32 s{sT0}, s{sWAVE}, 2")
    e(f"v_mov_b32 v{vX+2}, s{sT0}")
    e(f"v_mov_b32 v{vX+3}, 1")
    e(f"s_mov_b64 exec, {pr(sBM)}")
    e(f"ds_write_b64 v{vX+1}, v[{vMC}:{vMC+1}] offset:{L_STBML}")
e("s_waitcnt lgkmcnt(0)")
e(f"ds_write_b32 v{vX+2}, v{vX+3} offset:{L_FB}")
prof(7)
dump_prof()
if cfg.STAMPS and cfg.MIDST:
    e(f"s_cmp_lg_u32 s{sWAVE}, 0")
    e("s_cbranch_scc1 A_end")
    dump_stamps()
lab("A_end")
e("s_endpgm")

if cfg.HALVES:
    ADD[0] = cfg.HADD
    body("H", False, half=True)
    ADD[0] = 0
    tags.append("H")
lab("A_last")
prof(5)
ADD[0] = cfg.LADD
v_load1(2, cfg.NOUT)
xreduce("v_add_f32", vL, dst=vMA+1)
e(f"v_mov_b32 v{vMA}, v{vMC}")
e(f"s_lshl_b32 s{sT0}, s{sWAVE}, 6")
e(f"v_lshl_add_u32 v{vX}, v{vLANE}, 3, s{sT0}")
e("s_mov_b64 exec, 0xff")
e(f"ds_write_b64 v{vX}, v[{vMA}:{vMA+1}] offset:{L_STGML}")
e("s_mov_b64 exec, -1")
for i in range(6):
    for r in range(4):
        e(f"v_mov_b32_dpp v{vO+8*i+r}, v{vO+8*i+4+r} row_ror:8 row_mask:0xf bank_mask:0xc")
    e(f"ds_write_b128 v{vPO}, v[{vO+8*i}:{vO+8*i+3}] offset:{L_STG + 128*i}")
e(f"s_lshl_b32 s{sT0}, s{sWAVE}, 2")
e(f"v_mov_b32 v{vX}, s{sT0}")
e(f"v_mov_b32 v{vX+1}, 1")
e("s_waitcnt lgkmcnt(0)")
e(f"ds_write_b32 v{vX}, v{vX+1} offset:{L_FA}")
for k in range(3, 8): v_load1(k, cfg.NOUT)
ADD[0] = 0
e("s_branch A_cont")

for tag in tags:
    lab(f"A_slow{tag}")
    xreduce("v_max_f32", vMX)
    e(f"v_max_f32 v{vM}, v{vM}, v{vMX}")
    e(f"v_mul_f32 v{vA}, s{sC2}, v{vM}")
    e(f"v_sub_f32 v{vB}, v{vMC}, v{vA}")
    e(f"v_exp_f32 v{vB}, v{vB}")
    e(f"v_mov_b32 v{vMC}, v{vA}")
    e(f"v_mul_f32 v{vL}, v{vL}, v{vB}")
    for i in range(24):
        e(f"v_pk_mul_f32 v[{vO+2*i}:{vO+2*i+1}], v[{vO+2*i}:{vO+2*i+1}], v[{vB}:{vB+1}] op_sel_hi:[1,0]")
    e(f"s_branch A_back{tag}")

lab("A_dyn")
e(f"s_cmp_ge_u32 s{sT0}, s{sCNTA}")
e("s_cbranch_scc1 A_phb")
e(f"s_cmp_lg_u32 s{sLF}, 0")
e("s_cbranch_scc1 A_dyn2")
e(f"s_mov_b32 s{sLF}, 1")
e(f"v_mov_b32 v{vA}, 0")
e("s_barrier")
e(f"ds_read_b32 v{vA}, v{vA} offset:{L_N}")
e(f"s_lshl_b32 s{sT1}, s{sB0}, 2")
e(f"s_add_u32 s{sT1}, s{sT1}, s{sWAVE}")
e(f"s_sub_u32 s{sT1}, s{sT1}, {32*KP}")
e(f"v_lshlrev_b32 v{vB}, 5, v{vLANE}")
e(f"v_add_lshl_u32 v{vB}, v{vB}, s{sT1}, 2")
e(f"v_min_u32 v{vB}, 8188, v{vB}")
e(f"ds_read_b32 v{vLIST}, v{vB}")
e("s_waitcnt lgkmcnt(0)")
e(f"v_readfirstlane_b32 s{sN}, v{vA}")
e(f"v_readlane_b32 s{sREC}, v{vLIST}, s{sT0}")
e("s_nop 0")
e(f"s_mul_i32 s{sT1}, s{sN}, {cfg.F}")
e(f"s_lshr_b32 s{sT1}, s{sT1}, 10")
e(f"s_lshl_b32 s{sP0}, s{sT1}, 5")
e(f"s_add_u32 s{sDS}, s{sT1}, {KP}")
if cfg.HALVES:
    e(f"s_sub_i32 s{sH0}, s{sN}, {cfg.HALVES}")
    e(f"s_max_i32 s{sH0}, s{sH0}, s{sP0}")
e(f"s_add_u32 s{sT1}, s{sT0}, 1")
e(f"s_cmp_lt_u32 s{sT1}, s{sDS}")
e("s_cbranch_scc1 A_rec")
if cfg.WT:
    e(f"s_cmp_lg_u32 s{sT0}, s{sDS}")
    e("s_cbranch_scc1 A_dyn2")
    started_check()
    e(f"s_mov_b32 s{sTK}, 1")
    e(f"s_atomic_add s{sTK}, {pr(sTKB)}, 0 glc")
    lab("A_dyn2")
    e(f"s_cmp_lt_u32 s{sT0}, s{sDS}")
    e(f"s_cbranch_scc1 A_first")
    e("s_waitcnt lgkmcnt(0)")
    e(f"s_add_u32 s{sT2}, s{sTK}, s{sP0}")
    if cfg.HALVES:
        e(f"s_mov_b32 s{sHF}, 0")
        e(f"s_cmp_lt_u32 s{sT2}, s{sH0}")
        e("s_cbranch_scc1 A_full")
        e(f"s_sub_u32 s{sT1}, s{sT2}, s{sH0}")
        e(f"s_and_b32 s{sHF}, s{sT1}, 1")
        e(f"s_add_u32 s{sHF}, s{sHF}, 1")
        e(f"s_lshl_b32 s{sHF}, s{sHF}, 14")
        e(f"s_lshr_b32 s{sT1}, s{sT1}, 1")
        e(f"s_add_u32 s{sT2}, s{sT1}, s{sH0}")
        lab("A_full")
    e(f"s_cmp_ge_u32 s{sT2}, s{sN}")
    e(f"s_cbranch_scc1 A_fini")
    e(f"s_lshl_b32 s{sT2}, s{sT2}, 2")
    e(f"v_mov_b32 v{vB}, s{sT2}")
    e(f"ds_read_b32 v{vB}, v{vB}")
    e("s_waitcnt lgkmcnt(0)")
    e(f"v_readfirstlane_b32 s{sREC}, v{vB}")
    if cfg.HALVES:
        e(f"s_mov_b32 s{sTK}, 1")
        e(f"s_atomic_add s{sTK}, {pr(sTKB)}, 0 glc")
        e(f"s_or_b32 s{sREC}, s{sREC}, s{sHF}")
        e(f"s_cmp_lg_u32 s{sHF}, 0")
        e("s_cbranch_scc1 A_recH")
        e("s_branch A_rec")
    lab(f"A_iss")
    e(f"s_mov_b32 s{sTK}, 1")
    e(f"s_atomic_add s{sTK}, {pr(sTKB)}, 0 glc")
    e(f"s_branch A_rec")
    lab(f"A_first")
    started_check()
    e(f"s_branch A_iss")
else:
    e(f"s_cmp_lg_u32 s{sT0}, s{sDS}")
    e("s_cbranch_scc1 A_dyn2")
    e(f"s_cmp_lg_u32 s{sWAVE}, 0")
    e("s_cbranch_scc1 A_dyn2")
    started_check()
    e(f"s_mov_b32 s{sTK}, 1")
    e(f"s_atomic_add s{sTK}, {pr(sTKB)}, 0 glc")
    lab("A_dyn2")
    e(f"s_sub_u32 s{sT1}, s{sT0}, s{sDS}")
    e(f"s_lshl_b32 s{sT2}, s{sT1}, 2")
    e(f"v_mov_b32 v{vA}, s{sT2}")
    e(f"s_cmp_lg_u32 s{sWAVE}, 0")
    e(f"s_cbranch_scc1 A_oth")
    e(f"s_cmp_lt_i32 s{sT1}, 0")
    e(f"s_cbranch_scc1 A_first")
    e("s_waitcnt lgkmcnt(0)")
    e(f"s_lshl_b32 s{sT2}, s{sTK}, 2")
    e(f"s_add_u32 s{sT2}, s{sT2}, s{sP0}")
    e(f"s_cmp_lt_u32 s{sT2}, s{sN}")
    e(f"s_cselect_b32 s{sT2}, s{sT2}, {DONE}")
    e(f"v_mov_b32 v{vB}, s{sT2}")
    e(f"ds_write_b32 v{vA}, v{vB} offset:{L_SLOT}")
    e(f"s_cbranch_scc0 A_fini")
    e(f"s_lshl_b32 s{sT2}, s{sT2}, 2")
    e(f"v_mov_b32 v{vB}, s{sT2}")
    e(f"ds_read_b32 v{vB}, v{vB}")
    e("s_waitcnt lgkmcnt(0)")
    e(f"v_readfirstlane_b32 s{sREC}, v{vB}")
    lab(f"A_iss")
    e(f"s_mov_b32 s{sTK}, 1")
    e(f"s_atomic_add s{sTK}, {pr(sTKB)}, 0 glc")
    e(f"s_branch A_rec")
    lab(f"A_first")
    started_check()
    e(f"s_branch A_iss")
    lab(f"A_oth")
    e(f"s_cmp_lt_i32 s{sT1}, 0")
    e(f"s_cbranch_scc1 A_rec")
    lab(f"A_poll")
    e(f"ds_read_b32 v{vB}, v{vA} offset:{L_SLOT}")
    e("s_waitcnt lgkmcnt(0)")
    e(f"v_readfirstlane_b32 s{sT2}, v{vB}")
    e("s_nop 1")
    e(f"s_cmp_eq_u32 s{sT2}, {EMPTY}")
    e(f"s_cbranch_scc1 A_poll")
    e(f"s_cmp_eq_u32 s{sT2}, {DONE}")
    e(f"s_cbranch_scc1 A_fini")
    e(f"s_add_u32 s{sT2}, s{sT2}, s{sWAVE}")
    e(f"s_lshl_b32 s{sT1}, s{sT2}, 2")
    e(f"s_cmp_lt_u32 s{sT2}, s{sN}")
    e(f"s_cselect_b32 s{sT1}, s{sT1}, {L_Z}")
    e(f"v_mov_b32 v{vB}, s{sT1}")
    e(f"ds_read_b32 v{vB}, v{vB}")
    e("s_waitcnt lgkmcnt(0)")
    e(f"v_readfirstlane_b32 s{sREC}, v{vB}")
    e("s_nop 1")
    e(f"s_branch A_rec")
lab(f"A_fini")
e(f"s_mov_b32 s{sCNTA}, s{sT0}")
e(f"s_add_u32 s{sCNT}, s{sT0}, {KB-1}")
lab("A_phb")
e(f"s_sub_u32 s{sT1}, s{sT0}, s{sCNTA}")
e(f"v_readlane_b32 s{sREC}, v{vLB}, s{sT1}")
e("s_nop 1")
e(f"s_branch A_rec")

pT, pM = 48, 56
pJ, pJX, pA, pB, pCNT, pJ4 = 64, 65, 66, 67, 68, 69
SRDO = 20
hA, hB, hP = 12, 13, 8
inhelper[0] = True
lab("P_start")
if cfg.PPRIO: e(f"s_setprio {cfg.PPRIO}")
if cfg.CODEPF:
    e("s_getpc_b64 s[40:41]")
    lab("P_pc")
    e(f"s_sub_u32 s40, s40, P_pc-{NAME}_kernel")
    e("s_subb_u32 s41, s41, 0")
    e(f"v_subrev_u32 v70, 256, v0")
    e(f"v_lshlrev_b32 v70, 6, v70")
    e(f"v_min_u32 v70, K_end-{NAME}_kernel-4, v70")
    e("global_load_dword v71, v70, s[40:41]")
e(f"v_subrev_u32 v{pJ}, 256, v0")
e(f"v_lshlrev_b32 v{pJ4}, 2, v{pJ}")
e(f"v_mov_b32 v{pA}, {EMPTY}")
e(f"v_mov_b32 v{pCNT}, 0")
for i in range(0 if cfg.WT else 3):
    e(f"ds_write_b32 v{pJ4}, v{pA} offset:{L_SLOT + 1024*i}")
e(f"ds_write_b32 v{pJ4}, v{pCNT} offset:{L_CNT}")
e("s_waitcnt lgkmcnt(0)")
e("s_load_dwordx16 s[4:19], s[0:1], 0")
e("s_barrier")
e(f"v_add_u32 v{pB}, 4096, v{pJ4}")
e(f"v_lshlrev_b32 v{pJX}, 16, v{pJ}")
e(f"s_sub_u32 s{sI}, s{sWAVE}, 4")
hFL, hBIG = 6, 84
hsO, hsT = 84, 85
e(f"v_lshlrev_b32 v{hFL}, 4, v{vLANE}")
e(f"v_mov_b32 v{hBIG}, 0x40000000")
e(f"v_cmp_gt_u32 vcc, 49, v{vLANE}")
e(f"s_lshl_b32 s{sT0}, s{sHEAD}, 3")
e(f"s_lshl_b32 s{sT1}, s{sI}, 1")
e(f"v_cndmask_b32 v{hFL}, v{hBIG}, v{hFL}, vcc")
e(f"s_add_u32 s{sT0}, s{sT0}, s{sT1}")
e(f"s_lshl_b32 s{sT0}, s{sT0}, 3")
e(f"s_add_u32 s{sT0}, s{sT0}, s{sB0}")
e(f"s_mul_i32 s{sDS}, s{sT0}, {RW}")
e(f"s_add_u32 s{sCNT}, s{sDS}, {8*RW}")
e(f"s_cmp_eq_u32 s{sT1}, s{sB0}")
e(f"s_cselect_b32 s{sDS}, 0x{OOB:x}, s{sDS}")
e(f"s_add_u32 s{sT1}, s{sT1}, 1")
e(f"s_cmp_eq_u32 s{sT1}, s{sB0}")
e(f"s_cselect_b32 s{sCNT}, 0x{OOB:x}, s{sCNT}")
for i in range(4): e(f"v_mov_b32 v{hP+i}, -1")
e(f"s_lshl_b32 s{sTK}, s{sHEAD}, 12")
e(f"s_add_u32 s{sTK}, s{sTK}, {TK_OFF}")
e(f"s_or_b32 s{sT0}, s{sB0}, s{sI}")
e(f"s_cmp_eq_u32 s{sT0}, 0")
e(f"s_cselect_b32 s{sTK}, s{sTK}, 0x{OOB:x}")
e(f"v_mov_b32 v{hA}, 0")
e(f"s_mov_b32 s{SRDW+2}, {WS_USED}")
e(f"s_mov_b32 s{SRDW+3}, 0x20000")
e(f"s_lshl_b32 s{sT2}, s{sHEAD}, 3")
for b in range(8):
    e(f"v_mov_b32 v{pM+b}, 0")
for b in range(1, 8):
    e(f"s_mov_b64 {pr(sNL+2*b)}, 0")
e("s_waitcnt lgkmcnt(0)")
e(f"s_load_dwordx8 s[{sC}:{sC+7}], {pr(sCTX)}, 0")
for b in range(8):
    e(f"global_load_dword v{pT+b}, v{pJ4 if b < 4 else pB}, {pr(sBT)} offset:{(b & 3)*1024}")
e(f"s_mov_b32 s{SRDW}, s{sWS}")
e(f"s_and_b32 s{SRDW+1}, s{sWS+1}, 0xffff")
e(f"buffer_store_dwordx4 v[{hP}:{hP+3}], v{hFL}, s[{SRDW}:{SRDW+3}], s{sDS} offen sc1")
e(f"buffer_store_dwordx4 v[{hP}:{hP+3}], v{hFL}, s[{SRDW}:{SRDW+3}], s{sCNT} offen sc1")
e(f"buffer_store_dword v{hA}, v{hA}, s[{SRDW}:{SRDW+3}], s{sTK} offen sc1")
e(f"s_add_u32 s{sDBG}, s{sDBG}, s{sT2}")
e(f"s_addc_u32 s{sDBG+1}, s{sDBG+1}, 0")
NPF = 0
if cfg.TLBPF:
    sh = cfg.TLBPF
    NPF = max(1, (KV_BYTES >> sh) // 128 + 1)
    e(f"s_bitcmp1_b32 s{sI}, 0")
    e(f"s_cselect_b32 s24, s{sV}, s{sK}")
    e(f"s_cselect_b32 s25, s{sV+1}, s{sK+1}")
    e(f"s_and_b32 s25, s25, 0xffff")
    e(f"s_mov_b32 s26, {KV_BYTES}")
    e(f"s_mov_b32 s27, 0x20000")
    e(f"s_lshr_b32 s{sT0}, s{sI}, 1")
    e(f"s_lshl_b32 s{sT0}, s{sT0}, {sh+6}")
    e(f"v_lshlrev_b32 v72, {sh}, v{vLANE}")
    for i in range(NPF):
        e(f"buffer_load_dword v73, v72, s[24:27], s{sT0} offen")
        if i+1 < NPF: e(f"s_add_u32 s{sT0}, s{sT0}, {128 << sh}")
e("s_waitcnt lgkmcnt(0)")
for b in range(8):
    nblocks(sC+b)
    e(f"s_sub_u32 s{sC+b}, s{sC+b}, {4*KW}")
for b in range(8):
    e(f"v_cmp_gt_i32_e64 {pr(sVAL+2*b)}, s{sC+b}, v{pJ}")
e(f"s_waitcnt vmcnt({3+NPF})")
for b in range(8):
    e(f"v_cndmask_b32_e64 v{pT+b}, {-(b+1)}, v{pT+b}, {pr(sVAL+2*b)}")
for b in range(7):
    hi = list(range(7, b, -1))
    for k, b2 in enumerate(hi):
        e(f"v_cmp_eq_u32_e64 {pr(sEQ+2*k)}, v{pT+b}, v{pT+b2}")
    if len(hi) < 3: e(f"s_nop {2-len(hi)}")
    for k, b2 in enumerate(hi):
        e(f"v_addc_co_u32_e64 v{pM+b}, vcc, v{pM+b}, v{pM+b}, {pr(sEQ+2*k)}")
    for k, b2 in enumerate(hi):
        e(f"s_or_b64 {pr(sNL+2*b2)}, {pr(sNL+2*b2)}, {pr(sEQ+2*k)}")
e(f"v_mov_b32 v{pCNT}, 0")
for b in range(8):
    if b: e(f"s_andn2_b64 {pr(sVAL+2*b)}, {pr(sVAL+2*b)}, {pr(sNL+2*b)}")
    e(f"s_bcnt1_i32_b64 s{sT0}, {pr(sVAL+2*b)}")
    e(f"s_or_b32 s{sT0}, s{sT0}, 0x10000")
    e(f"v_writelane_b32 v{pCNT}, s{sT0}, {b}")
e(f"s_lshl_b32 s{sT0}, s{sI}, 2")
e(f"s_add_u32 s{sT0}, s{sT0}, {L_CNT}")
e(f"v_lshl_add_u32 v{pA}, v{vLANE}, 4, s{sT0}")
e(f"s_mov_b64 exec, 0xff")
e(f"ds_write_b32 v{pA}, v{pCNT}")
e(f"s_mov_b64 exec, -1")
for b in range(8):
    e(f"v_lshl_or_b32 v{pM+b}, v{pM+b}, 1, 1")
    e(f"v_lshlrev_b32 v{pM+b}, {24+b}, v{pM+b}")
    e(f"v_or3_b32 v{pT+b}, v{pT+b}, v{pJX}, v{pM+b}")
    e(f"v_mbcnt_lo_u32_b32 v{pM+b}, s{sVAL+2*b}, 0")
    e(f"v_mbcnt_hi_u32_b32 v{pM+b}, s{sVAL+2*b+1}, v{pM+b}")
e(f"v_and_b32 v{pA}, 31, v{vLANE}")
e(f"v_lshlrev_b32 v{pA}, 2, v{pA}")
lab("P_cw")
e(f"ds_read_b32 v{pCNT}, v{pA} offset:{L_CNT}")
e("s_waitcnt lgkmcnt(0)")
e(f"v_cmp_eq_u32 vcc, 0, v{pCNT}")
e("s_cbranch_vccnz P_cw")
e(f"v_and_b32 v{pCNT}, 0xffff, v{pCNT}")
e(f"v_mov_b32 v{pB}, v{pCNT}")
for sh in (1, 2, 4, 8):
    e("s_nop 1")
    e(f"v_add_u32_dpp v{pB}, v{pB}, v{pB} row_shr:{sh} row_mask:0xf bank_mask:0xf bound_ctrl:0")
e("s_nop 1")
e(f"v_add_u32_dpp v{pB}, v{pB}, v{pB} row_bcast:15 row_mask:0xa bank_mask:0xf")
e("s_nop 1")
e(f"v_readlane_b32 s{sN}, v{pB}, 31")
e(f"v_sub_u32 v{pB}, v{pB}, v{pCNT}")
e(f"s_mov_b32 s{sT1}, s{sI}")
for b in range(8):
    e(f"v_readlane_b32 s{sEQ+b}, v{pB}, s{sT1}")
    e(f"s_add_u32 s{sT1}, s{sT1}, 4")
e(f"v_mov_b32 v{pA}, 0")
e(f"v_mov_b32 v{pCNT}, s{sN}")
e(f"ds_write_b32 v{pA}, v{pCNT} offset:{L_N}")
for b in range(8):
    e(f"v_add_lshl_u32 v{pM+b}, v{pM+b}, s{sEQ+b}, 2")
for b in range(8):
    e(f"s_mov_b64 exec, {pr(sVAL+2*b)}")
    e(f"ds_write_b32 v{pM+b}, v{pT+b}")
e(f"s_mov_b64 exec, -1")
prof(1)
e("s_waitcnt vmcnt(0) lgkmcnt(0)")
e("s_barrier")

hL16, hM, hW, hMA = 5, 10, 11, 7
hO0, hO1, hO2, hO3 = 14, 15, 16, 17
hZ, hLA, hACC = 18, 19, 20
hQ = 24
hD = 40
hR = 72
hSA = 81
hsP, hsO, hsT = 32, 34, 35
hsML = 40
e(f"v_lshlrev_b32 v{hL16}, 4, v{vLANE}")
e(f"v_and_b32 v{hM}, 3, v{vLANE}")
e(f"v_lshlrev_b32 v{hM}, 2, v{hM}")
e(f"v_min_u32 v{hL16}, 752, v{hL16}")
e(f"s_mul_i32 s{sT0}, s{sI}, {2*RS}")
e(f"v_add_u32 v{hSA}, s{sT0}, v{hL16}")
e(f"s_lshl_b32 s{sT0}, s{sI}, 4")
e(f"v_mov_b32 v{hW}, s{sT0}")
e(f"v_cmp_eq_u32_e64 {pr(36)}, 48, v{vLANE}")
e(f"s_cmp_lg_u32 s{sI}, 0")
e("s_cbranch_scc1 H_wa0")
e(f"s_mov_b32 s{sT2}, 1")
e(f"s_mov_b32 s{sSPIN}, 0")
lab("H_chk")
e(f"s_mov_b32 s{sT1}, s{sT2}")
e(f"s_atomic_add s{sT2}, {pr(sDBG)}, 0 glc")
e(f"s_add_u32 s{sSPIN}, s{sSPIN}, 1")
e("s_waitcnt lgkmcnt(0)")
e(f"s_add_u32 s{sT1}, s{sT1}, s{sT2}")
e(f"s_mov_b32 s{sT2}, 0")
e(f"s_cmp_ge_u32 s{sT1}, 8")
e(f"s_cbranch_scc1 H_chkok")
e(f"s_cmp_ge_u32 s{sSPIN}, {SPIN_MAX >> 1}")
e(f"s_cbranch_scc1 H_chkok")
e("s_sleep 32")
e(f"s_branch H_chk")
lab("H_chkok")
e(f"v_mov_b32 v{hA}, 0")
e(f"v_mov_b32 v{hB}, 1")
e(f"ds_write_b32 v{hA}, v{hB} offset:{L_OK}")
e(f"s_mov_b32 s{SRDO}, s{sOUT}")
e(f"s_and_b32 s{SRDO+1}, s{sOUT+1}, 0xffff")
e(f"s_mov_b32 s{SRDO+2}, 98304")
e(f"s_mov_b32 s{SRDO+3}, 0x20000")
e(f"v_cmp_gt_u32 vcc, 48, v{vLANE}")
e(f"v_lshrrev_b32 v{hB}, 2, v{vLANE}")
e(f"v_and_b32 v{hZ}, 3, v{vLANE}")
e(f"v_cndmask_b32_e64 v{hA}, v{hBIG}, 0, vcc")
e(f"v_lshl_add_u32 v{hO0}, v{hZ}, 5, v{hB}")
e(f"v_lshl_add_u32 v{hO1}, v{hZ}, 4, v{hB}")
e(f"v_add_u32 v{hO1}, 120, v{hO1}")
e(f"v_cmp_gt_u32 vcc, 8, v{hB}")
e(f"v_mov_b32 v{hO2}, 8")
e(f"v_mov_b32 v{hO3}, 16")
e(f"v_cndmask_b32 v{hO0}, v{hO1}, v{hO0}, vcc")
e(f"v_cndmask_b32 v{hO3}, v{hO2}, v{hO3}, vcc")
e(f"v_lshl_add_u32 v{hO0}, v{hO0}, 1, v{hA}")
e(f"v_add_u32 v{hO1}, v{hO0}, v{hO3}")
e(f"v_add_u32 v{hO2}, v{hO1}, v{hO3}")
e(f"v_add_u32 v{hO3}, v{hO2}, v{hO3}")
e(f"v_mov_b32 v{hZ}, 0")
lab("H_wa0")
if cfg.NOHELP: e("s_endpgm")
def lds_wait(name, off, sleep):
    e(f"s_mov_b32 s{sSPIN}, 0")
    lab(name)
    e(f"ds_read_b32 v{hB}, v{hM} offset:{off}")
    e(f"s_add_u32 s{sSPIN}, s{sSPIN}, 1")
    e("s_waitcnt lgkmcnt(0)")
    e(f"v_cmp_eq_u32 vcc, 0, v{hB}")
    e(f"s_cmp_ge_u32 s{sSPIN}, {1 << 26}")
    e(f"s_cbranch_scc1 {name}_ok")
    if sleep:
        e(f"s_cbranch_vccz {name}_ok")
        e(f"s_sleep {sleep}")
        e(f"s_branch {name}")
    else:
        e(f"s_cbranch_vccnz {name}")
    lab(f"{name}_ok")
lds_wait("H_wa", L_FA, cfg.HSLEEP)
prof(2)
for w in range(4):
    e(f"ds_read_b128 v[{hQ+4*w}:{hQ+4*w+3}], v{hW} offset:{L_STGML + 64*w}")
for c in range(2):
    for w in range(4):
        e(f"ds_read_b128 v[{hD+16*c+4*w}:{hD+16*c+4*w+3}], v{hSA} offset:{L_STG + WSZ*w + RS*c}")
e("s_waitcnt lgkmcnt(8)")
for c in range(2):
    m = [hQ+4*w+2*c for w in range(4)]
    M, L = hMA, hLA
    e(f"v_max3_f32 v{M}, v{m[0]}, v{m[1]}, v{m[2]}")
    e(f"v_max_f32 v{M}, v{M}, v{m[3]}")
    for w in range(4): e(f"v_sub_f32 v{m[w]}, v{m[w]}, v{M}")
    for w in range(4): e(f"v_exp_f32 v{m[w]}, v{m[w]}")
    e(f"v_mul_f32 v{L}, v{m[0]}, v{m[0]+1}")
    for w in range(1, 4): e(f"v_fmac_f32 v{L}, v{m[w]}, v{m[w]+1}")
    e(f"s_waitcnt lgkmcnt({4-4*c})")
    for i in range(4): e(f"v_mul_f32 v{hR+4*c+i}, v{m[0]}, v{hD+16*c+i}")
    for w in range(1, 4):
        for i in range(4): e(f"v_fmac_f32 v{hR+4*c+i}, v{m[w]}, v{hD+16*c+4*w+i}")
    e(f"v_cndmask_b32_e64 v{hR+4*c}, v{hR+4*c}, v{M}, {pr(36)}")
    e(f"v_cndmask_b32_e64 v{hR+4*c+1}, v{hR+4*c+1}, v{L}, {pr(36)}")
    for i in range(4): e(f"v_min_u32 v{hR+4*c+i}, -2, v{hR+4*c+i}")
    e(f"buffer_store_dwordx4 v[{hR+4*c}:{hR+4*c+3}], v{hFL}, s[{SRDW}:{SRDW+3}], s{sDS if c == 0 else sCNT} offen sc1")
e(f"s_cmp_eq_u32 s{sI}, 0")
e("s_cbranch_scc1 H_start")
e("s_endpgm")

lab("H_start")
prof(3)
e(f"s_mul_i32 s{hsO}, s2, {8*RW}")
e(f"s_lshl_b32 s{hsP}, 1, s{sB0}")
e(f"s_xor_b32 s{hsP}, s{hsP}, 0xff")
e(f"s_mov_b32 s{sSPIN}, 0")
for i in range(32): e(f"v_mov_b32 v{hD+i}, 0")
lab("H_poll")
for s_ in range(8):
    e(f"s_bitcmp1_b32 s{hsP}, {s_}")
    e(f"s_cbranch_scc0 H_sk{s_}")
    if s_*RW < 4096:
        e(f"buffer_load_dwordx4 v[{hD+4*s_}:{hD+4*s_+3}], v{hFL}, s[{SRDW}:{SRDW+3}], s{hsO} offen offset:{s_*RW} sc1")
    else:
        e(f"s_add_u32 s{hsT}, s{hsO}, {s_*RW}")
        e(f"buffer_load_dwordx4 v[{hD+4*s_}:{hD+4*s_+3}], v{hFL}, s[{SRDW}:{SRDW+3}], s{hsT} offen sc1")
    lab(f"H_sk{s_}")
e(f"s_add_u32 s{sSPIN}, s{sSPIN}, 1")
e(f"s_mov_b32 s{hsP}, 0")
e("s_waitcnt vmcnt(0)")
for s_ in range(8):
    e(f"v_max3_u32 v{hQ+s_}, v{hD+4*s_}, v{hD+4*s_+1}, v{hD+4*s_+2}")
for s_ in range(8):
    e(f"v_max_u32 v{hQ+s_}, v{hQ+s_}, v{hD+4*s_+3}")
for s_ in range(8):
    e(f"v_cmp_eq_u32_e64 {pr(hsML+2*s_)}, -1, v{hQ+s_}")
for s_ in range(8):
    e(f"s_cmp_lg_u64 {pr(hsML+2*s_)}, 0")
    e(f"s_cselect_b32 s{hsT}, {1 << s_}, 0")
    e(f"s_or_b32 s{hsP}, s{hsP}, s{hsT}")
e("s_cbranch_scc0 H_gath")
e(f"s_cmp_ge_u32 s{sSPIN}, {SPIN_MAX}")
if cfg.PSLEEP:
    e("s_cbranch_scc1 H_gath")
    e(f"s_sleep {cfg.PSLEEP}")
    e("s_branch H_poll")
else:
    e("s_cbranch_scc0 H_poll")
lab("H_gath")
prof(4)
for s_ in range(8):
    e(f"v_readlane_b32 s{hsML+2*s_}, v{hD+4*s_}, 48")
    e(f"v_readlane_b32 s{hsML+2*s_+1}, v{hD+4*s_+1}, 48")
for s_ in range(8):
    e(f"s_cmp_eq_u32 s{sB0}, {s_}")
    e(f"s_cselect_b32 s{hsML+2*s_}, 0x{NEG:08x}, s{hsML+2*s_}")
e(f"v_mov_b32 v{hMA}, s{hsML}")
for s_ in range(1, 8):
    e(f"v_max_f32 v{hMA}, s{hsML+2*s_}, v{hMA}")
for s_ in range(8):
    e(f"v_sub_f32 v{hQ+s_}, s{hsML+2*s_}, v{hMA}")
for s_ in range(8):
    e(f"v_exp_f32 v{hQ+s_}, v{hQ+s_}")
e(f"v_mul_f32 v{hLA}, s{hsML+1}, v{hQ}")
for s_ in range(1, 8):
    e(f"v_fmac_f32 v{hLA}, s{hsML+2*s_+1}, v{hQ+s_}")
for i in range(4): e(f"v_mul_f32 v{hACC+i}, v{hQ}, v{hD+i}")
for s_ in range(1, 8):
    for i in range(4): e(f"v_fmac_f32 v{hACC+i}, v{hQ+s_}, v{hD+4*s_+i}")
e(f"s_lshl_b32 s{sT0}, s{sB0}, 5")
e(f"s_add_u32 s{sT0}, s{sT0}, s{sHEAD}")
e(f"s_mul_i32 s{sT0}, s{sT0}, 384")
lds_wait("H_wb", L_FB, 0)
prof(5)
e(f"ds_read_b128 v[{hQ}:{hQ+3}], v{hZ} offset:{L_STBML}")
e(f"ds_read_b128 v[{hQ+4}:{hQ+7}], v{hZ} offset:{L_STBML+16}")
for w in range(4):
    e(f"ds_read_b128 v[{hD+4*w}:{hD+4*w+3}], v{hL16} offset:{L_STB + 768*w}")
e("s_waitcnt lgkmcnt(4)")
e(f"v_max3_f32 v{hW}, v{hQ}, v{hQ+2}, v{hMA}")
e(f"v_max3_f32 v{hW}, v{hQ+4}, v{hQ+6}, v{hW}")
e(f"v_sub_f32 v{hMA}, v{hMA}, v{hW}")
for w in range(4):
    e(f"v_sub_f32 v{hQ+2*w}, v{hQ+2*w}, v{hW}")
e(f"v_exp_f32 v{hMA}, v{hMA}")
for w in range(4):
    e(f"v_exp_f32 v{hQ+2*w}, v{hQ+2*w}")
e(f"v_mul_f32 v{hLA}, v{hLA}, v{hMA}")
for w in range(4):
    e(f"v_fmac_f32 v{hLA}, v{hQ+2*w}, v{hQ+2*w+1}")
for i in range(4):
    e(f"v_mul_f32 v{hACC+i}, v{hACC+i}, v{hMA}")
e(f"v_rcp_f32 v{hLA}, v{hLA}")
e("s_waitcnt lgkmcnt(0)")
for w in range(4):
    for i in range(4):
        e(f"v_fmac_f32 v{hACC+i}, v{hQ+2*w}, v{hD+4*w+i}")
for i in range(4):
    e(f"v_mul_f32 v{hACC+i}, v{hACC+i}, v{hLA}")
e(f"v_cvt_pk_bf16_f32 v{hA}, v{hACC}, v{hACC+1}")
e(f"v_cvt_pk_bf16_f32 v{hB}, v{hACC+2}, v{hACC+3}")
e(f"buffer_store_short v{hA}, v{hO0}, s[{SRDO}:{SRDO+3}], s{sT0} offen {cfg.OSC}")
e(f"buffer_store_short_d16_hi v{hA}, v{hO1}, s[{SRDO}:{SRDO+3}], s{sT0} offen {cfg.OSC}")
e(f"buffer_store_short v{hB}, v{hO2}, s[{SRDO}:{SRDO+3}], s{sT0} offen {cfg.OSC}")
e(f"buffer_store_short_d16_hi v{hB}, v{hO3}, s[{SRDO}:{SRDO+3}], s{sT0} offen {cfg.OSC}")
prof(6)
prof(7)
dump_prof()
if cfg.STAMPS and not cfg.MIDST:
    e("s_waitcnt vmcnt(0)")
    e(f"s_memrealtime {pr(sST+2)}")
    dump_stamps()
e("s_endpgm")
lab("K_end")

raw('.section .rodata,"a"')
raw(f""".p2align 6
.amdhsa_kernel {NAME}_kernel
  .amdhsa_next_free_vgpr {NFV}
  .amdhsa_next_free_sgpr 102
  .amdhsa_accum_offset {ACC}
  .amdhsa_group_segment_fixed_size 0
  .amdhsa_kernarg_size 64
  .amdhsa_user_sgpr_count 2
  .amdhsa_user_sgpr_kernarg_segment_ptr 1
  .amdhsa_system_sgpr_workgroup_id_x 1
.end_amdhsa_kernel""")
open(sys.argv[1], 'w').write("\n".join(out) + "\n")
print("LDS", LDS_BYTES, "NV", NV, "NFV", NFV)
```

```python
import sys, struct, math
NAME = "standalone__paged_block_table_kv_radixattention__sampling"
KV_BYTES = 1152*196608
def f2u(x): return struct.unpack('<I', struct.pack('<f', x))[0]
C2 = (192 ** -0.5) * math.log2(math.e)
NEG = f2u(-3e38)

class Cfg:
    KP = 2
    KB = 2
    STAMPS = False
    MIDST = False
    PROF = False
    F = 28
    HSLEEP = 4
    PPRIO = 3
    NOUT = 6
    NK = [7,7,7,6,6,6]
    NVL = [6,6,6,7,7,7,7,8]
    KSPLIT = 2
    NOHELP = 0
    CODEPF = 1
    TOK = 1
    BADD = 0
    LADD = 0
    PSLEEP = 0
    WT = 1
    TLBPF = 0
    NOCOMP = 0
    THR0 = 1
    VROW = 0
    HALVES = 0
    HADD = 4
    ZRE = 0
    NS = 0
    HB = 0
    RT = 0
    OSC = ''
cfg = Cfg()
for a in sys.argv[2:]:
    k, v = a.split('=')
    assert hasattr(cfg, k), k
    setattr(cfg, k, eval(v))
KP, KB = cfg.KP, cfg.KB
NKL = cfg.NK if cfg.NK else [cfg.NOUT]*6
NVL = cfg.NVL if cfg.NVL else [cfg.NOUT]*8
if isinstance(NKL, int): NKL = [NKL]*6
if isinstance(NVL, int): NVL = [NVL]*8
NS, HB = cfg.NS, cfg.HB
if NS: KB = 1
KW = KP + KB
DH = cfg.HALVES or HB
TOFF = (0, 1, 8, 9) if cfg.TOK == 0 else (0, 4, 8, 12)
O_OFF = 0
RW = 896
TK_OFF = 256*8*RW
WS_USED = TK_OFF + 32*4096
SPIN_MAX = 1 << 17
OOB = 0xF0000000
EMPTY, DONE = -1, -2
RS, WSZ = 784, 8*784
L_CNT = 8192
L_N = 8320
L_FA = 8336
L_FB = 8352
L_OK = 8368
L_Z = 8384
L_SLOT = 9216
L_STB = 12288
L_STBML = L_STB + 4*768
L_STGML = L_STBML + 64
L_STG = L_STGML + 256
LDS_BYTES = L_STG + 4*WSZ

out = []
inbody = [False]
def e(s):
    if inbody[0] and cfg.NOCOMP and s.split()[0].startswith(("v_mfma", "v_perm", "v_add_f32", "v_cndmask", "v_max", "v_fma", "v_exp", "v_cvt", "v_cmp", "v_subrev", "s_cbranch_vccnz", "s_nop")): return
    out.append("    " + s)
def lab(s): out.append(s + ":")
def raw(s): out.append(s)
def pr(a): return f"s[{a}:{a+1}]"

hdr = open('cdna_kernels/%s.s.ref' % NAME).read().split('\n')
for l in hdr:
    if l.startswith('; Override') or l.startswith('; grid=') or l.startswith('; @launch'): continue
    if not l.startswith(';'): break
    raw(l)
raw(f"; @launch grid=(256,1,1) block=(512,1,1) lds={LDS_BYTES}")
raw('.amdgcn_target "amdgcn-amd-amdhsa--gfx950"')
raw(".text")
for l in """
Paged decode attention with shared-prefix (radix) de-duplication, one launch, HBM bound.

Workgroup = (head h = id>>3, sequence b0 = id&7), 8 waves: 4 workers + 4 planners.
 planners  build, in LDS, the list of distinct (position, physical block) entries of the block table together
           with the set of sequences that use each of them (record = block | position<<16 | sequence mask<<24);
           the newest blocks of every sequence stay out of the list (own window of its 32 workgroups).
 workers   each stream one 16-token block of head h at a time for all 8 queries (MFMA, masked per record) with an
           online softmax: own window (quick start) -> static share of the list (chip-wide sweep) -> per-head pool
           handed out by tickets -> state to LDS -> rest of the own window -> own column to LDS.
           Loads are non-temporal, cover whole 128-byte lines, and the number in flight per wave is bounded.
 planners  then merge the four workers' states and publish the 7 foreign columns as rows in d_ws; planner 0
           collects the 7 rows of the own (h, b0) pair while the own window still streams, merges and stores.
Hand-off:  rows are reset to an all-ones pattern at kernel start by their writer, a per-head counter in d_debug
           tells when all 8 writers of a head have done so; a row is taken once no dword holds the pattern.
""".strip("\n").split("\n"):
    raw("; " + l if l else ";")
raw(f".globl {NAME}_kernel\n.p2align 8\n.type {NAME}_kernel,@function")
lab(f"{NAME}_kernel")

sQ, sK, sV, sBT, sCTX, sOUT, sDBG, sWS = 4, 6, 8, 10, 12, 14, 16, 18
SRDK, SRDV, SRDW = 20, 24, 28
sWAVE, sHOFF, sB0, sN, sDS, sCNT, sI, sT0, sT1, sT2, sHEAD, sTK = 86, 87, 88, 89, 90, 91, 92, 93, 94, 95, 96, 97
sST = 98
sP0 = 3
sTKB = 6
sSPIN = 8
sREC, sLF, sCNTA = 32, 33, 34
sHF, sH0, sCUR = 44, 45, 46
PHM = 0x3fff if DH else 0xffff
sNBM = 47
L_PB = 8400
sJW, sPW = 36, 68
sMK = 48
sA = 50
sJ16 = 58
sTKO = 59
sO = 60
sC2, sSELLO, sSELHI = 64, 65, 66
sBM = 76
sC = 32
sVAL = 40
sNL = 56
sEQ = 72
vLANE, vC, vG = 1, 2, 3
vOK, vOV4, vOV2, vCTXM, vLIST, vM, vMC, vL, vNINF, vLIM, vMX, vA, vB, vPO = 4, 5, 6, 7, 8, 9, 10, 11, 12, 13, 14, 15, 42, 43
vQ = 16
vC1, vC2 = 28, 32
vS = 36
vP = 40
vX = 44
vO = 48
vT = 96
vMA, vLB, vSB = 120, 122, 123
vV = 124
NV = 148 + (1 if cfg.PROF else 0)
vPROF = NV-1
ACC = (NV + 3)//4*4
NFV = ACC + 24

inhelper = [False]
def prof(n):
    if not cfg.PROF: return
    if cfg.RT and n in (1, 2, 3, 4) and not inhelper[0]: return
    e('s_memrealtime s[100:101]' if cfg.RT else 's_memtime s[100:101]')
    e('s_waitcnt lgkmcnt(0)')
    e(f'v_writelane_b32 v{vPROF}, s100, {n}')
ADD = [0]
def thr(n):
    if n: e(f"s_waitcnt vmcnt({n-1})")
def k_loads(lo=0, hi=6, t=0):
    for k in range(lo, hi):
        u, s = k // 3, k % 3
        r = u*12 + s*4
        thr(NKL[k] + ADD[0] if t else 0)
        e(f"buffer_load_dwordx4 a[{r}:{r+3}], v{vOK}, s[{SRDK}:{SRDK+3}], s{sO+2*u} offen offset:{128*s} nt")
def v_load1(k, t=0):
    i = k // 2
    thr(NVL[k] + ADD[0] if t else 0)
    if k % 2 == 0:
        r = vV + i*4
        e(f"buffer_load_dwordx4 v[{r}:{r+3}], v{vOV4}, s[{SRDV}:{SRDV+3}], s{sO+i} offen nt")
    else:
        r = vV + 16 + i*2
        e(f"buffer_load_dwordx2 v[{r}:{r+1}], v{vOV2}, s[{SRDV}:{SRDV+3}], s{sO+i} offen offset:256 nt")
def soffs():
    for i in range(1, 4):
        e(f"s_add_u32 s{sO+i}, s{sO}, {TOFF[i]*12288}")
def xreduce(op, reg, dst=None):
    for sw in ("v_permlane32_swap_b32", "v_permlane16_swap_b32"):
        e(f"v_mov_b32 v{vA}, v{reg}")
        e(f"v_mov_b32 v{vB}, v{reg}")
        e("s_nop 1")
        e(f"{sw} v{vA}, v{vB}")
        e("s_nop 1")
        if dst is not None: reg = dst
        e(f"{op} v{reg}, v{vA}, v{vB}")
def nblocks(r):
    e(f"s_cmp_lt_i32 s{r}, 1")
    e(f"s_cselect_b32 s{r}, 0x1000, s{r}")
    e(f"s_min_i32 s{r}, s{r}, 0x1000")
    e(f"s_add_u32 s{r}, s{r}, 15")
    e(f"s_lshr_b32 s{r}, s{r}, 4")
chk_n = [0]
def started_check():
    n = chk_n[0]; chk_n[0] += 1
    e(f"v_mov_b32 v{vB}, 0")
    lab(f"A_chk{n}")
    e(f"ds_read_b32 v{vLIM}, v{vB} offset:{L_OK}")
    e("s_waitcnt lgkmcnt(0)")
    e(f"v_cmp_eq_u32 vcc, 0, v{vLIM}")
    e(f"s_cbranch_vccnz A_chk{n}")
def dump_prof():
    if cfg.PROF:
        e("s_mov_b64 exec, -1")
        e(f"v_writelane_b32 v{vPROF}, s{sCNT}, 63")
        e(f"s_mul_i32 s{sT0}, s2, 5")
        e(f"s_add_u32 s{sT0}, s{sT0}, s{sWAVE}")
        e(f"s_lshl_b32 s{sT0}, s{sT0}, 8")
        e(f"s_add_u32 s{sT0}, s{sT0}, 0x2000000")
        e(f"v_lshl_add_u32 v{vX}, v{vLANE}, 2, s{sT0}")
        e(f"global_store_dword v{vX}, v{vPROF}, {pr(sWS)}")
def dump_stamps():
    e("s_mov_b64 exec, -1")
    e("s_waitcnt lgkmcnt(0)")
    e(f"s_add_u32 s{sWS}, s{sWS}, 0x20000000")
    e(f"s_addc_u32 s{sWS+1}, s{sWS+1}, 0")
    e(f"s_lshl_b32 s{sT0}, s2, 4")
    e(f"v_mov_b32 v{vX}, s{sT0}")
    for i in range(4): e(f"v_mov_b32 v{vS+i}, s{sST+i}")
    e("s_mov_b64 exec, 1")
    e(f"global_store_dwordx4 v{vX}, v[{vS}:{vS+3}], {pr(sWS)}")

e("s_cmp_ge_u32 s2, 256")
e("s_cbranch_scc1 A_end")
if cfg.STAMPS: e(f"s_memrealtime {pr(sST)}")
prof(0)
e(f"v_lshrrev_b32 v{vA}, 6, v0")
e(f"v_and_b32 v{vLANE}, 63, v0")
e(f"v_readfirstlane_b32 s{sWAVE}, v{vA}")
e(f"s_lshr_b32 s{sHEAD}, s2, 3")
e(f"s_and_b32 s{sB0}, s2, 7")
e(f"s_cmp_ge_u32 s{sWAVE}, 4")
e("s_cbranch_scc1 P_start")
e("s_load_dwordx16 s[4:19], s[0:1], 0")
e(f"v_and_b32 v{vC}, 15, v0")
e(f"v_lshrrev_b32 v{vG}, 4, v{vLANE}")
e(f"s_lshl_b32 s{sTKO}, s{sHEAD}, 12")
e(f"s_add_u32 s{sTKO}, s{sTKO}, {TK_OFF}")
e(f"s_mul_i32 s{sHOFF}, s{sHEAD}, 384")
e(f"s_lshl_b32 s{sT2}, s{sB0}, 2")
e(f"s_lshl_b32 s{sT0}, s{sB0}, 10")
if cfg.TOK == 0:
    e(f"v_lshrrev_b32 v{vOK}, 1, v{vC}")
else:
    e(f"v_and_b32 v{vOK}, 2, v{vC}")
    e(f"v_lshrrev_b32 v{vA}, 2, v{vC}")
    e(f"v_lshl_add_u32 v{vOK}, v{vOK}, 1, v{vA}")
e(f"v_mul_u32_u24 v{vOK}, 12288, v{vOK}")
e(f"v_lshl_add_u32 v{vOK}, v{vG}, 5, v{vOK}")
e(f"v_and_b32 v{vA}, 1, v{vC}")
e(f"v_lshl_add_u32 v{vOK}, v{vA}, 4, v{vOK}")
e(f"v_mul_u32_u24 v{vA}, {24576 if cfg.TOK == 0 else 12288}, v{vG}")
e(f"v_lshl_add_u32 v{vOV4}, v{vC}, 4, v{vA}")
e(f"v_lshl_add_u32 v{vOV2}, v{vC}, 3, v{vA}")
e(f"v_and_b32 v{vX}, 7, v{vC}")
e(f"v_mul_u32_u24 v{vX+1}, 12288, v{vX}")
e(f"v_lshl_add_u32 v{vX+1}, v{vG}, 5, v{vX+1}")
e(f"v_lshrrev_b32 v{vX+3}, 3, v{vC}")
e(f"v_lshl_add_u32 v{vX+1}, v{vX+3}, 4, v{vX+1}")
e(f"v_add_u32 v{vX+1}, s{sHOFF}, v{vX+1}")
e(f"s_mul_i32 s{sT1}, s{sWAVE}, {WSZ}")
e(f"v_mul_u32_u24 v{vPO}, {RS}, v{vX}")
e(f"v_lshl_add_u32 v{vPO}, v{vX+3}, 6, v{vPO}")
e(f"v_lshl_add_u32 v{vPO}, v{vG}, 4, v{vPO}")
e(f"v_add_u32 v{vPO}, s{sT1}, v{vPO}")
e(f"v_lshlrev_b32 v{vX}, 2, v{vX}")
e(f"v_lshl_add_u32 v{vT+4}, v{vLANE}, 4, s{sT0}")
for srd in (SRDK, SRDV):
    e(f"s_mov_b32 s{srd+2}, {KV_BYTES}")
    e(f"s_mov_b32 s{srd+3}, 0x20000")
e("s_barrier")
e("s_waitcnt lgkmcnt(0)")
prof(1)
e(f"s_load_dword s{sT1}, {pr(sCTX)}, s{sT2}")
if cfg.VROW:
    e(f"global_load_dwordx4 v[{vT}:{vT+3}], v{vT+4}, {pr(sBT)}")
e(f"global_load_dword v{vCTXM}, v{vX}, {pr(sCTX)}")
for s in range(3):
    e(f"global_load_dwordx4 v[{vQ+4*s}:{vQ+4*s+3}], v{vX+1}, {pr(sQ)} offset:{128*s}")
for srd, base in ((SRDK, sK), (SRDV, sV)):
    e(f"s_mov_b32 s{srd}, s{base}")
    e(f"s_and_b32 s{srd+1}, s{base+1}, 0xffff")
e(f"s_add_u32 s{sTKB}, s{sWS}, s{sTKO}")
e(f"s_addc_u32 s{sTKB+1}, s{sWS+1}, 0")
e(f"s_mov_b32 s{sC2}, 0x{f2u(C2):08x}")
e(f"s_mov_b32 s{sSELLO}, 0x05040100")
e(f"s_mov_b32 s{sSELHI}, 0x07060302")
e(f"v_mov_b32 v{vM}, 0x{NEG:08x}")
e(f"v_mul_f32 v{vMC}, s{sC2}, v{vM}")
e(f"v_mov_b32 v{vL}, 0")
e(f"v_mov_b32 v{vNINF}, 0xff800000")
e(f"v_mov_b32 v{vLIST}, 0")
e(f"v_mov_b32 v{vLB}, 0")
for i in range(24):
    e(f"v_mov_b32 v{vO+i}, 0")
e("s_waitcnt lgkmcnt(0)")
prof(2)
nblocks(sT1)
if NS:
    e(f"s_sub_u32 s{sNBM}, s{sT1}, 1")
    e(f"s_sub_u32 s{sT1}, s{sT1}, {NS}")
e(f"s_sub_u32 s{sT1}, s{sT1}, s{sWAVE}")
kk_of = [KB + k for k in range(KP)] + list(range(KB))
if cfg.VROW:
    for k in range(KW):
        e(f"s_sub_u32 s{sJW+k}, s{sT1}, {1+4*kk_of[k]}")
    e(f"s_and_b32 s{sT2}, s{sJW}, 3")
    for c in range(1, 4):
        e(f"s_cmp_eq_u32 s{sT2}, {c}")
        e(f"s_cselect_b64 {pr(sA+2*c)}, -1, 0")
    e(f"s_lshr_b32 s{sT2}, s{sJW}, 2")
    e("s_waitcnt vmcnt(4)")
    for c in range(1, 4):
        e(f"v_cndmask_b32_e64 v{vT}, v{vT}, v{vT+c}, {pr(sA+2*c)}")
    e("s_nop 0")
    e(f"v_readlane_b32 s{sPW}, v{vT}, s{sT2}")
    e("s_nop 0")
else:
    for k in range(KW):
        e(f"s_sub_u32 s{sJW+k}, s{sT1}, {1+4*kk_of[k]}")
        e(f"s_max_i32 s{sT2}, s{sJW+k}, 0")
        e(f"s_lshl_b32 s{sT2}, s{sT2}, 2")
        e(f"s_add_u32 s{sT2}, s{sT2}, s{sT0}")
        e(f"s_load_dword s{sPW+k}, {pr(sBT)}, s{sT2}")
    e("s_waitcnt lgkmcnt(0)")
prof(3)
e(f"s_and_b32 s{sT1}, s{sPW}, 0xffff")
e(f"s_mul_i32 s{sT1}, s{sT1}, 196608")
e(f"s_add_u32 s{sT1}, s{sT1}, s{sHOFF}")
e(f"s_cmp_ge_i32 s{sJW}, 0")
e(f"s_cselect_b32 s{sO}, s{sT1}, 0x{OOB:x}")
soffs()
k_loads()
if not cfg.THR0:
    for k in range(8): v_load1(k)
prof(4)
if NS:
    assert cfg.THR0
    NF = NS - HB
    e(f"v_subrev_u32 v{vT}, {NF}, v{vLANE}")
    e(f"v_sub_u32 v{vT+1}, {NS-1}, v{vLANE}")
    e(f"v_ashrrev_i32 v{vT+2}, 1, v{vT}")
    e(f"v_sub_u32 v{vT+2}, {HB-1}, v{vT+2}")
    e(f"v_cmp_le_i32 vcc, 0, v{vT}")
    e(f"v_and_b32 v{vT}, 1, v{vT}")
    e(f"v_add_u32 v{vT}, 1, v{vT}")
    e(f"v_cndmask_b32 v{vT+1}, v{vT+1}, v{vT+2}, vcc")
    e(f"v_lshlrev_b32 v{vT}, 14, v{vT}")
    e(f"v_cndmask_b32 v{vT}, 0, v{vT}, vcc")
    e(f"v_sub_u32 v{vT+1}, s{sNBM}, v{vT+1}")
    e(f"v_max_i32 v{vT+2}, 0, v{vT+1}")
    e(f"v_min_i32 v{vT+2}, 0xff, v{vT+2}")
    e(f"v_lshl_add_u32 v{vT+2}, v{vT+2}, 2, s{sT0}")
    e(f"global_load_dword v{vT+3}, v{vT+2}, {pr(sBT)}")
if cfg.VROW:
    for k in range(1, KW):
        e(f"s_lshr_b32 s{sT2}, s{sJW+k}, 2")
        e(f"v_readlane_b32 s{sPW+k}, v{vT}, s{sT2}")
e(f"s_lshl_b32 s{sT0}, 0x1000000, s{sB0}")
for k in range(KW):
    dst = sREC if k == 0 else sPW+k
    e(f"s_and_b32 s{sT1}, s{sPW+k}, 0x{PHM:x}")
    e(f"s_lshl_b32 s{sT2}, s{sJW+k}, 16")
    e(f"s_or_b32 s{sT1}, s{sT1}, s{sT2}")
    e(f"s_or_b32 s{sT1}, s{sT1}, s{sT0}")
    e(f"s_cmp_ge_i32 s{sJW+k}, 0")
    e(f"s_cselect_b32 s{dst}, s{sT1}, 0")
    if 0 < k < KP: e(f"v_writelane_b32 v{vLIST}, s{dst}, {k}")
    if k >= KP and not NS: e(f"v_writelane_b32 v{vLB}, s{dst}, {k-KP}")
for i in range(24, 48):
    e(f"v_mov_b32 v{vO+i}, 0")
e(f"s_lshl_b32 s{sBM}, 0x10001, s{sB0}")
e(f"s_mov_b32 s{sBM+1}, s{sBM}")
e(f"s_mul_i32 s{sT1}, s{sWAVE}, 768")
e(f"v_lshl_add_u32 v{vSB}, v{vG}, 4, s{sT1}")
e(f"s_waitcnt vmcnt({(7 if NS else 6) if cfg.THR0 else 14})")
e(f"v_cmp_gt_i32 vcc, 1, v{vCTXM}")
e(f"v_mov_b32 v{vA}, 0x1000")
e(f"v_lshlrev_b32 v{vB}, {1 if cfg.TOK == 0 else 0}, v{vG}")
e(f"v_cndmask_b32 v{vCTXM}, v{vCTXM}, v{vA}, vcc")
for i in range(12):
    e(f"v_cndmask_b32_e64 v{vQ+i}, v{vQ+i}, 0, vcc")
e(f"v_sub_u32 v{vCTXM}, v{vCTXM}, v{vB}")
e(f"s_mov_b32 s{sI}, 0")
e(f"s_mov_b32 s{sLF}, 0")
e(f"s_mov_b32 s{sCNT}, 0x7fffffff")
e(f"s_mov_b32 s{sCNTA}, 0x7fffffff")
e(f"s_mov_b32 s{sDS}, {KP+1}")
if cfg.THR0:
    ADD[0] = cfg.THR0 - 1
    for k in range(8): v_load1(k, 1)
    ADD[0] = 0
if NS:
    e("s_waitcnt vmcnt(8)")
    e(f"v_and_b32 v{vT+3}, 0x{PHM:x}, v{vT+3}")
    e(f"v_lshl_or_b32 v{vT+3}, v{vT+1}, 16, v{vT+3}")
    e(f"v_cmp_le_i32 vcc, 0, v{vT+1}")
    e(f"v_or3_b32 v{vT+3}, v{vT+3}, v{vT}, s{sT0}")
    e("s_nop 0")
    e(f"v_cndmask_b32 v{vLB}, 0, v{vT+3}, vcc")
    e(f"v_cmp_gt_u32 vcc, {NS+HB}, v{vLANE}")
    e("s_nop 1")
    e(f"v_cndmask_b32 v{vLB}, -1, v{vLB}, vcc")

def perm(t):
    if t < 8:
        q_, hsel = t >> 1, t & 1
        regs = [vV + i*4 + q_ for i in range(4)]
    else:
        q_, hsel = (t-8) >> 1, t & 1
        regs = [vV + 16 + i*2 + q_ for i in range(4)]
    sel = sSELHI if hsel else sSELLO
    e(f"v_perm_b32 v{vT+2*t}, v{regs[1]}, v{regs[0]}, s{sel}")
    e(f"v_perm_b32 v{vT+2*t+1}, v{regs[3]}, v{regs[2]}, s{sel}")
def pv(t):
    e(f"v_mfma_f32_16x16x16_bf16 v[{vO+4*t}:{vO+4*t+3}], v[{vT+2*t}:{vT+2*t+1}], v[{vP}:{vP+1}], v[{vO+4*t}:{vO+4*t+3}]")
def body(tag, last, phb=False, half=False):
    N = cfg.NOUT
    hv = (cfg.HALVES and not phb and not last) or HB
    if NS and last: lab('A_recZ')
    if not half and not (NS and last):
        e(f"s_bfe_u32 s{sJ16}, s{sREC}, 0x80010")
        e(f"s_lshl_b32 s{sJ16}, s{sJ16}, 4")
        e(f"s_lshr_b32 s{sMK}, s{sREC}, 24")
        e(f"s_mul_i32 s{sMK}, s{sMK}, 0x10001")
        e(f"s_mov_b32 s{sMK+1}, s{sMK}")
        if hv:
            e(f"s_and_b32 s{sCUR}, s{sREC}, 0xc000")
            e(f"s_bfe_u32 s{sT1}, s{sREC}, 0x1000e")
            e(f"s_lshl_b32 s{sT1}, s{sT1}, 3")
            e(f"s_sub_u32 s{sJ16}, s{sJ16}, s{sT1}")
    if phb:
        e(f"s_sub_u32 s{sT1}, s{sI}, s{sCNTA}")
        e(f"s_add_u32 s{sT1}, s{sT1}, 1")
        e(f"v_readlane_b32 s{sREC}, v{vLB}, s{sT1}")
        e("s_nop 1")
    elif half:
        lab("A_recH")
    elif not last:
        e(f"s_add_u32 s{sT0}, s{sI}, 1")
        e(f"v_readlane_b32 s{sREC}, v{vLIST}, s{sT0}")
        e(f"s_add_u32 s{sT1}, s{sT0}, 1")
        e(f"s_cmp_ge_u32 s{sT1}, s{sDS}")
        e(f"s_cbranch_scc1 A_dyn")
        lab("A_rec")
    if not last:
        e(f"s_and_b32 s{sT1}, s{sREC}, 0x{PHM:x}")
        e(f"s_mul_i32 s{sT1}, s{sT1}, 196608")
        e(f"s_add_u32 s{sT1}, s{sT1}, s{sHOFF}")
        if half:
            e(f"s_bitcmp1_b32 s{sREC}, 15")
            e(f"s_cselect_b32 s{sT2}, {8*12288}, 0")
            e(f"s_add_u32 s{sO+2}, s{sT1}, s{sT2}")
            e(f"s_add_u32 s{sO+3}, s{sO+2}, {(TOFF[3]-TOFF[2])*12288}")
            e(f"s_mov_b32 s{sO}, 0x{OOB:x}")
            e(f"s_mov_b32 s{sO+1}, 0x{OOB:x}")
        else:
            e(f"s_cmp_lg_u32 s{sREC}, 0")
            e(f"s_cselect_b32 s{sO}, s{sT1}, 0x{OOB:x}")
            soffs()
    e(f"v_subrev_u32 v{vLIM}, s{sJ16}, v{vCTXM}")
    e(f"v_cndmask_b32_e64 v{vLIM}, 0, v{vLIM}, {pr(sMK)}")
    for i, o in enumerate(TOFF):
        e(f"v_cmp_lt_i32_e64 {pr(sA+2*i)}, {o}, v{vLIM}")
    if hv:
        e(f"s_cmp_lg_u32 s{sCUR}, 0")
        e(f"s_cselect_b64 {pr(sA)}, 0, {pr(sA)}")
        e(f"s_cselect_b64 {pr(sA+2)}, 0, {pr(sA+2)}")
    e(f"s_waitcnt vmcnt(8)")
    for s in range(3):
        for u, c in ((0, vC1), (1, vC2)):
            r = u*12 + s*4
            src = "0" if s == 0 else f"v[{c}:{c+3}]"
            e(f"v_mfma_f32_16x16x32_bf16 v[{c}:{c+3}], a[{r}:{r+3}], v[{vQ+4*s}:{vQ+4*s+3}], {src}")
    if not last: k_loads(0, cfg.KSPLIT, N)
    e(f"s_nop {8-(0 if last else cfg.KSPLIT)}")
    for i, (c, r) in enumerate(((vC1, 0), (vC1, 2), (vC2, 0), (vC2, 2))):
        e(f"v_add_f32_dpp v{vS+i}, v{c+r+1}, v{c+r} row_ror:8 row_mask:0xf bank_mask:0xf")
    for i in range(4):
        e(f"v_cndmask_b32_e64 v{vS+i}, v{vNINF}, v{vS+i}, {pr(sA+2*i)}")
    e(f"v_max3_f32 v{vMX}, v{vS}, v{vS+1}, v{vS+2}")
    e(f"v_max_f32 v{vMX}, v{vMX}, v{vS+3}")
    e(f"v_cmp_gt_f32 vcc, v{vMX}, v{vM}")
    e(f"s_cbranch_vccnz A_slow{tag}")
    lab(f"A_back{tag}")
    for i in range(4):
        e(f"v_fma_f32 v{vX+i}, v{vS+i}, s{sC2}, -v{vMC}")
    for i in range(4):
        e(f"v_exp_f32 v{vX+i}, v{vX+i}")
    if not last: k_loads(cfg.KSPLIT, 6, N)
    else: e("s_nop 0")
    e(f"v_cvt_pk_bf16_f32 v{vP}, v{vX}, v{vX+1}")
    e(f"v_cvt_pk_bf16_f32 v{vP+1}, v{vX+2}, v{vX+3}")
    e(f"v_add_f32 v{vX}, v{vX}, v{vX+1}")
    e(f"v_add_f32 v{vX+2}, v{vX+2}, v{vX+3}")
    e(f"v_add_f32 v{vL}, v{vL}, v{vX}")
    e(f"v_add_f32 v{vL}, v{vL}, v{vX+2}")
    if last:
        xreduce("v_add_f32", vL)
        e(f"s_lshl_b32 s{sT0}, s{sWAVE}, 3")
        e(f"v_mov_b32 v{vX+1}, s{sT0}")
        e(f"s_lshl_b32 s{sT0}, s{sWAVE}, 2")
        e(f"v_mov_b32 v{vX+2}, s{sT0}")
        e(f"v_mov_b32 v{vX+3}, 1")
        e(f"s_mov_b64 exec, {pr(sBM)}")
        e(f"ds_write_b64 v{vX+1}, v[{vMC}:{vMC+1}] offset:{L_STBML}")
        e("s_mov_b64 exec, -1")
        e(f"s_waitcnt vmcnt(0)")
        perm(0); perm(1)
        for t in range(12):
            if t+2 < 12: perm(t+2)
            pv(t)
    else:
        e(f"s_waitcnt vmcnt(6)")
        for t in range(12): perm(t)
        v_load1(0, N); v_load1(1, N)
        for t in range(12): pv(t)
        e(f"s_add_u32 s{sI}, s{sI}, 1")
        if not phb and not half and cfg.ZRE:
            e(f"s_cmp_ge_u32 s{sI}, s{sCNTA}")
            e("s_cbranch_scc1 A_late")
            lab("A_more")
        elif not phb and not half:
            e(f"s_cmp_eq_u32 s{sI}, s{sCNTA}")
            e("s_cbranch_scc1 A_last")
        for k in range(2, 8): v_load1(k, N)
        if (cfg.ZRE or NS) and not half:
            lab("A_cont")
            e("s_branch A_loop")
        elif half or (cfg.BADD and not phb):
            e("s_branch A_loop")
        else:
            lab("A_cont")
            e(f"s_cmp_lt_u32 s{sI}, s{sCNT}")
            e(f"s_cbranch_scc1 {'B_loop' if phb else 'A_loop'}")

lab("A_loop")
inbody[0] = True
body("A", False)
inbody[0] = False
tags = ["A", "Z"]
if cfg.BADD:
    lab("B_loop")
    ADD[0] = cfg.BADD
    body("B", False, True)
    ADD[0] = 0
    tags.append("B")
if cfg.ZRE:
    tags.remove("Z")
    lab("A_late")
    e(f"s_cmp_eq_u32 s{sI}, s{sCNTA}")
    e("s_cbranch_scc1 A_last")
    e(f"s_cmp_le_u32 s{sI}, s{sCNT}")
    e("s_cbranch_scc1 A_more")
else:
    raw("; ---- last block: nothing left to load")
    body("Z", True)
if cfg.MIDST: e(f"s_memrealtime {pr(sST+2)}")
prof(6)
e(f"s_mov_b64 exec, {pr(sBM)}")
for t in range(12):
    if t == 4: e("s_nop 3")
    e(f"ds_write_b128 v{vSB}, v[{vO+4*t}:{vO+4*t+3}] offset:{L_STB + 64*t}")
if cfg.ZRE:
    e("s_mov_b64 exec, -1")
    xreduce("v_add_f32", vL)
    e(f"s_lshl_b32 s{sT0}, s{sWAVE}, 3")
    e(f"v_mov_b32 v{vX+1}, s{sT0}")
    e(f"s_lshl_b32 s{sT0}, s{sWAVE}, 2")
    e(f"v_mov_b32 v{vX+2}, s{sT0}")
    e(f"v_mov_b32 v{vX+3}, 1")
    e(f"s_mov_b64 exec, {pr(sBM)}")
    e(f"ds_write_b64 v{vX+1}, v[{vMC}:{vMC+1}] offset:{L_STBML}")
e("s_waitcnt lgkmcnt(0)")
e(f"ds_write_b32 v{vX+2}, v{vX+3} offset:{L_FB}")
prof(7)
dump_prof()
if cfg.STAMPS and cfg.MIDST:
    e(f"s_cmp_lg_u32 s{sWAVE}, 0")
    e("s_cbranch_scc1 A_end")
    dump_stamps()
lab("A_end")
e("s_endpgm")

if DH:
    ADD[0] = cfg.HADD
    body("H", False, half=True)
    ADD[0] = 0
    tags.append("H")
lab("A_last")
prof(5)
ADD[0] = cfg.LADD
v_load1(2, cfg.NOUT)
xreduce("v_add_f32", vL, dst=vMA+1)
e(f"v_mov_b32 v{vMA}, v{vMC}")
e(f"s_lshl_b32 s{sT0}, s{sWAVE}, 6")
e(f"v_lshl_add_u32 v{vX}, v{vLANE}, 3, s{sT0}")
e("s_mov_b64 exec, 0xff")
e(f"ds_write_b64 v{vX}, v[{vMA}:{vMA+1}] offset:{L_STGML}")
e("s_mov_b64 exec, -1")
for i in range(6):
    for r in range(4):
        e(f"v_mov_b32_dpp v{vO+8*i+r}, v{vO+8*i+4+r} row_ror:8 row_mask:0xf bank_mask:0xc")
    e(f"ds_write_b128 v{vPO}, v[{vO+8*i}:{vO+8*i+3}] offset:{L_STG + 128*i}")
e(f"s_lshl_b32 s{sT0}, s{sWAVE}, 2")
e(f"v_mov_b32 v{vX}, s{sT0}")
e(f"v_mov_b32 v{vX+1}, 1")
e("s_waitcnt lgkmcnt(0)")
e(f"ds_write_b32 v{vX}, v{vX+1} offset:{L_FA}")
for k in range(3, 8): v_load1(k, cfg.NOUT)
ADD[0] = 0
e("s_branch A_cont")

for tag in tags:
    lab(f"A_slow{tag}")
    xreduce("v_max_f32", vMX)
    e(f"v_max_f32 v{vM}, v{vM}, v{vMX}")
    e(f"v_mul_f32 v{vA}, s{sC2}, v{vM}")
    e(f"v_sub_f32 v{vB}, v{vMC}, v{vA}")
    e(f"v_exp_f32 v{vB}, v{vB}")
    e(f"v_mov_b32 v{vMC}, v{vA}")
    e(f"v_mul_f32 v{vL}, v{vL}, v{vB}")
    for i in range(24):
        e(f"v_pk_mul_f32 v[{vO+2*i}:{vO+2*i+1}], v[{vO+2*i}:{vO+2*i+1}], v[{vB}:{vB+1}] op_sel_hi:[1,0]")
    e(f"s_branch A_back{tag}")

lab("A_dyn")
e(f"s_cmp_ge_u32 s{sT0}, s{sCNTA}")
e("s_cbranch_scc1 A_phb")
e(f"s_cmp_lg_u32 s{sLF}, 0")
e("s_cbranch_scc1 A_dyn2")
e(f"s_mov_b32 s{sLF}, 1")
e(f"v_mov_b32 v{vA}, 0")
e("s_barrier")
e(f"ds_read_b32 v{vA}, v{vA} offset:{L_N}")
e(f"s_lshl_b32 s{sT1}, s{sB0}, 2")
e(f"s_add_u32 s{sT1}, s{sT1}, s{sWAVE}")
e(f"s_sub_u32 s{sT1}, s{sT1}, {32*KP}")
e(f"v_lshlrev_b32 v{vB}, 5, v{vLANE}")
e(f"v_add_lshl_u32 v{vB}, v{vB}, s{sT1}, 2")
e(f"v_min_u32 v{vB}, 8188, v{vB}")
e(f"ds_read_b32 v{vLIST}, v{vB}")
e("s_waitcnt lgkmcnt(0)")
e(f"v_readfirstlane_b32 s{sN}, v{vA}")
e(f"v_readlane_b32 s{sREC}, v{vLIST}, s{sT0}")
e("s_nop 0")
e(f"s_mul_i32 s{sT1}, s{sN}, {cfg.F}")
e(f"s_lshr_b32 s{sT1}, s{sT1}, 10")
e(f"s_lshl_b32 s{sP0}, s{sT1}, 5")
e(f"s_add_u32 s{sDS}, s{sT1}, {KP}")
if cfg.HALVES:
    e(f"s_sub_i32 s{sH0}, s{sN}, {cfg.HALVES}")
    e(f"s_max_i32 s{sH0}, s{sH0}, s{sP0}")
e(f"s_add_u32 s{sT1}, s{sT0}, 1")
e(f"s_cmp_lt_u32 s{sT1}, s{sDS}")
e("s_cbranch_scc1 A_rec")
if cfg.WT:
    e(f"s_cmp_lg_u32 s{sT0}, s{sDS}")
    e("s_cbranch_scc1 A_dyn2")
    started_check()
    e(f"s_mov_b32 s{sTK}, 1")
    e(f"s_atomic_add s{sTK}, {pr(sTKB)}, 0 glc")
    lab("A_dyn2")
    e(f"s_cmp_lt_u32 s{sT0}, s{sDS}")
    e(f"s_cbranch_scc1 A_first")
    e("s_waitcnt lgkmcnt(0)")
    e(f"s_add_u32 s{sT2}, s{sTK}, s{sP0}")
    if cfg.HALVES:
        e(f"s_mov_b32 s{sHF}, 0")
        e(f"s_cmp_lt_u32 s{sT2}, s{sH0}")
        e("s_cbranch_scc1 A_full")
        e(f"s_sub_u32 s{sT1}, s{sT2}, s{sH0}")
        e(f"s_and_b32 s{sHF}, s{sT1}, 1")
        e(f"s_add_u32 s{sHF}, s{sHF}, 1")
        e(f"s_lshl_b32 s{sHF}, s{sHF}, 14")
        e(f"s_lshr_b32 s{sT1}, s{sT1}, 1")
        e(f"s_add_u32 s{sT2}, s{sT1}, s{sH0}")
        lab("A_full")
    e(f"s_cmp_ge_u32 s{sT2}, s{sN}")
    e(f"s_cbranch_scc1 A_fini")
    e(f"s_lshl_b32 s{sT2}, s{sT2}, 2")
    e(f"v_mov_b32 v{vB}, s{sT2}")
    e(f"ds_read_b32 v{vB}, v{vB}")
    e("s_waitcnt lgkmcnt(0)")
    e(f"v_readfirstlane_b32 s{sREC}, v{vB}")
    if cfg.HALVES:
        e(f"s_mov_b32 s{sTK}, 1")
        e(f"s_atomic_add s{sTK}, {pr(sTKB)}, 0 glc")
        e(f"s_or_b32 s{sREC}, s{sREC}, s{sHF}")
        e(f"s_cmp_lg_u32 s{sHF}, 0")
        e("s_cbranch_scc1 A_recH")
        e("s_branch A_rec")
    lab(f"A_iss")
    e(f"s_mov_b32 s{sTK}, 1")
    e(f"s_atomic_add s{sTK}, {pr(sTKB)}, 0 glc")
    e(f"s_branch A_rec")
    lab(f"A_first")
    started_check()
    e(f"s_branch A_iss")
else:
    e(f"s_cmp_lg_u32 s{sT0}, s{sDS}")
    e("s_cbranch_scc1 A_dyn2")
    e(f"s_cmp_lg_u32 s{sWAVE}, 0")
    e("s_cbranch_scc1 A_dyn2")
    started_check()
    e(f"s_mov_b32 s{sTK}, 1")
    e(f"s_atomic_add s{sTK}, {pr(sTKB)}, 0 glc")
    lab("A_dyn2")
    e(f"s_sub_u32 s{sT1}, s{sT0}, s{sDS}")
    e(f"s_lshl_b32 s{sT2}, s{sT1}, 2")
    e(f"v_mov_b32 v{vA}, s{sT2}")
    e(f"s_cmp_lg_u32 s{sWAVE}, 0")
    e(f"s_cbranch_scc1 A_oth")
    e(f"s_cmp_lt_i32 s{sT1}, 0")
    e(f"s_cbranch_scc1 A_first")
    e("s_waitcnt lgkmcnt(0)")
    e(f"s_lshl_b32 s{sT2}, s{sTK}, 2")
    e(f"s_add_u32 s{sT2}, s{sT2}, s{sP0}")
    e(f"s_cmp_lt_u32 s{sT2}, s{sN}")
    e(f"s_cselect_b32 s{sT2}, s{sT2}, {DONE}")
    e(f"v_mov_b32 v{vB}, s{sT2}")
    e(f"ds_write_b32 v{vA}, v{vB} offset:{L_SLOT}")
    e(f"s_cbranch_scc0 A_fini")
    e(f"s_lshl_b32 s{sT2}, s{sT2}, 2")
    e(f"v_mov_b32 v{vB}, s{sT2}")
    e(f"ds_read_b32 v{vB}, v{vB}")
    e("s_waitcnt lgkmcnt(0)")
    e(f"v_readfirstlane_b32 s{sREC}, v{vB}")
    lab(f"A_iss")
    e(f"s_mov_b32 s{sTK}, 1")
    e(f"s_atomic_add s{sTK}, {pr(sTKB)}, 0 glc")
    e(f"s_branch A_rec")
    lab(f"A_first")
    started_check()
    e(f"s_branch A_iss")
    lab(f"A_oth")
    e(f"s_cmp_lt_i32 s{sT1}, 0")
    e(f"s_cbranch_scc1 A_rec")
    lab(f"A_poll")
    e(f"ds_read_b32 v{vB}, v{vA} offset:{L_SLOT}")
    e("s_waitcnt lgkmcnt(0)")
    e(f"v_readfirstlane_b32 s{sT2}, v{vB}")
    e("s_nop 1")
    e(f"s_cmp_eq_u32 s{sT2}, {EMPTY}")
    e(f"s_cbranch_scc1 A_poll")
    e(f"s_cmp_eq_u32 s{sT2}, {DONE}")
    e(f"s_cbranch_scc1 A_fini")
    e(f"s_add_u32 s{sT2}, s{sT2}, s{sWAVE}")
    e(f"s_lshl_b32 s{sT1}, s{sT2}, 2")
    e(f"s_cmp_lt_u32 s{sT2}, s{sN}")
    e(f"s_cselect_b32 s{sT1}, s{sT1}, {L_Z}")
    e(f"v_mov_b32 v{vB}, s{sT1}")
    e(f"ds_read_b32 v{vB}, v{vB}")
    e("s_waitcnt lgkmcnt(0)")
    e(f"v_readfirstlane_b32 s{sREC}, v{vB}")
    e("s_nop 1")
    e(f"s_branch A_rec")
lab(f"A_fini")
e(f"s_mov_b32 s{sCNTA}, s{sT0}")
if NS:
    e(f"s_mov_b32 s{sREC}, s{sPW+KP}")
    e(f"s_branch A_rec")
    lab("A_phb")
    e(f"v_mov_b32 v{vA}, 0")
    e(f"v_mov_b32 v{vB}, 1")
    e("s_mov_b64 exec, 1")
    e(f"ds_add_rtn_u32 v{vB}, v{vA}, v{vB} offset:{L_PB}")
    e("s_mov_b64 exec, -1")
    e("s_waitcnt lgkmcnt(0)")
    e(f"v_readfirstlane_b32 s{sT1}, v{vB}")
    e("s_nop 1")
    e(f"s_min_u32 s{sT1}, s{sT1}, 63")
    e(f"v_readlane_b32 s{sREC}, v{vLB}, s{sT1}")
    e(f"s_mov_b32 s{sCNT}, s{sI}")
    e("s_nop 0")
    e(f"s_cmp_eq_u32 s{sREC}, 0")
    e("s_cbranch_scc1 A_phb")
    e(f"s_cmp_eq_u32 s{sREC}, -1")
    e("s_cbranch_scc1 A_recZ")
    if HB:
        e(f"s_and_b32 s{sT1}, s{sREC}, 0xc000")
        e("s_cbranch_scc1 A_recH")
    e(f"s_branch A_rec")
else:
    e(f"s_add_u32 s{sCNT}, s{sT0}, {KB-1}")
    lab("A_phb")
    e(f"s_sub_u32 s{sT1}, s{sT0}, s{sCNTA}")
    e(f"v_readlane_b32 s{sREC}, v{vLB}, s{sT1}")
    e("s_nop 1")
    e(f"s_branch A_rec")

pT, pM = 48, 56
pJ, pJX, pA, pB, pCNT, pJ4 = 64, 65, 66, 67, 68, 69
SRDO = 20
hA, hB, hP = 12, 13, 8
inhelper[0] = True
lab("P_start")
if cfg.PPRIO: e(f"s_setprio {cfg.PPRIO}")
if cfg.CODEPF:
    e("s_getpc_b64 s[40:41]")
    lab("P_pc")
    e(f"s_sub_u32 s40, s40, P_pc-{NAME}_kernel")
    e("s_subb_u32 s41, s41, 0")
    e(f"v_subrev_u32 v70, 256, v0")
    e(f"v_lshlrev_b32 v70, 6, v70")
    e(f"v_min_u32 v70, K_end-{NAME}_kernel-4, v70")
    e("global_load_dword v71, v70, s[40:41]")
e(f"v_subrev_u32 v{pJ}, 256, v0")
e(f"v_lshlrev_b32 v{pJ4}, 2, v{pJ}")
e(f"v_mov_b32 v{pA}, {EMPTY}")
e(f"v_mov_b32 v{pCNT}, 0")
for i in range(0 if cfg.WT else 3):
    e(f"ds_write_b32 v{pJ4}, v{pA} offset:{L_SLOT + 1024*i}")
e(f"ds_write_b32 v{pJ4}, v{pCNT} offset:{L_CNT}")
e("s_waitcnt lgkmcnt(0)")
e("s_load_dwordx16 s[4:19], s[0:1], 0")
e("s_barrier")
e(f"v_add_u32 v{pB}, 4096, v{pJ4}")
e(f"v_lshlrev_b32 v{pJX}, 16, v{pJ}")
e(f"s_sub_u32 s{sI}, s{sWAVE}, 4")
hFL, hBIG = 6, 84
hsO, hsT = 84, 85
e(f"v_lshlrev_b32 v{hFL}, 4, v{vLANE}")
e(f"v_mov_b32 v{hBIG}, 0x40000000")
e(f"v_cmp_gt_u32 vcc, 49, v{vLANE}")
e(f"s_lshl_b32 s{sT0}, s{sHEAD}, 3")
e(f"s_lshl_b32 s{sT1}, s{sI}, 1")
e(f"v_cndmask_b32 v{hFL}, v{hBIG}, v{hFL}, vcc")
e(f"s_add_u32 s{sT0}, s{sT0}, s{sT1}")
e(f"s_lshl_b32 s{sT0}, s{sT0}, 3")
e(f"s_add_u32 s{sT0}, s{sT0}, s{sB0}")
e(f"s_mul_i32 s{sDS}, s{sT0}, {RW}")
e(f"s_add_u32 s{sCNT}, s{sDS}, {8*RW}")
e(f"s_cmp_eq_u32 s{sT1}, s{sB0}")
e(f"s_cselect_b32 s{sDS}, 0x{OOB:x}, s{sDS}")
e(f"s_add_u32 s{sT1}, s{sT1}, 1")
e(f"s_cmp_eq_u32 s{sT1}, s{sB0}")
e(f"s_cselect_b32 s{sCNT}, 0x{OOB:x}, s{sCNT}")
for i in range(4): e(f"v_mov_b32 v{hP+i}, -1")
e(f"s_lshl_b32 s{sTK}, s{sHEAD}, 12")
e(f"s_add_u32 s{sTK}, s{sTK}, {TK_OFF}")
e(f"s_or_b32 s{sT0}, s{sB0}, s{sI}")
e(f"s_cmp_eq_u32 s{sT0}, 0")
e(f"s_cselect_b32 s{sTK}, s{sTK}, 0x{OOB:x}")
e(f"v_mov_b32 v{hA}, 0")
e(f"s_mov_b32 s{SRDW+2}, {WS_USED}")
e(f"s_mov_b32 s{SRDW+3}, 0x20000")
e(f"s_lshl_b32 s{sT2}, s{sHEAD}, 3")
for b in range(8):
    e(f"v_mov_b32 v{pM+b}, 0")
for b in range(1, 8):
    e(f"s_mov_b64 {pr(sNL+2*b)}, 0")
e("s_waitcnt lgkmcnt(0)")
e(f"s_load_dwordx8 s[{sC}:{sC+7}], {pr(sCTX)}, 0")
for b in range(8):
    e(f"global_load_dword v{pT+b}, v{pJ4 if b < 4 else pB}, {pr(sBT)} offset:{(b & 3)*1024}")
e(f"s_mov_b32 s{SRDW}, s{sWS}")
e(f"s_and_b32 s{SRDW+1}, s{sWS+1}, 0xffff")
e(f"buffer_store_dwordx4 v[{hP}:{hP+3}], v{hFL}, s[{SRDW}:{SRDW+3}], s{sDS} offen sc1")
e(f"buffer_store_dwordx4 v[{hP}:{hP+3}], v{hFL}, s[{SRDW}:{SRDW+3}], s{sCNT} offen sc1")
e(f"buffer_store_dword v{hA}, v{hA}, s[{SRDW}:{SRDW+3}], s{sTK} offen sc1")
e(f"s_add_u32 s{sDBG}, s{sDBG}, s{sT2}")
e(f"s_addc_u32 s{sDBG+1}, s{sDBG+1}, 0")
NPF = 0
if cfg.TLBPF:
    sh = cfg.TLBPF
    NPF = max(1, (KV_BYTES >> sh) // 128 + 1)
    e(f"s_bitcmp1_b32 s{sI}, 0")
    e(f"s_cselect_b32 s24, s{sV}, s{sK}")
    e(f"s_cselect_b32 s25, s{sV+1}, s{sK+1}")
    e(f"s_and_b32 s25, s25, 0xffff")
    e(f"s_mov_b32 s26, {KV_BYTES}")
    e(f"s_mov_b32 s27, 0x20000")
    e(f"s_lshr_b32 s{sT0}, s{sI}, 1")
    e(f"s_lshl_b32 s{sT0}, s{sT0}, {sh+6}")
    e(f"v_lshlrev_b32 v72, {sh}, v{vLANE}")
    for i in range(NPF):
        e(f"buffer_load_dword v73, v72, s[24:27], s{sT0} offen")
        if i+1 < NPF: e(f"s_add_u32 s{sT0}, s{sT0}, {128 << sh}")
e("s_waitcnt lgkmcnt(0)")
for b in range(8):
    nblocks(sC+b)
    e(f"s_sub_u32 s{sC+b}, s{sC+b}, {4*KW+NS}")
for b in range(8):
    e(f"v_cmp_gt_i32_e64 {pr(sVAL+2*b)}, s{sC+b}, v{pJ}")
e(f"s_waitcnt vmcnt({3+NPF})")
for b in range(8):
    e(f"v_cndmask_b32_e64 v{pT+b}, {-(b+1)}, v{pT+b}, {pr(sVAL+2*b)}")
for b in range(7):
    hi = list(range(7, b, -1))
    for k, b2 in enumerate(hi):
        e(f"v_cmp_eq_u32_e64 {pr(sEQ+2*k)}, v{pT+b}, v{pT+b2}")
    if len(hi) < 3: e(f"s_nop {2-len(hi)}")
    for k, b2 in enumerate(hi):
        e(f"v_addc_co_u32_e64 v{pM+b}, vcc, v{pM+b}, v{pM+b}, {pr(sEQ+2*k)}")
    for k, b2 in enumerate(hi):
        e(f"s_or_b64 {pr(sNL+2*b2)}, {pr(sNL+2*b2)}, {pr(sEQ+2*k)}")
e(f"v_mov_b32 v{pCNT}, 0")
for b in range(8):
    if b: e(f"s_andn2_b64 {pr(sVAL+2*b)}, {pr(sVAL+2*b)}, {pr(sNL+2*b)}")
    e(f"s_bcnt1_i32_b64 s{sT0}, {pr(sVAL+2*b)}")
    e(f"s_or_b32 s{sT0}, s{sT0}, 0x10000")
    e(f"v_writelane_b32 v{pCNT}, s{sT0}, {b}")
e(f"s_lshl_b32 s{sT0}, s{sI}, 2")
e(f"s_add_u32 s{sT0}, s{sT0}, {L_CNT}")
e(f"v_lshl_add_u32 v{pA}, v{vLANE}, 4, s{sT0}")
e(f"s_mov_b64 exec, 0xff")
e(f"ds_write_b32 v{pA}, v{pCNT}")
e(f"s_mov_b64 exec, -1")
for b in range(8):
    e(f"v_lshl_or_b32 v{pM+b}, v{pM+b}, 1, 1")
    e(f"v_lshlrev_b32 v{pM+b}, {24+b}, v{pM+b}")
    e(f"v_or3_b32 v{pT+b}, v{pT+b}, v{pJX}, v{pM+b}")
    e(f"v_mbcnt_lo_u32_b32 v{pM+b}, s{sVAL+2*b}, 0")
    e(f"v_mbcnt_hi_u32_b32 v{pM+b}, s{sVAL+2*b+1}, v{pM+b}")
e(f"v_and_b32 v{pA}, 31, v{vLANE}")
e(f"v_lshlrev_b32 v{pA}, 2, v{pA}")
lab("P_cw")
e(f"ds_read_b32 v{pCNT}, v{pA} offset:{L_CNT}")
e("s_waitcnt lgkmcnt(0)")
e(f"v_cmp_eq_u32 vcc, 0, v{pCNT}")
e("s_cbranch_vccnz P_cw")
e(f"v_and_b32 v{pCNT}, 0xffff, v{pCNT}")
e(f"v_mov_b32 v{pB}, v{pCNT}")
for sh in (1, 2, 4, 8):
    e("s_nop 1")
    e(f"v_add_u32_dpp v{pB}, v{pB}, v{pB} row_shr:{sh} row_mask:0xf bank_mask:0xf bound_ctrl:0")
e("s_nop 1")
e(f"v_add_u32_dpp v{pB}, v{pB}, v{pB} row_bcast:15 row_mask:0xa bank_mask:0xf")
e("s_nop 1")
e(f"v_readlane_b32 s{sN}, v{pB}, 31")
e(f"v_sub_u32 v{pB}, v{pB}, v{pCNT}")
e(f"s_mov_b32 s{sT1}, s{sI}")
for b in range(8):
    e(f"v_readlane_b32 s{sEQ+b}, v{pB}, s{sT1}")
    e(f"s_add_u32 s{sT1}, s{sT1}, 4")
e(f"v_mov_b32 v{pA}, 0")
e(f"v_mov_b32 v{pCNT}, s{sN}")
e(f"ds_write_b32 v{pA}, v{pCNT} offset:{L_N}")
for b in range(8):
    e(f"v_add_lshl_u32 v{pM+b}, v{pM+b}, s{sEQ+b}, 2")
for b in range(8):
    e(f"s_mov_b64 exec, {pr(sVAL+2*b)}")
    e(f"ds_write_b32 v{pM+b}, v{pT+b}")
e(f"s_mov_b64 exec, -1")
prof(1)
e("s_waitcnt vmcnt(0) lgkmcnt(0)")
e("s_barrier")

hL16, hM, hW, hMA = 5, 10, 11, 7
hO0, hO1, hO2, hO3 = 14, 15, 16, 17
hZ, hLA, hACC = 18, 19, 20
hQ = 24
hD = 40
hR = 72
hSA = 81
hsP, hsO, hsT = 32, 34, 35
hsML = 40
e(f"v_lshlrev_b32 v{hL16}, 4, v{vLANE}")
e(f"v_and_b32 v{hM}, 3, v{vLANE}")
e(f"v_lshlrev_b32 v{hM}, 2, v{hM}")
e(f"v_min_u32 v{hL16}, 752, v{hL16}")
e(f"s_mul_i32 s{sT0}, s{sI}, {2*RS}")
e(f"v_add_u32 v{hSA}, s{sT0}, v{hL16}")
e(f"s_lshl_b32 s{sT0}, s{sI}, 4")
e(f"v_mov_b32 v{hW}, s{sT0}")
e(f"v_cmp_eq_u32_e64 {pr(36)}, 48, v{vLANE}")
e(f"s_cmp_lg_u32 s{sI}, 0")
e("s_cbranch_scc1 H_wa0")
e(f"s_mov_b32 s{sT2}, 1")
e(f"s_mov_b32 s{sSPIN}, 0")
lab("H_chk")
e(f"s_mov_b32 s{sT1}, s{sT2}")
e(f"s_atomic_add s{sT2}, {pr(sDBG)}, 0 glc")
e(f"s_add_u32 s{sSPIN}, s{sSPIN}, 1")
e("s_waitcnt lgkmcnt(0)")
e(f"s_add_u32 s{sT1}, s{sT1}, s{sT2}")
e(f"s_mov_b32 s{sT2}, 0")
e(f"s_cmp_ge_u32 s{sT1}, 8")
e(f"s_cbranch_scc1 H_chkok")
e(f"s_cmp_ge_u32 s{sSPIN}, {SPIN_MAX >> 1}")
e(f"s_cbranch_scc1 H_chkok")
e("s_sleep 32")
e(f"s_branch H_chk")
lab("H_chkok")
e(f"v_mov_b32 v{hA}, 0")
e(f"v_mov_b32 v{hB}, 1")
e(f"ds_write_b32 v{hA}, v{hB} offset:{L_OK}")
e(f"s_mov_b32 s{SRDO}, s{sOUT}")
e(f"s_and_b32 s{SRDO+1}, s{sOUT+1}, 0xffff")
e(f"s_mov_b32 s{SRDO+2}, 98304")
e(f"s_mov_b32 s{SRDO+3}, 0x20000")
e(f"v_cmp_gt_u32 vcc, 48, v{vLANE}")
e(f"v_lshrrev_b32 v{hB}, 2, v{vLANE}")
e(f"v_and_b32 v{hZ}, 3, v{vLANE}")
e(f"v_cndmask_b32_e64 v{hA}, v{hBIG}, 0, vcc")
e(f"v_lshl_add_u32 v{hO0}, v{hZ}, 5, v{hB}")
e(f"v_lshl_add_u32 v{hO1}, v{hZ}, 4, v{hB}")
e(f"v_add_u32 v{hO1}, 120, v{hO1}")
e(f"v_cmp_gt_u32 vcc, 8, v{hB}")
e(f"v_mov_b32 v{hO2}, 8")
e(f"v_mov_b32 v{hO3}, 16")
e(f"v_cndmask_b32 v{hO0}, v{hO1}, v{hO0}, vcc")
e(f"v_cndmask_b32 v{hO3}, v{hO2}, v{hO3}, vcc")
e(f"v_lshl_add_u32 v{hO0}, v{hO0}, 1, v{hA}")
e(f"v_add_u32 v{hO1}, v{hO0}, v{hO3}")
e(f"v_add_u32 v{hO2}, v{hO1}, v{hO3}")
e(f"v_add_u32 v{hO3}, v{hO2}, v{hO3}")
e(f"v_mov_b32 v{hZ}, 0")
lab("H_wa0")
if cfg.NOHELP: e("s_endpgm")
def lds_wait(name, off, sleep):
    e(f"s_mov_b32 s{sSPIN}, 0")
    lab(name)
    e(f"ds_read_b32 v{hB}, v{hM} offset:{off}")
    e(f"s_add_u32 s{sSPIN}, s{sSPIN}, 1")
    e("s_waitcnt lgkmcnt(0)")
    e(f"v_cmp_eq_u32 vcc, 0, v{hB}")
    e(f"s_cmp_ge_u32 s{sSPIN}, {1 << 26}")
    e(f"s_cbranch_scc1 {name}_ok")
    if sleep:
        e(f"s_cbranch_vccz {name}_ok")
        e(f"s_sleep {sleep}")
        e(f"s_branch {name}")
    else:
        e(f"s_cbranch_vccnz {name}")
    lab(f"{name}_ok")
lds_wait("H_wa", L_FA, cfg.HSLEEP)
prof(2)
for w in range(4):
    e(f"ds_read_b128 v[{hQ+4*w}:{hQ+4*w+3}], v{hW} offset:{L_STGML + 64*w}")
for c in range(2):
    for w in range(4):
        e(f"ds_read_b128 v[{hD+16*c+4*w}:{hD+16*c+4*w+3}], v{hSA} offset:{L_STG + WSZ*w + RS*c}")
e("s_waitcnt lgkmcnt(8)")
for c in range(2):
    m = [hQ+4*w+2*c for w in range(4)]
    M, L = hMA, hLA
    e(f"v_max3_f32 v{M}, v{m[0]}, v{m[1]}, v{m[2]}")
    e(f"v_max_f32 v{M}, v{M}, v{m[3]}")
    for w in range(4): e(f"v_sub_f32 v{m[w]}, v{m[w]}, v{M}")
    for w in range(4): e(f"v_exp_f32 v{m[w]}, v{m[w]}")
    e(f"v_mul_f32 v{L}, v{m[0]}, v{m[0]+1}")
    for w in range(1, 4): e(f"v_fmac_f32 v{L}, v{m[w]}, v{m[w]+1}")
    e(f"s_waitcnt lgkmcnt({4-4*c})")
    for i in range(4): e(f"v_mul_f32 v{hR+4*c+i}, v{m[0]}, v{hD+16*c+i}")
    for w in range(1, 4):
        for i in range(4): e(f"v_fmac_f32 v{hR+4*c+i}, v{m[w]}, v{hD+16*c+4*w+i}")
    e(f"v_cndmask_b32_e64 v{hR+4*c}, v{hR+4*c}, v{M}, {pr(36)}")
    e(f"v_cndmask_b32_e64 v{hR+4*c+1}, v{hR+4*c+1}, v{L}, {pr(36)}")
    for i in range(4): e(f"v_min_u32 v{hR+4*c+i}, -2, v{hR+4*c+i}")
    e(f"buffer_store_dwordx4 v[{hR+4*c}:{hR+4*c+3}], v{hFL}, s[{SRDW}:{SRDW+3}], s{sDS if c == 0 else sCNT} offen sc1")
e(f"s_cmp_eq_u32 s{sI}, 0")
e("s_cbranch_scc1 H_start")
e("s_endpgm")

lab("H_start")
prof(3)
e(f"s_mul_i32 s{hsO}, s2, {8*RW}")
e(f"s_lshl_b32 s{hsP}, 1, s{sB0}")
e(f"s_xor_b32 s{hsP}, s{hsP}, 0xff")
e(f"s_mov_b32 s{sSPIN}, 0")
for i in range(32): e(f"v_mov_b32 v{hD+i}, 0")
lab("H_poll")
for s_ in range(8):
    e(f"s_bitcmp1_b32 s{hsP}, {s_}")
    e(f"s_cbranch_scc0 H_sk{s_}")
    if s_*RW < 4096:
        e(f"buffer_load_dwordx4 v[{hD+4*s_}:{hD+4*s_+3}], v{hFL}, s[{SRDW}:{SRDW+3}], s{hsO} offen offset:{s_*RW} sc1")
    else:
        e(f"s_add_u32 s{hsT}, s{hsO}, {s_*RW}")
        e(f"buffer_load_dwordx4 v[{hD+4*s_}:{hD+4*s_+3}], v{hFL}, s[{SRDW}:{SRDW+3}], s{hsT} offen sc1")
    lab(f"H_sk{s_}")
e(f"s_add_u32 s{sSPIN}, s{sSPIN}, 1")
e(f"s_mov_b32 s{hsP}, 0")
e("s_waitcnt vmcnt(0)")
for s_ in range(8):
    e(f"v_max3_u32 v{hQ+s_}, v{hD+4*s_}, v{hD+4*s_+1}, v{hD+4*s_+2}")
for s_ in range(8):
    e(f"v_max_u32 v{hQ+s_}, v{hQ+s_}, v{hD+4*s_+3}")
for s_ in range(8):
    e(f"v_cmp_eq_u32_e64 {pr(hsML+2*s_)}, -1, v{hQ+s_}")
for s_ in range(8):
    e(f"s_cmp_lg_u64 {pr(hsML+2*s_)}, 0")
    e(f"s_cselect_b32 s{hsT}, {1 << s_}, 0")
    e(f"s_or_b32 s{hsP}, s{hsP}, s{hsT}")
e("s_cbranch_scc0 H_gath")
e(f"s_cmp_ge_u32 s{sSPIN}, {SPIN_MAX}")
if cfg.PSLEEP:
    e("s_cbranch_scc1 H_gath")
    e(f"s_sleep {cfg.PSLEEP}")
    e("s_branch H_poll")
else:
    e("s_cbranch_scc0 H_poll")
lab("H_gath")
prof(4)
for s_ in range(8):
    e(f"v_readlane_b32 s{hsML+2*s_}, v{hD+4*s_}, 48")
    e(f"v_readlane_b32 s{hsML+2*s_+1}, v{hD+4*s_+1}, 48")
for s_ in range(8):
    e(f"s_cmp_eq_u32 s{sB0}, {s_}")
    e(f"s_cselect_b32 s{hsML+2*s_}, 0x{NEG:08x}, s{hsML+2*s_}")
e(f"v_mov_b32 v{hMA}, s{hsML}")
for s_ in range(1, 8):
    e(f"v_max_f32 v{hMA}, s{hsML+2*s_}, v{hMA}")
for s_ in range(8):
    e(f"v_sub_f32 v{hQ+s_}, s{hsML+2*s_}, v{hMA}")
for s_ in range(8):
    e(f"v_exp_f32 v{hQ+s_}, v{hQ+s_}")
e(f"v_mul_f32 v{hLA}, s{hsML+1}, v{hQ}")
for s_ in range(1, 8):
    e(f"v_fmac_f32 v{hLA}, s{hsML+2*s_+1}, v{hQ+s_}")
for i in range(4): e(f"v_mul_f32 v{hACC+i}, v{hQ}, v{hD+i}")
for s_ in range(1, 8):
    for i in range(4): e(f"v_fmac_f32 v{hACC+i}, v{hQ+s_}, v{hD+4*s_+i}")
e(f"s_lshl_b32 s{sT0}, s{sB0}, 5")
e(f"s_add_u32 s{sT0}, s{sT0}, s{sHEAD}")
e(f"s_mul_i32 s{sT0}, s{sT0}, 384")
lds_wait("H_wb", L_FB, 0)
prof(5)
e(f"ds_read_b128 v[{hQ}:{hQ+3}], v{hZ} offset:{L_STBML}")
e(f"ds_read_b128 v[{hQ+4}:{hQ+7}], v{hZ} offset:{L_STBML+16}")
for w in range(4):
    e(f"ds_read_b128 v[{hD+4*w}:{hD+4*w+3}], v{hL16} offset:{L_STB + 768*w}")
e("s_waitcnt lgkmcnt(4)")
e(f"v_max3_f32 v{hW}, v{hQ}, v{hQ+2}, v{hMA}")
e(f"v_max3_f32 v{hW}, v{hQ+4}, v{hQ+6}, v{hW}")
e(f"v_sub_f32 v{hMA}, v{hMA}, v{hW}")
for w in range(4):
    e(f"v_sub_f32 v{hQ+2*w}, v{hQ+2*w}, v{hW}")
e(f"v_exp_f32 v{hMA}, v{hMA}")
for w in range(4):
    e(f"v_exp_f32 v{hQ+2*w}, v{hQ+2*w}")
e(f"v_mul_f32 v{hLA}, v{hLA}, v{hMA}")
for w in range(4):
    e(f"v_fmac_f32 v{hLA}, v{hQ+2*w}, v{hQ+2*w+1}")
for i in range(4):
    e(f"v_mul_f32 v{hACC+i}, v{hACC+i}, v{hMA}")
e(f"v_rcp_f32 v{hLA}, v{hLA}")
e("s_waitcnt lgkmcnt(0)")
for w in range(4):
    for i in range(4):
        e(f"v_fmac_f32 v{hACC+i}, v{hQ+2*w}, v{hD+4*w+i}")
for i in range(4):
    e(f"v_mul_f32 v{hACC+i}, v{hACC+i}, v{hLA}")
e(f"v_cvt_pk_bf16_f32 v{hA}, v{hACC}, v{hACC+1}")
e(f"v_cvt_pk_bf16_f32 v{hB}, v{hACC+2}, v{hACC+3}")
e(f"buffer_store_short v{hA}, v{hO0}, s[{SRDO}:{SRDO+3}], s{sT0} offen {cfg.OSC}")
e(f"buffer_store_short_d16_hi v{hA}, v{hO1}, s[{SRDO}:{SRDO+3}], s{sT0} offen {cfg.OSC}")
e(f"buffer_store_short v{hB}, v{hO2}, s[{SRDO}:{SRDO+3}], s{sT0} offen {cfg.OSC}")
e(f"buffer_store_short_d16_hi v{hB}, v{hO3}, s[{SRDO}:{SRDO+3}], s{sT0} offen {cfg.OSC}")
prof(6)
prof(7)
dump_prof()
if cfg.STAMPS and not cfg.MIDST:
    e("s_waitcnt vmcnt(0)")
    e(f"s_memrealtime {pr(sST+2)}")
    dump_stamps()
e("s_endpgm")
lab("K_end")

raw('.section .rodata,"a"')
raw(f""".p2align 6
.amdhsa_kernel {NAME}_kernel
  .amdhsa_next_free_vgpr {NFV}
  .amdhsa_next_free_sgpr 102
  .amdhsa_accum_offset {ACC}
  .amdhsa_group_segment_fixed_size 0
  .amdhsa_kernarg_size 64
  .amdhsa_user_sgpr_count 2
  .amdhsa_user_sgpr_kernarg_segment_ptr 1
  .amdhsa_system_sgpr_workgroup_id_x 1
.end_amdhsa_kernel""")
open(sys.argv[1], 'w').write("\n".join(out) + "\n")
print("LDS", LDS_BYTES, "NV", NV, "NFV", NFV)
```

```python
import sys, struct, math
NAME = "standalone__paged_block_table_kv_radixattention__sampling"
KV_BYTES = 1152*196608
def f2u(x): return struct.unpack('<I', struct.pack('<f', x))[0]
C2 = (192 ** -0.5) * math.log2(math.e)
NEG = f2u(-3e38)

class Cfg:
    KP = 2
    KB = 2
    STAMPS = False
    MIDST = False
    PROF = False
    F = 28
    HSLEEP = 4
    PPRIO = 3
    NOUT = 6
    NK = [7,7,7,6,6,6]
    NVL = [6,6,6,7,7,7,7,8]
    KSPLIT = 2
    NOHELP = 0
    CODEPF = 1
    TOK = 1
    BADD = 0
    LADD = 0
    PSLEEP = 0
    WT = 1
    TLBPF = 0
    NOCOMP = 0
    THR0 = 1
    VROW = 0
    HALVES = 0
    HADD = 4
    ZRE = 0
    ITER = 0
    VPOOL = 1
    KWARM = 0
    SPINTO = 0
    XLDS = 0
    XV = 0
    NS = 0
    HB = 0
    RT = 0
    OSC = ''
cfg = Cfg()
for a in sys.argv[2:]:
    k, v = a.split('=')
    assert hasattr(cfg, k), k
    setattr(cfg, k, eval(v))
KP, KB = cfg.KP, cfg.KB
NKL = cfg.NK if cfg.NK else [cfg.NOUT]*6
NVL = cfg.NVL if cfg.NVL else [cfg.NOUT]*8
if isinstance(NKL, int): NKL = [NKL]*6
if isinstance(NVL, int): NVL = [NVL]*8
NS, HB = cfg.NS, cfg.HB
if NS: KB = 1
KW = KP + KB
DH = cfg.HALVES or HB
TOFF = (0, 1, 8, 9) if cfg.TOK == 0 else (0, 4, 8, 12)
O_OFF = 0
RW = 896
TK_OFF = 256*8*RW
WS_USED = TK_OFF + 32*4096
SPIN_MAX = 1 << 17
OOB = 0xF0000000
EMPTY, DONE = -1, -2
RS, WSZ = 784, 8*784
L_CNT = 8192
L_N = 8320
L_FA = 8336
L_FB = 8352
L_OK = 8368
L_Z = 8384
L_SLOT = 9216
L_STB = 12288
L_STBML = L_STB + 4*768
L_STGML = L_STBML + 64
L_STG = L_STGML + 256
LDS_BYTES = max(L_STG + 4*WSZ, cfg.XLDS)

out = []
inbody = [False]
def e(s):
    if inbody[0] and cfg.NOCOMP and s.split()[0].startswith(("v_mfma", "v_perm", "v_add_f32", "v_cndmask", "v_max", "v_fma", "v_exp", "v_cvt", "v_cmp", "v_subrev", "s_cbranch_vccnz", "s_nop")): return
    out.append("    " + s)
def lab(s): out.append(s + ":")
def raw(s): out.append(s)
def pr(a): return f"s[{a}:{a+1}]"

hdr = open('cdna_kernels/%s.s.ref' % NAME).read().split('\n')
for l in hdr:
    if l.startswith('; Override') or l.startswith('; grid=') or l.startswith('; @launch'): continue
    if not l.startswith(';'): break
    raw(l)
raw(f"; @launch grid=(256,1,1) block=(512,1,1) lds={LDS_BYTES}")
raw('.amdgcn_target "amdgcn-amd-amdhsa--gfx950"')
raw(".text")
for l in """
Paged decode attention with shared-prefix (radix) de-duplication, one launch, HBM bound.

Workgroup = (head h = id>>3, sequence b0 = id&7), 8 waves: 4 workers + 4 planners.
 planners  build, in LDS, the list of distinct (position, physical block) entries of the block table together
           with the set of sequences that use each of them (record = block | position<<16 | sequence mask<<24);
           the newest blocks of every sequence stay out of the list (own window of its 32 workgroups).
 workers   each stream one 16-token block of head h at a time for all 8 queries (MFMA, masked per record) with an
           online softmax: own window (quick start) -> static share of the list (chip-wide sweep) -> per-head pool
           handed out by tickets -> state to LDS -> rest of the own window -> own column to LDS.
           Loads are non-temporal, cover whole 128-byte lines, and the number in flight per wave is bounded.
 planners  then merge the four workers' states and publish the 7 foreign columns as rows in d_ws; planner 0
           collects the 7 rows of the own (h, b0) pair while the own window still streams, merges and stores.
Hand-off:  rows are reset to an all-ones pattern at kernel start by their writer, a per-head counter in d_debug
           tells when all 8 writers of a head have done so; a row is taken once no dword holds the pattern.
""".strip("\n").split("\n"):
    raw("; " + l if l else ";")
raw(f".globl {NAME}_kernel\n.p2align 8\n.type {NAME}_kernel,@function")
lab(f"{NAME}_kernel")

sQ, sK, sV, sBT, sCTX, sOUT, sDBG, sWS = 4, 6, 8, 10, 12, 14, 16, 18
SRDK, SRDV, SRDW = 20, 24, 28
sWAVE, sHOFF, sB0, sN, sDS, sCNT, sI, sT0, sT1, sT2, sHEAD, sTK = 86, 87, 88, 89, 90, 91, 92, 93, 94, 95, 96, 97
sST = 98
sP0 = 3
sTKB = 6
sSPIN = 8
sREC, sLF, sCNTA = 32, 33, 34
sHF, sH0, sCUR = 44, 45, 46
PHM = 0x3fff if DH else 0xffff
sNBM = 47
L_PB = 8400
sJW, sPW = 36, 68
sMK = 48
sA = 50
sJ16 = 58
sTKO = 59
sO = 60
sC2, sSELLO, sSELHI = 64, 65, 66
sBM = 76
sC = 32
sVAL = 40
sNL = 56
sEQ = 72
vLANE, vC, vG = 1, 2, 3
vOK, vOV4, vOV2, vCTXM, vLIST, vM, vMC, vL, vNINF, vLIM, vMX, vA, vB, vPO = 4, 5, 6, 7, 8, 9, 10, 11, 12, 13, 14, 15, 42, 43
vQ = 16
vC1, vC2 = 28, 32
vS = 36
vP = 40
vX = 44
vO = 48
vT = 96
vMA, vLB, vSB = 120, 122, 123
vV = 124
vPL = 148
NV = 148 + (2 if cfg.VPOOL else 0) + (1 if cfg.PROF else 0)
vPROF = NV-1
ACC = (NV + 3)//4*4
NFV = max(ACC + 24, cfg.XV)

inhelper = [False]
def prof(n):
    if not cfg.PROF: return
    if cfg.RT and n in (1, 2, 3, 4) and not inhelper[0]: return
    e('s_memrealtime s[100:101]' if cfg.RT else 's_memtime s[100:101]')
    e('s_waitcnt lgkmcnt(0)')
    e(f'v_writelane_b32 v{vPROF}, s100, {n}')
ADD = [0]
def thr(n):
    if n: e(f"s_waitcnt vmcnt({n-1})")
def k_loads(lo=0, hi=6, t=0):
    for k in range(lo, hi):
        u, s = k // 3, k % 3
        r = u*12 + s*4
        thr(NKL[k] + ADD[0] if t else 0)
        e(f"buffer_load_dwordx4 a[{r}:{r+3}], v{vOK}, s[{SRDK}:{SRDK+3}], s{sO+2*u} offen offset:{128*s} nt")
def v_load1(k, t=0):
    i = k // 2
    thr(NVL[k] + ADD[0] if t else 0)
    if k % 2 == 0:
        r = vV + i*4
        e(f"buffer_load_dwordx4 v[{r}:{r+3}], v{vOV4}, s[{SRDV}:{SRDV+3}], s{sO+i} offen nt")
    else:
        r = vV + 16 + i*2
        e(f"buffer_load_dwordx2 v[{r}:{r+1}], v{vOV2}, s[{SRDV}:{SRDV+3}], s{sO+i} offen offset:256 nt")
def soffs():
    for i in range(1, 4):
        e(f"s_add_u32 s{sO+i}, s{sO}, {TOFF[i]*12288}")
def xreduce(op, reg, dst=None):
    for sw in ("v_permlane32_swap_b32", "v_permlane16_swap_b32"):
        e(f"v_mov_b32 v{vA}, v{reg}")
        e(f"v_mov_b32 v{vB}, v{reg}")
        e("s_nop 1")
        e(f"{sw} v{vA}, v{vB}")
        e("s_nop 1")
        if dst is not None: reg = dst
        e(f"{op} v{reg}, v{vA}, v{vB}")
def nblocks(r):
    e(f"s_cmp_lt_i32 s{r}, 1")
    e(f"s_cselect_b32 s{r}, 0x1000, s{r}")
    e(f"s_min_i32 s{r}, s{r}, 0x1000")
    e(f"s_add_u32 s{r}, s{r}, 15")
    e(f"s_lshr_b32 s{r}, s{r}, 4")
chk_n = [0]
def started_check():
    n = chk_n[0]; chk_n[0] += 1
    e(f"v_mov_b32 v{vB}, 0")
    lab(f"A_chk{n}")
    e(f"ds_read_b32 v{vLIM}, v{vB} offset:{L_OK}")
    e("s_waitcnt lgkmcnt(0)")
    e(f"v_cmp_eq_u32 vcc, 0, v{vLIM}")
    e(f"s_cbranch_vccnz A_chk{n}")
def dump_prof():
    if cfg.PROF:
        e("s_mov_b64 exec, -1")
        e(f"v_writelane_b32 v{vPROF}, s{sCNT}, 63")
        e(f"s_mul_i32 s{sT0}, s2, 5")
        e(f"s_add_u32 s{sT0}, s{sT0}, s{sWAVE}")
        e(f"s_lshl_b32 s{sT0}, s{sT0}, 8")
        e(f"s_add_u32 s{sT0}, s{sT0}, 0x2000000")
        e(f"v_lshl_add_u32 v{vX}, v{vLANE}, 2, s{sT0}")
        e(f"global_store_dword v{vX}, v{vPROF}, {pr(sWS)}")
def dump_stamps():
    e("s_mov_b64 exec, -1")
    e("s_waitcnt lgkmcnt(0)")
    e(f"s_add_u32 s{sWS}, s{sWS}, 0x20000000")
    e(f"s_addc_u32 s{sWS+1}, s{sWS+1}, 0")
    e(f"s_lshl_b32 s{sT0}, s2, 4")
    e(f"v_mov_b32 v{vX}, s{sT0}")
    for i in range(4): e(f"v_mov_b32 v{vS+i}, s{sST+i}")
    e("s_mov_b64 exec, 1")
    e(f"global_store_dwordx4 v{vX}, v[{vS}:{vS+3}], {pr(sWS)}")

e("s_cmp_ge_u32 s2, 256")
e("s_cbranch_scc1 A_end")
if cfg.STAMPS or cfg.SPINTO: e(f"s_memrealtime {pr(sST)}")
prof(0)
if cfg.CODEPF == 2:
    e("s_getpc_b64 s[40:41]")
    lab("E_pc")
    e(f"v_lshlrev_b32 v116, 5, v0")
    e(f"v_min_u32 v116, K_end-E_pc-4, v116")
    e("global_load_dword v117, v116, s[40:41]")
e(f"v_lshrrev_b32 v{vA}, 6, v0")
e(f"v_and_b32 v{vLANE}, 63, v0")
e(f"v_readfirstlane_b32 s{sWAVE}, v{vA}")
e(f"s_lshr_b32 s{sHEAD}, s2, 3")
e(f"s_and_b32 s{sB0}, s2, 7")
e(f"s_cmp_ge_u32 s{sWAVE}, 4")
e("s_cbranch_scc1 P_start")
e("s_load_dwordx16 s[4:19], s[0:1], 0")
e(f"v_and_b32 v{vC}, 15, v0")
e(f"v_lshrrev_b32 v{vG}, 4, v{vLANE}")
e(f"s_lshl_b32 s{sTKO}, s{sHEAD}, 12")
e(f"s_add_u32 s{sTKO}, s{sTKO}, {TK_OFF}")
e(f"s_mul_i32 s{sHOFF}, s{sHEAD}, 384")
e(f"s_lshl_b32 s{sT2}, s{sB0}, 2")
e(f"s_lshl_b32 s{sT0}, s{sB0}, 10")
if cfg.TOK == 0:
    e(f"v_lshrrev_b32 v{vOK}, 1, v{vC}")
else:
    e(f"v_and_b32 v{vOK}, 2, v{vC}")
    e(f"v_lshrrev_b32 v{vA}, 2, v{vC}")
    e(f"v_lshl_add_u32 v{vOK}, v{vOK}, 1, v{vA}")
e(f"v_mul_u32_u24 v{vOK}, 12288, v{vOK}")
e(f"v_lshl_add_u32 v{vOK}, v{vG}, 5, v{vOK}")
e(f"v_and_b32 v{vA}, 1, v{vC}")
e(f"v_lshl_add_u32 v{vOK}, v{vA}, 4, v{vOK}")
e(f"v_mul_u32_u24 v{vA}, {24576 if cfg.TOK == 0 else 12288}, v{vG}")
e(f"v_lshl_add_u32 v{vOV4}, v{vC}, 4, v{vA}")
e(f"v_lshl_add_u32 v{vOV2}, v{vC}, 3, v{vA}")
e(f"v_and_b32 v{vX}, 7, v{vC}")
e(f"v_mul_u32_u24 v{vX+1}, 12288, v{vX}")
e(f"v_lshl_add_u32 v{vX+1}, v{vG}, 5, v{vX+1}")
e(f"v_lshrrev_b32 v{vX+3}, 3, v{vC}")
e(f"v_lshl_add_u32 v{vX+1}, v{vX+3}, 4, v{vX+1}")
e(f"v_add_u32 v{vX+1}, s{sHOFF}, v{vX+1}")
e(f"s_mul_i32 s{sT1}, s{sWAVE}, {WSZ}")
e(f"v_mul_u32_u24 v{vPO}, {RS}, v{vX}")
e(f"v_lshl_add_u32 v{vPO}, v{vX+3}, 6, v{vPO}")
e(f"v_lshl_add_u32 v{vPO}, v{vG}, 4, v{vPO}")
e(f"v_add_u32 v{vPO}, s{sT1}, v{vPO}")
e(f"v_lshlrev_b32 v{vX}, 2, v{vX}")
e(f"v_lshl_add_u32 v{vT+4}, v{vLANE}, 4, s{sT0}")
if cfg.KWARM == 1:
    e(f"s_lshl_b32 s{sA+4}, s{sWAVE}, 8")
    e(f"s_add_u32 s{sA+4}, s{sA+4}, s{sT0}")
    for i in range(1, 4): e(f"s_add_u32 s{sA+4+i}, s{sA+4}, {64*i}")
for srd in (SRDK, SRDV):
    e(f"s_mov_b32 s{srd+2}, {KV_BYTES}")
    e(f"s_mov_b32 s{srd+3}, 0x20000")
e("s_barrier")
e("s_waitcnt lgkmcnt(0)")
prof(1)
e(f"s_load_dword s{sT1}, {pr(sCTX)}, s{sT2}")
if cfg.KWARM == 1:
    for i in range(4):
        e(f"s_load_dword s{sA+i}, {pr(sBT)}, s{sA+4+i}")
if cfg.KWARM == 2:
    e(f"s_add_u32 s{sA}, s{sBT}, s{sT0}")
    e(f"s_addc_u32 s{sA+1}, s{sBT+1}, 0")
    for i in range(16):
        e(f"s_load_dword s{68+i}, {pr(sA)}, {64*i}")
if cfg.VROW:
    e(f"global_load_dwordx4 v[{vT}:{vT+3}], v{vT+4}, {pr(sBT)}")
e(f"global_load_dword v{vCTXM}, v{vX}, {pr(sCTX)}")
for s in range(3):
    e(f"global_load_dwordx4 v[{vQ+4*s}:{vQ+4*s+3}], v{vX+1}, {pr(sQ)} offset:{128*s}")
for srd, base in ((SRDK, sK), (SRDV, sV)):
    e(f"s_mov_b32 s{srd}, s{base}")
    e(f"s_and_b32 s{srd+1}, s{base+1}, 0xffff")
e(f"s_add_u32 s{sTKB}, s{sWS}, s{sTKO}")
e(f"s_addc_u32 s{sTKB+1}, s{sWS+1}, 0")
e(f"s_mov_b32 s{sC2}, 0x{f2u(C2):08x}")
e(f"s_mov_b32 s{sSELLO}, 0x05040100")
e(f"s_mov_b32 s{sSELHI}, 0x07060302")
e(f"v_mov_b32 v{vM}, 0x{NEG:08x}")
e(f"v_mul_f32 v{vMC}, s{sC2}, v{vM}")
e(f"v_mov_b32 v{vL}, 0")
e(f"v_mov_b32 v{vNINF}, 0xff800000")
e(f"v_mov_b32 v{vLIST}, 0")
e(f"v_mov_b32 v{vLB}, 0")
for i in range(24):
    e(f"v_mov_b32 v{vO+i}, 0")
e("s_waitcnt lgkmcnt(0)")
prof(2)
nblocks(sT1)
if NS:
    e(f"s_sub_u32 s{sNBM}, s{sT1}, 1")
    e(f"s_sub_u32 s{sT1}, s{sT1}, {NS}")
e(f"s_sub_u32 s{sT1}, s{sT1}, s{sWAVE}")
kk_of = [KB + k for k in range(KP)] + list(range(KB))
if cfg.VROW:
    for k in range(KW):
        e(f"s_sub_u32 s{sJW+k}, s{sT1}, {1+4*kk_of[k]}")
    e(f"s_and_b32 s{sT2}, s{sJW}, 3")
    for c in range(1, 4):
        e(f"s_cmp_eq_u32 s{sT2}, {c}")
        e(f"s_cselect_b64 {pr(sA+2*c)}, -1, 0")
    e(f"s_lshr_b32 s{sT2}, s{sJW}, 2")
    e("s_waitcnt vmcnt(4)")
    for c in range(1, 4):
        e(f"v_cndmask_b32_e64 v{vT}, v{vT}, v{vT+c}, {pr(sA+2*c)}")
    e("s_nop 0")
    e(f"v_readlane_b32 s{sPW}, v{vT}, s{sT2}")
    e("s_nop 0")
else:
    for k in range(KW):
        e(f"s_sub_u32 s{sJW+k}, s{sT1}, {1+4*kk_of[k]}")
        e(f"s_max_i32 s{sT2}, s{sJW+k}, 0")
        e(f"s_lshl_b32 s{sT2}, s{sT2}, 2")
        e(f"s_add_u32 s{sT2}, s{sT2}, s{sT0}")
        e(f"s_load_dword s{sPW+k}, {pr(sBT)}, s{sT2}")
    e("s_waitcnt lgkmcnt(0)")
prof(3)
e(f"s_and_b32 s{sT1}, s{sPW}, 0xffff")
e(f"s_mul_i32 s{sT1}, s{sT1}, 196608")
e(f"s_add_u32 s{sT1}, s{sT1}, s{sHOFF}")
e(f"s_cmp_ge_i32 s{sJW}, 0")
e(f"s_cselect_b32 s{sO}, s{sT1}, 0x{OOB:x}")
soffs()
k_loads()
if not cfg.THR0:
    for k in range(8): v_load1(k)
prof(4)
if NS:
    assert cfg.THR0
    NF = NS - HB
    e(f"v_subrev_u32 v{vT}, {NF}, v{vLANE}")
    e(f"v_sub_u32 v{vT+1}, {NS-1}, v{vLANE}")
    e(f"v_ashrrev_i32 v{vT+2}, 1, v{vT}")
    e(f"v_sub_u32 v{vT+2}, {HB-1}, v{vT+2}")
    e(f"v_cmp_le_i32 vcc, 0, v{vT}")
    e(f"v_and_b32 v{vT}, 1, v{vT}")
    e(f"v_add_u32 v{vT}, 1, v{vT}")
    e(f"v_cndmask_b32 v{vT+1}, v{vT+1}, v{vT+2}, vcc")
    e(f"v_lshlrev_b32 v{vT}, 14, v{vT}")
    e(f"v_cndmask_b32 v{vT}, 0, v{vT}, vcc")
    e(f"v_sub_u32 v{vT+1}, s{sNBM}, v{vT+1}")
    e(f"v_max_i32 v{vT+2}, 0, v{vT+1}")
    e(f"v_min_i32 v{vT+2}, 0xff, v{vT+2}")
    e(f"v_lshl_add_u32 v{vT+2}, v{vT+2}, 2, s{sT0}")
    e(f"global_load_dword v{vT+3}, v{vT+2}, {pr(sBT)}")
if cfg.VROW:
    for k in range(1, KW):
        e(f"s_lshr_b32 s{sT2}, s{sJW+k}, 2")
        e(f"v_readlane_b32 s{sPW+k}, v{vT}, s{sT2}")
e(f"s_lshl_b32 s{sT0}, 0x1000000, s{sB0}")
for k in range(KW):
    dst = sREC if k == 0 else sPW+k
    e(f"s_and_b32 s{sT1}, s{sPW+k}, 0x{PHM:x}")
    e(f"s_lshl_b32 s{sT2}, s{sJW+k}, 16")
    e(f"s_or_b32 s{sT1}, s{sT1}, s{sT2}")
    e(f"s_or_b32 s{sT1}, s{sT1}, s{sT0}")
    e(f"s_cmp_ge_i32 s{sJW+k}, 0")
    e(f"s_cselect_b32 s{dst}, s{sT1}, 0")
    if 0 < k < KP: e(f"v_writelane_b32 v{vLIST}, s{dst}, {k}")
    if k >= KP and not NS: e(f"v_writelane_b32 v{vLB}, s{dst}, {k-KP}")
for i in range(24, 48):
    e(f"v_mov_b32 v{vO+i}, 0")
e(f"s_lshl_b32 s{sBM}, 0x10001, s{sB0}")
e(f"s_mov_b32 s{sBM+1}, s{sBM}")
e(f"s_mul_i32 s{sT1}, s{sWAVE}, 768")
e(f"v_lshl_add_u32 v{vSB}, v{vG}, 4, s{sT1}")
e(f"s_waitcnt vmcnt({(7 if NS else 6) if cfg.THR0 else 14})")
e(f"v_cmp_gt_i32 vcc, 1, v{vCTXM}")
e(f"v_mov_b32 v{vA}, 0x1000")
e(f"v_lshlrev_b32 v{vB}, {1 if cfg.TOK == 0 else 0}, v{vG}")
e(f"v_cndmask_b32 v{vCTXM}, v{vCTXM}, v{vA}, vcc")
for i in range(12):
    e(f"v_cndmask_b32_e64 v{vQ+i}, v{vQ+i}, 0, vcc")
e(f"v_sub_u32 v{vCTXM}, v{vCTXM}, v{vB}")
e(f"s_mov_b32 s{sI}, 0")
e(f"s_mov_b32 s{sLF}, 0")
e(f"s_mov_b32 s{sCNT}, 0x7fffffff")
e(f"s_mov_b32 s{sCNTA}, 0x7fffffff")
e(f"s_mov_b32 s{sDS}, {KP+1}")
if cfg.THR0:
    ADD[0] = cfg.THR0 - 1
    for k in range(8): v_load1(k, 1)
    ADD[0] = 0
if NS:
    e("s_waitcnt vmcnt(8)")
    e(f"v_and_b32 v{vT+3}, 0x{PHM:x}, v{vT+3}")
    e(f"v_lshl_or_b32 v{vT+3}, v{vT+1}, 16, v{vT+3}")
    e(f"v_cmp_le_i32 vcc, 0, v{vT+1}")
    e(f"v_or3_b32 v{vT+3}, v{vT+3}, v{vT}, s{sT0}")
    e("s_nop 0")
    e(f"v_cndmask_b32 v{vLB}, 0, v{vT+3}, vcc")
    e(f"v_cmp_gt_u32 vcc, {NS+HB}, v{vLANE}")
    e("s_nop 1")
    e(f"v_cndmask_b32 v{vLB}, -1, v{vLB}, vcc")

def perm(t):
    if t < 8:
        q_, hsel = t >> 1, t & 1
        regs = [vV + i*4 + q_ for i in range(4)]
    else:
        q_, hsel = (t-8) >> 1, t & 1
        regs = [vV + 16 + i*2 + q_ for i in range(4)]
    sel = sSELHI if hsel else sSELLO
    e(f"v_perm_b32 v{vT+2*t}, v{regs[1]}, v{regs[0]}, s{sel}")
    e(f"v_perm_b32 v{vT+2*t+1}, v{regs[3]}, v{regs[2]}, s{sel}")
def pv(t):
    e(f"v_mfma_f32_16x16x16_bf16 v[{vO+4*t}:{vO+4*t+3}], v[{vT+2*t}:{vT+2*t+1}], v[{vP}:{vP+1}], v[{vO+4*t}:{vO+4*t+3}]")
def body(tag, last, phb=False, half=False):
    N = cfg.NOUT
    hv = (cfg.HALVES and not phb and not last) or HB
    if NS and last: lab('A_recZ')
    if not half and not (NS and last):
        e(f"s_bfe_u32 s{sJ16}, s{sREC}, 0x80010")
        e(f"s_lshl_b32 s{sJ16}, s{sJ16}, 4")
        e(f"s_lshr_b32 s{sMK}, s{sREC}, 24")
        e(f"s_mul_i32 s{sMK}, s{sMK}, 0x10001")
        e(f"s_mov_b32 s{sMK+1}, s{sMK}")
        if hv:
            e(f"s_and_b32 s{sCUR}, s{sREC}, 0xc000")
            e(f"s_bfe_u32 s{sT1}, s{sREC}, 0x1000e")
            e(f"s_lshl_b32 s{sT1}, s{sT1}, 3")
            e(f"s_sub_u32 s{sJ16}, s{sJ16}, s{sT1}")
    if phb:
        e(f"s_sub_u32 s{sT1}, s{sI}, s{sCNTA}")
        e(f"s_add_u32 s{sT1}, s{sT1}, 1")
        e(f"v_readlane_b32 s{sREC}, v{vLB}, s{sT1}")
        e("s_nop 1")
    elif half:
        lab("A_recH")
    elif not last:
        e(f"s_add_u32 s{sT0}, s{sI}, 1")
        e(f"v_readlane_b32 s{sREC}, v{vLIST}, s{sT0}")
        e(f"s_add_u32 s{sT1}, s{sT0}, 1")
        e(f"s_cmp_ge_u32 s{sT1}, s{sDS}")
        e(f"s_cbranch_scc1 A_dyn")
        lab("A_rec")
    if not last:
        e(f"s_and_b32 s{sT1}, s{sREC}, 0x{PHM:x}")
        e(f"s_mul_i32 s{sT1}, s{sT1}, 196608")
        e(f"s_add_u32 s{sT1}, s{sT1}, s{sHOFF}")
        if half:
            e(f"s_bitcmp1_b32 s{sREC}, 15")
            e(f"s_cselect_b32 s{sT2}, {8*12288}, 0")
            e(f"s_add_u32 s{sO+2}, s{sT1}, s{sT2}")
            e(f"s_add_u32 s{sO+3}, s{sO+2}, {(TOFF[3]-TOFF[2])*12288}")
            e(f"s_mov_b32 s{sO}, 0x{OOB:x}")
            e(f"s_mov_b32 s{sO+1}, 0x{OOB:x}")
        else:
            e(f"s_cmp_lg_u32 s{sREC}, 0")
            e(f"s_cselect_b32 s{sO}, s{sT1}, 0x{OOB:x}")
            soffs()
    e(f"v_subrev_u32 v{vLIM}, s{sJ16}, v{vCTXM}")
    e(f"v_cndmask_b32_e64 v{vLIM}, 0, v{vLIM}, {pr(sMK)}")
    for i, o in enumerate(TOFF):
        e(f"v_cmp_lt_i32_e64 {pr(sA+2*i)}, {o}, v{vLIM}")
    if hv:
        e(f"s_cmp_lg_u32 s{sCUR}, 0")
        e(f"s_cselect_b64 {pr(sA)}, 0, {pr(sA)}")
        e(f"s_cselect_b64 {pr(sA+2)}, 0, {pr(sA+2)}")
    e(f"s_waitcnt vmcnt(8)")
    for s in range(3):
        for u, c in ((0, vC1), (1, vC2)):
            r = u*12 + s*4
            src = "0" if s == 0 else f"v[{c}:{c+3}]"
            e(f"v_mfma_f32_16x16x32_bf16 v[{c}:{c+3}], a[{r}:{r+3}], v[{vQ+4*s}:{vQ+4*s+3}], {src}")
    if not last: k_loads(0, cfg.KSPLIT, N)
    e(f"s_nop {8-(0 if last else cfg.KSPLIT)}")
    for i, (c, r) in enumerate(((vC1, 0), (vC1, 2), (vC2, 0), (vC2, 2))):
        e(f"v_add_f32_dpp v{vS+i}, v{c+r+1}, v{c+r} row_ror:8 row_mask:0xf bank_mask:0xf")
    for i in range(4):
        e(f"v_cndmask_b32_e64 v{vS+i}, v{vNINF}, v{vS+i}, {pr(sA+2*i)}")
    e(f"v_max3_f32 v{vMX}, v{vS}, v{vS+1}, v{vS+2}")
    e(f"v_max_f32 v{vMX}, v{vMX}, v{vS+3}")
    e(f"v_cmp_gt_f32 vcc, v{vMX}, v{vM}")
    e(f"s_cbranch_vccnz A_slow{tag}")
    lab(f"A_back{tag}")
    for i in range(4):
        e(f"v_fma_f32 v{vX+i}, v{vS+i}, s{sC2}, -v{vMC}")
    for i in range(4):
        e(f"v_exp_f32 v{vX+i}, v{vX+i}")
    if not last: k_loads(cfg.KSPLIT, 6, N)
    else: e("s_nop 0")
    e(f"v_cvt_pk_bf16_f32 v{vP}, v{vX}, v{vX+1}")
    e(f"v_cvt_pk_bf16_f32 v{vP+1}, v{vX+2}, v{vX+3}")
    e(f"v_add_f32 v{vX}, v{vX}, v{vX+1}")
    e(f"v_add_f32 v{vX+2}, v{vX+2}, v{vX+3}")
    e(f"v_add_f32 v{vL}, v{vL}, v{vX}")
    e(f"v_add_f32 v{vL}, v{vL}, v{vX+2}")
    if last:
        xreduce("v_add_f32", vL)
        e(f"s_lshl_b32 s{sT0}, s{sWAVE}, 3")
        e(f"v_mov_b32 v{vX+1}, s{sT0}")
        e(f"s_lshl_b32 s{sT0}, s{sWAVE}, 2")
        e(f"v_mov_b32 v{vX+2}, s{sT0}")
        e(f"v_mov_b32 v{vX+3}, 1")
        e(f"s_mov_b64 exec, {pr(sBM)}")
        e(f"ds_write_b64 v{vX+1}, v[{vMC}:{vMC+1}] offset:{L_STBML}")
        e("s_mov_b64 exec, -1")
        e(f"s_waitcnt vmcnt(0)")
        perm(0); perm(1)
        for t in range(12):
            if t+2 < 12: perm(t+2)
            pv(t)
    else:
        e(f"s_waitcnt vmcnt(6)")
        for t in range(12): perm(t)
        v_load1(0, N); v_load1(1, N)
        for t in range(12): pv(t)
        e(f"s_add_u32 s{sI}, s{sI}, 1")
        if not phb and not half and cfg.ZRE:
            e(f"s_cmp_ge_u32 s{sI}, s{sCNTA}")
            e("s_cbranch_scc1 A_late")
            lab("A_more")
        elif not phb and not half:
            e(f"s_cmp_eq_u32 s{sI}, s{sCNTA}")
            e("s_cbranch_scc1 A_last")
        for k in range(2, 8): v_load1(k, N)
        if (cfg.ZRE or NS) and not half:
            lab("A_cont")
            e("s_branch A_loop")
        elif half or (cfg.BADD and not phb):
            e("s_branch A_loop")
        else:
            lab("A_cont")
            e(f"s_cmp_lt_u32 s{sI}, s{sCNT}")
            e(f"s_cbranch_scc1 {'B_loop' if phb else 'A_loop'}")

lab("A_loop")
if cfg.ITER:
    e('s_memrealtime s[100:101]')
    e(f's_add_u32 s{sT1}, s{sI}, 8')
    e('s_waitcnt lgkmcnt(0)')
    e(f's_mov_b32 m0, s{sT1}')
    e(f'v_writelane_b32 v{vPROF}, s100, m0')
inbody[0] = True
body("A", False)
inbody[0] = False
tags = ["A", "Z"]
if cfg.BADD:
    lab("B_loop")
    ADD[0] = cfg.BADD
    body("B", False, True)
    ADD[0] = 0
    tags.append("B")
if cfg.ZRE:
    tags.remove("Z")
    lab("A_late")
    e(f"s_cmp_eq_u32 s{sI}, s{sCNTA}")
    e("s_cbranch_scc1 A_last")
    e(f"s_cmp_le_u32 s{sI}, s{sCNT}")
    e("s_cbranch_scc1 A_more")
else:
    raw("; ---- last block: nothing left to load")
    body("Z", True)
if cfg.MIDST: e(f"s_memrealtime {pr(sST+2)}")
prof(6)
e(f"s_mov_b64 exec, {pr(sBM)}")
for t in range(12):
    if t == 4: e("s_nop 3")
    e(f"ds_write_b128 v{vSB}, v[{vO+4*t}:{vO+4*t+3}] offset:{L_STB + 64*t}")
if cfg.ZRE:
    e("s_mov_b64 exec, -1")
    xreduce("v_add_f32", vL)
    e(f"s_lshl_b32 s{sT0}, s{sWAVE}, 3")
    e(f"v_mov_b32 v{vX+1}, s{sT0}")
    e(f"s_lshl_b32 s{sT0}, s{sWAVE}, 2")
    e(f"v_mov_b32 v{vX+2}, s{sT0}")
    e(f"v_mov_b32 v{vX+3}, 1")
    e(f"s_mov_b64 exec, {pr(sBM)}")
    e(f"ds_write_b64 v{vX+1}, v[{vMC}:{vMC+1}] offset:{L_STBML}")
e("s_waitcnt lgkmcnt(0)")
e(f"ds_write_b32 v{vX+2}, v{vX+3} offset:{L_FB}")
prof(7)
dump_prof()
if cfg.STAMPS and cfg.MIDST:
    e(f"s_cmp_lg_u32 s{sWAVE}, 0")
    e("s_cbranch_scc1 A_end")
    dump_stamps()
lab("A_end")
e("s_endpgm")

if DH:
    ADD[0] = cfg.HADD
    body("H", False, half=True)
    ADD[0] = 0
    tags.append("H")
lab("A_last")
prof(5)
ADD[0] = cfg.LADD
v_load1(2, cfg.NOUT)
xreduce("v_add_f32", vL, dst=vMA+1)
e(f"v_mov_b32 v{vMA}, v{vMC}")
e(f"s_lshl_b32 s{sT0}, s{sWAVE}, 6")
e(f"v_lshl_add_u32 v{vX}, v{vLANE}, 3, s{sT0}")
e("s_mov_b64 exec, 0xff")
e(f"ds_write_b64 v{vX}, v[{vMA}:{vMA+1}] offset:{L_STGML}")
e("s_mov_b64 exec, -1")
for i in range(6):
    for r in range(4):
        e(f"v_mov_b32_dpp v{vO+8*i+r}, v{vO+8*i+4+r} row_ror:8 row_mask:0xf bank_mask:0xc")
    e(f"ds_write_b128 v{vPO}, v[{vO+8*i}:{vO+8*i+3}] offset:{L_STG + 128*i}")
e(f"s_lshl_b32 s{sT0}, s{sWAVE}, 2")
e(f"v_mov_b32 v{vX}, s{sT0}")
e(f"v_mov_b32 v{vX+1}, 1")
e("s_waitcnt lgkmcnt(0)")
e(f"ds_write_b32 v{vX}, v{vX+1} offset:{L_FA}")
for k in range(3, 8): v_load1(k, cfg.NOUT)
ADD[0] = 0
e("s_branch A_cont")

for tag in tags:
    lab(f"A_slow{tag}")
    xreduce("v_max_f32", vMX)
    e(f"v_max_f32 v{vM}, v{vM}, v{vMX}")
    e(f"v_mul_f32 v{vA}, s{sC2}, v{vM}")
    e(f"v_sub_f32 v{vB}, v{vMC}, v{vA}")
    e(f"v_exp_f32 v{vB}, v{vB}")
    e(f"v_mov_b32 v{vMC}, v{vA}")
    e(f"v_mul_f32 v{vL}, v{vL}, v{vB}")
    for i in range(24):
        e(f"v_pk_mul_f32 v[{vO+2*i}:{vO+2*i+1}], v[{vO+2*i}:{vO+2*i+1}], v[{vB}:{vB+1}] op_sel_hi:[1,0]")
    e(f"s_branch A_back{tag}")

lab("A_dyn")
e(f"s_cmp_ge_u32 s{sT0}, s{sCNTA}")
e("s_cbranch_scc1 A_phb")
e(f"s_cmp_lg_u32 s{sLF}, 0")
e("s_cbranch_scc1 A_dyn2")
e(f"s_mov_b32 s{sLF}, 1")
e(f"v_mov_b32 v{vA}, 0")
e("s_barrier")
e(f"ds_read_b32 v{vA}, v{vA} offset:{L_N}")
e(f"s_lshl_b32 s{sT1}, s{sB0}, 2")
e(f"s_add_u32 s{sT1}, s{sT1}, s{sWAVE}")
e(f"s_sub_u32 s{sT1}, s{sT1}, {32*KP}")
e(f"v_lshlrev_b32 v{vB}, 5, v{vLANE}")
e(f"v_add_lshl_u32 v{vB}, v{vB}, s{sT1}, 2")
e(f"v_min_u32 v{vB}, 8188, v{vB}")
e(f"ds_read_b32 v{vLIST}, v{vB}")
e("s_waitcnt lgkmcnt(0)")
e(f"v_readfirstlane_b32 s{sN}, v{vA}")
e(f"v_readlane_b32 s{sREC}, v{vLIST}, s{sT0}")
e("s_nop 0")
e(f"s_mul_i32 s{sT1}, s{sN}, {cfg.F}")
e(f"s_lshr_b32 s{sT1}, s{sT1}, 10")
e(f"s_lshl_b32 s{sP0}, s{sT1}, 5")
e(f"s_add_u32 s{sDS}, s{sT1}, {KP}")
if cfg.VPOOL:
    e(f"v_add_lshl_u32 v{vB}, v{vLANE}, s{sP0}, 2")
    e(f"v_min_u32 v{vB}, {8188-256}, v{vB}")
    e(f"ds_read_b32 v{vPL}, v{vB}")
    e(f"ds_read_b32 v{vPL+1}, v{vB} offset:256")
if cfg.HALVES:
    e(f"s_sub_i32 s{sH0}, s{sN}, {cfg.HALVES}")
    e(f"s_max_i32 s{sH0}, s{sH0}, s{sP0}")
e(f"s_add_u32 s{sT1}, s{sT0}, 1")
e(f"s_cmp_lt_u32 s{sT1}, s{sDS}")
e("s_cbranch_scc1 A_rec")
if cfg.WT:
    e(f"s_cmp_lg_u32 s{sT0}, s{sDS}")
    e("s_cbranch_scc1 A_dyn2")
    started_check()
    e(f"s_mov_b32 s{sTK}, 1")
    e(f"s_atomic_add s{sTK}, {pr(sTKB)}, 0 glc")
    lab("A_dyn2")
    e(f"s_cmp_lt_u32 s{sT0}, s{sDS}")
    e(f"s_cbranch_scc1 A_first")
    e("s_waitcnt lgkmcnt(0)")
    e(f"s_add_u32 s{sT2}, s{sTK}, s{sP0}")
    if cfg.HALVES:
        e(f"s_mov_b32 s{sHF}, 0")
        e(f"s_cmp_lt_u32 s{sT2}, s{sH0}")
        e("s_cbranch_scc1 A_full")
        e(f"s_sub_u32 s{sT1}, s{sT2}, s{sH0}")
        e(f"s_and_b32 s{sHF}, s{sT1}, 1")
        e(f"s_add_u32 s{sHF}, s{sHF}, 1")
        e(f"s_lshl_b32 s{sHF}, s{sHF}, 14")
        e(f"s_lshr_b32 s{sT1}, s{sT1}, 1")
        e(f"s_add_u32 s{sT2}, s{sT1}, s{sH0}")
        lab("A_full")
    e(f"s_cmp_ge_u32 s{sT2}, s{sN}")
    e(f"s_cbranch_scc1 A_fini")
    if cfg.VPOOL:
        e(f"v_readlane_b32 s{sREC}, v{vPL}, s{sTK}")
        e(f"v_readlane_b32 s{sT1}, v{vPL+1}, s{sTK}")
        e(f"s_cmp_lt_u32 s{sTK}, 64")
        e("s_cbranch_scc1 A_iss")
        e(f"s_mov_b32 s{sREC}, s{sT1}")
        e(f"s_cmp_lt_u32 s{sTK}, 128")
        e("s_cbranch_scc1 A_iss")
    e(f"s_lshl_b32 s{sT2}, s{sT2}, 2")
    e(f"v_mov_b32 v{vB}, s{sT2}")
    e(f"ds_read_b32 v{vB}, v{vB}")
    e("s_waitcnt lgkmcnt(0)")
    e(f"v_readfirstlane_b32 s{sREC}, v{vB}")
    if cfg.HALVES:
        e(f"s_mov_b32 s{sTK}, 1")
        e(f"s_atomic_add s{sTK}, {pr(sTKB)}, 0 glc")
        e(f"s_or_b32 s{sREC}, s{sREC}, s{sHF}")
        e(f"s_cmp_lg_u32 s{sHF}, 0")
        e("s_cbranch_scc1 A_recH")
        e("s_branch A_rec")
    lab(f"A_iss")
    e(f"s_mov_b32 s{sTK}, 1")
    e(f"s_atomic_add s{sTK}, {pr(sTKB)}, 0 glc")
    e(f"s_branch A_rec")
    lab(f"A_first")
    started_check()
    e(f"s_branch A_iss")
else:
    e(f"s_cmp_lg_u32 s{sT0}, s{sDS}")
    e("s_cbranch_scc1 A_dyn2")
    e(f"s_cmp_lg_u32 s{sWAVE}, 0")
    e("s_cbranch_scc1 A_dyn2")
    started_check()
    e(f"s_mov_b32 s{sTK}, 1")
    e(f"s_atomic_add s{sTK}, {pr(sTKB)}, 0 glc")
    lab("A_dyn2")
    e(f"s_sub_u32 s{sT1}, s{sT0}, s{sDS}")
    e(f"s_lshl_b32 s{sT2}, s{sT1}, 2")
    e(f"v_mov_b32 v{vA}, s{sT2}")
    e(f"s_cmp_lg_u32 s{sWAVE}, 0")
    e(f"s_cbranch_scc1 A_oth")
    e(f"s_cmp_lt_i32 s{sT1}, 0")
    e(f"s_cbranch_scc1 A_first")
    e("s_waitcnt lgkmcnt(0)")
    e(f"s_lshl_b32 s{sT2}, s{sTK}, 2")
    e(f"s_add_u32 s{sT2}, s{sT2}, s{sP0}")
    e(f"s_cmp_lt_u32 s{sT2}, s{sN}")
    e(f"s_cselect_b32 s{sT2}, s{sT2}, {DONE}")
    e(f"v_mov_b32 v{vB}, s{sT2}")
    e(f"ds_write_b32 v{vA}, v{vB} offset:{L_SLOT}")
    e(f"s_cbranch_scc0 A_fini")
    e(f"s_lshl_b32 s{sT2}, s{sT2}, 2")
    e(f"v_mov_b32 v{vB}, s{sT2}")
    e(f"ds_read_b32 v{vB}, v{vB}")
    e("s_waitcnt lgkmcnt(0)")
    e(f"v_readfirstlane_b32 s{sREC}, v{vB}")
    lab(f"A_iss")
    e(f"s_mov_b32 s{sTK}, 1")
    e(f"s_atomic_add s{sTK}, {pr(sTKB)}, 0 glc")
    e(f"s_branch A_rec")
    lab(f"A_first")
    started_check()
    e(f"s_branch A_iss")
    lab(f"A_oth")
    e(f"s_cmp_lt_i32 s{sT1}, 0")
    e(f"s_cbranch_scc1 A_rec")
    lab(f"A_poll")
    e(f"ds_read_b32 v{vB}, v{vA} offset:{L_SLOT}")
    e("s_waitcnt lgkmcnt(0)")
    e(f"v_readfirstlane_b32 s{sT2}, v{vB}")
    e("s_nop 1")
    e(f"s_cmp_eq_u32 s{sT2}, {EMPTY}")
    e(f"s_cbranch_scc1 A_poll")
    e(f"s_cmp_eq_u32 s{sT2}, {DONE}")
    e(f"s_cbranch_scc1 A_fini")
    e(f"s_add_u32 s{sT2}, s{sT2}, s{sWAVE}")
    e(f"s_lshl_b32 s{sT1}, s{sT2}, 2")
    e(f"s_cmp_lt_u32 s{sT2}, s{sN}")
    e(f"s_cselect_b32 s{sT1}, s{sT1}, {L_Z}")
    e(f"v_mov_b32 v{vB}, s{sT1}")
    e(f"ds_read_b32 v{vB}, v{vB}")
    e("s_waitcnt lgkmcnt(0)")
    e(f"v_readfirstlane_b32 s{sREC}, v{vB}")
    e("s_nop 1")
    e(f"s_branch A_rec")
lab(f"A_fini")
e(f"s_mov_b32 s{sCNTA}, s{sT0}")
if NS:
    e(f"s_mov_b32 s{sREC}, s{sPW+KP}")
    e(f"s_branch A_rec")
    lab("A_phb")
    e(f"v_mov_b32 v{vA}, 0")
    e(f"v_mov_b32 v{vB}, 1")
    e("s_mov_b64 exec, 1")
    e(f"ds_add_rtn_u32 v{vB}, v{vA}, v{vB} offset:{L_PB}")
    e("s_mov_b64 exec, -1")
    e("s_waitcnt lgkmcnt(0)")
    e(f"v_readfirstlane_b32 s{sT1}, v{vB}")
    e("s_nop 1")
    e(f"s_min_u32 s{sT1}, s{sT1}, 63")
    e(f"v_readlane_b32 s{sREC}, v{vLB}, s{sT1}")
    e(f"s_mov_b32 s{sCNT}, s{sI}")
    e("s_nop 0")
    e(f"s_cmp_eq_u32 s{sREC}, 0")
    e("s_cbranch_scc1 A_phb")
    e(f"s_cmp_eq_u32 s{sREC}, -1")
    e("s_cbranch_scc1 A_recZ")
    if HB:
        e(f"s_and_b32 s{sT1}, s{sREC}, 0xc000")
        e("s_cbranch_scc1 A_recH")
    e(f"s_branch A_rec")
else:
    e(f"s_add_u32 s{sCNT}, s{sT0}, {KB-1}")
    lab("A_phb")
    e(f"s_sub_u32 s{sT1}, s{sT0}, s{sCNTA}")
    e(f"v_readlane_b32 s{sREC}, v{vLB}, s{sT1}")
    e("s_nop 1")
    e(f"s_branch A_rec")

pT, pM = 48, 56
pJ, pJX, pA, pB, pCNT, pJ4 = 64, 65, 66, 67, 68, 69
SRDO = 20
hA, hB, hP = 12, 13, 8
inhelper[0] = True
lab("P_start")
if cfg.PPRIO: e(f"s_setprio {cfg.PPRIO}")
if cfg.CODEPF == 1:
    e("s_getpc_b64 s[40:41]")
    lab("P_pc")
    e(f"s_sub_u32 s40, s40, P_pc-{NAME}_kernel")
    e("s_subb_u32 s41, s41, 0")
    e(f"v_subrev_u32 v70, 256, v0")
    e(f"v_lshlrev_b32 v70, 6, v70")
    e(f"v_min_u32 v70, K_end-{NAME}_kernel-4, v70")
    e("global_load_dword v71, v70, s[40:41]")
e(f"v_subrev_u32 v{pJ}, 256, v0")
e(f"v_lshlrev_b32 v{pJ4}, 2, v{pJ}")
e(f"v_mov_b32 v{pA}, {EMPTY}")
e(f"v_mov_b32 v{pCNT}, 0")
for i in range(0 if cfg.WT else 3):
    e(f"ds_write_b32 v{pJ4}, v{pA} offset:{L_SLOT + 1024*i}")
e(f"ds_write_b32 v{pJ4}, v{pCNT} offset:{L_CNT}")
e("s_waitcnt lgkmcnt(0)")
e("s_load_dwordx16 s[4:19], s[0:1], 0")
e("s_barrier")
e(f"v_add_u32 v{pB}, 4096, v{pJ4}")
e(f"v_lshlrev_b32 v{pJX}, 16, v{pJ}")
e(f"s_sub_u32 s{sI}, s{sWAVE}, 4")
hFL, hBIG = 6, 84
hsO, hsT = 84, 85
e(f"v_lshlrev_b32 v{hFL}, 4, v{vLANE}")
e(f"v_mov_b32 v{hBIG}, 0x40000000")
e(f"v_cmp_gt_u32 vcc, 49, v{vLANE}")
e(f"s_lshl_b32 s{sT0}, s{sHEAD}, 3")
e(f"s_lshl_b32 s{sT1}, s{sI}, 1")
e(f"v_cndmask_b32 v{hFL}, v{hBIG}, v{hFL}, vcc")
e(f"s_add_u32 s{sT0}, s{sT0}, s{sT1}")
e(f"s_lshl_b32 s{sT0}, s{sT0}, 3")
e(f"s_add_u32 s{sT0}, s{sT0}, s{sB0}")
e(f"s_mul_i32 s{sDS}, s{sT0}, {RW}")
e(f"s_add_u32 s{sCNT}, s{sDS}, {8*RW}")
e(f"s_cmp_eq_u32 s{sT1}, s{sB0}")
e(f"s_cselect_b32 s{sDS}, 0x{OOB:x}, s{sDS}")
e(f"s_add_u32 s{sT1}, s{sT1}, 1")
e(f"s_cmp_eq_u32 s{sT1}, s{sB0}")
e(f"s_cselect_b32 s{sCNT}, 0x{OOB:x}, s{sCNT}")
for i in range(4): e(f"v_mov_b32 v{hP+i}, -1")
e(f"s_lshl_b32 s{sTK}, s{sHEAD}, 12")
e(f"s_add_u32 s{sTK}, s{sTK}, {TK_OFF}")
e(f"s_or_b32 s{sT0}, s{sB0}, s{sI}")
e(f"s_cmp_eq_u32 s{sT0}, 0")
e(f"s_cselect_b32 s{sTK}, s{sTK}, 0x{OOB:x}")
e(f"v_mov_b32 v{hA}, 0")
e(f"s_mov_b32 s{SRDW+2}, {WS_USED}")
e(f"s_mov_b32 s{SRDW+3}, 0x20000")
e(f"s_lshl_b32 s{sT2}, s{sHEAD}, 3")
for b in range(8):
    e(f"v_mov_b32 v{pM+b}, 0")
for b in range(1, 8):
    e(f"s_mov_b64 {pr(sNL+2*b)}, 0")
e("s_waitcnt lgkmcnt(0)")
e(f"s_load_dwordx8 s[{sC}:{sC+7}], {pr(sCTX)}, 0")
for b in range(8):
    e(f"global_load_dword v{pT+b}, v{pJ4 if b < 4 else pB}, {pr(sBT)} offset:{(b & 3)*1024}")
e(f"s_mov_b32 s{SRDW}, s{sWS}")
e(f"s_and_b32 s{SRDW+1}, s{sWS+1}, 0xffff")
e(f"buffer_store_dwordx4 v[{hP}:{hP+3}], v{hFL}, s[{SRDW}:{SRDW+3}], s{sDS} offen sc1")
e(f"buffer_store_dwordx4 v[{hP}:{hP+3}], v{hFL}, s[{SRDW}:{SRDW+3}], s{sCNT} offen sc1")
e(f"buffer_store_dword v{hA}, v{hA}, s[{SRDW}:{SRDW+3}], s{sTK} offen sc1")
e(f"s_add_u32 s{sDBG}, s{sDBG}, s{sT2}")
e(f"s_addc_u32 s{sDBG+1}, s{sDBG+1}, 0")
NPF = 0
if cfg.TLBPF:
    sh = cfg.TLBPF
    NPF = max(1, (KV_BYTES >> sh) // 128 + 1)
    e(f"s_bitcmp1_b32 s{sI}, 0")
    e(f"s_cselect_b32 s24, s{sV}, s{sK}")
    e(f"s_cselect_b32 s25, s{sV+1}, s{sK+1}")
    e(f"s_and_b32 s25, s25, 0xffff")
    e(f"s_mov_b32 s26, {KV_BYTES}")
    e(f"s_mov_b32 s27, 0x20000")
    e(f"s_lshr_b32 s{sT0}, s{sI}, 1")
    e(f"s_lshl_b32 s{sT0}, s{sT0}, {sh+6}")
    e(f"v_lshlrev_b32 v72, {sh}, v{vLANE}")
    for i in range(NPF):
        e(f"buffer_load_dword v73, v72, s[24:27], s{sT0} offen")
        if i+1 < NPF: e(f"s_add_u32 s{sT0}, s{sT0}, {128 << sh}")
e("s_waitcnt lgkmcnt(0)")
for b in range(8):
    nblocks(sC+b)
    e(f"s_sub_u32 s{sC+b}, s{sC+b}, {4*KW+NS}")
for b in range(8):
    e(f"v_cmp_gt_i32_e64 {pr(sVAL+2*b)}, s{sC+b}, v{pJ}")
e(f"s_waitcnt vmcnt({3+NPF})")
for b in range(8):
    e(f"v_cndmask_b32_e64 v{pT+b}, {-(b+1)}, v{pT+b}, {pr(sVAL+2*b)}")
for b in range(7):
    hi = list(range(7, b, -1))
    for k, b2 in enumerate(hi):
        e(f"v_cmp_eq_u32_e64 {pr(sEQ+2*k)}, v{pT+b}, v{pT+b2}")
    if len(hi) < 3: e(f"s_nop {2-len(hi)}")
    for k, b2 in enumerate(hi):
        e(f"v_addc_co_u32_e64 v{pM+b}, vcc, v{pM+b}, v{pM+b}, {pr(sEQ+2*k)}")
    for k, b2 in enumerate(hi):
        e(f"s_or_b64 {pr(sNL+2*b2)}, {pr(sNL+2*b2)}, {pr(sEQ+2*k)}")
e(f"v_mov_b32 v{pCNT}, 0")
for b in range(8):
    if b: e(f"s_andn2_b64 {pr(sVAL+2*b)}, {pr(sVAL+2*b)}, {pr(sNL+2*b)}")
    e(f"s_bcnt1_i32_b64 s{sT0}, {pr(sVAL+2*b)}")
    e(f"s_or_b32 s{sT0}, s{sT0}, 0x10000")
    e(f"v_writelane_b32 v{pCNT}, s{sT0}, {b}")
e(f"s_lshl_b32 s{sT0}, s{sI}, 2")
e(f"s_add_u32 s{sT0}, s{sT0}, {L_CNT}")
e(f"v_lshl_add_u32 v{pA}, v{vLANE}, 4, s{sT0}")
e(f"s_mov_b64 exec, 0xff")
e(f"ds_write_b32 v{pA}, v{pCNT}")
e(f"s_mov_b64 exec, -1")
for b in range(8):
    e(f"v_lshl_or_b32 v{pM+b}, v{pM+b}, 1, 1")
    e(f"v_lshlrev_b32 v{pM+b}, {24+b}, v{pM+b}")
    e(f"v_or3_b32 v{pT+b}, v{pT+b}, v{pJX}, v{pM+b}")
    e(f"v_mbcnt_lo_u32_b32 v{pM+b}, s{sVAL+2*b}, 0")
    e(f"v_mbcnt_hi_u32_b32 v{pM+b}, s{sVAL+2*b+1}, v{pM+b}")
e(f"v_and_b32 v{pA}, 31, v{vLANE}")
e(f"v_lshlrev_b32 v{pA}, 2, v{pA}")
lab("P_cw")
e(f"ds_read_b32 v{pCNT}, v{pA} offset:{L_CNT}")
e("s_waitcnt lgkmcnt(0)")
e(f"v_cmp_eq_u32 vcc, 0, v{pCNT}")
e("s_cbranch_vccnz P_cw")
e(f"v_and_b32 v{pCNT}, 0xffff, v{pCNT}")
e(f"v_mov_b32 v{pB}, v{pCNT}")
for sh in (1, 2, 4, 8):
    e("s_nop 1")
    e(f"v_add_u32_dpp v{pB}, v{pB}, v{pB} row_shr:{sh} row_mask:0xf bank_mask:0xf bound_ctrl:0")
e("s_nop 1")
e(f"v_add_u32_dpp v{pB}, v{pB}, v{pB} row_bcast:15 row_mask:0xa bank_mask:0xf")
e("s_nop 1")
e(f"v_readlane_b32 s{sN}, v{pB}, 31")
e(f"v_sub_u32 v{pB}, v{pB}, v{pCNT}")
e(f"s_mov_b32 s{sT1}, s{sI}")
for b in range(8):
    e(f"v_readlane_b32 s{sEQ+b}, v{pB}, s{sT1}")
    e(f"s_add_u32 s{sT1}, s{sT1}, 4")
e(f"v_mov_b32 v{pA}, 0")
e(f"v_mov_b32 v{pCNT}, s{sN}")
e(f"ds_write_b32 v{pA}, v{pCNT} offset:{L_N}")
for b in range(8):
    e(f"v_add_lshl_u32 v{pM+b}, v{pM+b}, s{sEQ+b}, 2")
for b in range(8):
    e(f"s_mov_b64 exec, {pr(sVAL+2*b)}")
    e(f"ds_write_b32 v{pM+b}, v{pT+b}")
e(f"s_mov_b64 exec, -1")
prof(1)
e("s_waitcnt vmcnt(0) lgkmcnt(0)")
e("s_barrier")

hL16, hM, hW, hMA = 5, 10, 11, 7
hO0, hO1, hO2, hO3 = 14, 15, 16, 17
hZ, hLA, hACC = 18, 19, 20
hQ = 24
hD = 40
hR = 72
hSA = 81
hsP, hsO, hsT = 32, 34, 35
hsML = 40
e(f"v_lshlrev_b32 v{hL16}, 4, v{vLANE}")
e(f"v_and_b32 v{hM}, 3, v{vLANE}")
e(f"v_lshlrev_b32 v{hM}, 2, v{hM}")
e(f"v_min_u32 v{hL16}, 752, v{hL16}")
e(f"s_mul_i32 s{sT0}, s{sI}, {2*RS}")
e(f"v_add_u32 v{hSA}, s{sT0}, v{hL16}")
e(f"s_lshl_b32 s{sT0}, s{sI}, 4")
e(f"v_mov_b32 v{hW}, s{sT0}")
e(f"v_cmp_eq_u32_e64 {pr(36)}, 48, v{vLANE}")
e(f"s_cmp_lg_u32 s{sI}, 0")
e("s_cbranch_scc1 H_wa0")
e(f"s_mov_b32 s{sT2}, 1")
e(f"s_mov_b32 s{sSPIN}, 0")
lab("H_chk")
e(f"s_mov_b32 s{sT1}, s{sT2}")
e(f"s_atomic_add s{sT2}, {pr(sDBG)}, 0 glc")
e(f"s_add_u32 s{sSPIN}, s{sSPIN}, 1")
e("s_waitcnt lgkmcnt(0)")
e(f"s_add_u32 s{sT1}, s{sT1}, s{sT2}")
e(f"s_mov_b32 s{sT2}, 0")
e(f"s_cmp_ge_u32 s{sT1}, 8")
e(f"s_cbranch_scc1 H_chkok")
e(f"s_cmp_ge_u32 s{sSPIN}, {SPIN_MAX >> 1}")
e(f"s_cbranch_scc1 H_chkok")
e("s_sleep 32")
e(f"s_branch H_chk")
lab("H_chkok")
e(f"v_mov_b32 v{hA}, 0")
e(f"v_mov_b32 v{hB}, 1")
e(f"ds_write_b32 v{hA}, v{hB} offset:{L_OK}")
e(f"s_mov_b32 s{SRDO}, s{sOUT}")
e(f"s_and_b32 s{SRDO+1}, s{sOUT+1}, 0xffff")
e(f"s_mov_b32 s{SRDO+2}, 98304")
e(f"s_mov_b32 s{SRDO+3}, 0x20000")
e(f"v_cmp_gt_u32 vcc, 48, v{vLANE}")
e(f"v_lshrrev_b32 v{hB}, 2, v{vLANE}")
e(f"v_and_b32 v{hZ}, 3, v{vLANE}")
e(f"v_cndmask_b32_e64 v{hA}, v{hBIG}, 0, vcc")
e(f"v_lshl_add_u32 v{hO0}, v{hZ}, 5, v{hB}")
e(f"v_lshl_add_u32 v{hO1}, v{hZ}, 4, v{hB}")
e(f"v_add_u32 v{hO1}, 120, v{hO1}")
e(f"v_cmp_gt_u32 vcc, 8, v{hB}")
e(f"v_mov_b32 v{hO2}, 8")
e(f"v_mov_b32 v{hO3}, 16")
e(f"v_cndmask_b32 v{hO0}, v{hO1}, v{hO0}, vcc")
e(f"v_cndmask_b32 v{hO3}, v{hO2}, v{hO3}, vcc")
e(f"v_lshl_add_u32 v{hO0}, v{hO0}, 1, v{hA}")
e(f"v_add_u32 v{hO1}, v{hO0}, v{hO3}")
e(f"v_add_u32 v{hO2}, v{hO1}, v{hO3}")
e(f"v_add_u32 v{hO3}, v{hO2}, v{hO3}")
e(f"v_mov_b32 v{hZ}, 0")
lab("H_wa0")
if cfg.NOHELP: e("s_endpgm")
def lds_wait(name, off, sleep):
    e(f"s_mov_b32 s{sSPIN}, 0")
    lab(name)
    e(f"ds_read_b32 v{hB}, v{hM} offset:{off}")
    e(f"s_add_u32 s{sSPIN}, s{sSPIN}, 1")
    e("s_waitcnt lgkmcnt(0)")
    e(f"v_cmp_eq_u32 vcc, 0, v{hB}")
    e(f"s_cmp_ge_u32 s{sSPIN}, {1 << 26}")
    e(f"s_cbranch_scc1 {name}_ok")
    if sleep:
        e(f"s_cbranch_vccz {name}_ok")
        e(f"s_sleep {sleep}")
        e(f"s_branch {name}")
    else:
        e(f"s_cbranch_vccnz {name}")
    lab(f"{name}_ok")
lds_wait("H_wa", L_FA, cfg.HSLEEP)
prof(2)
for w in range(4):
    e(f"ds_read_b128 v[{hQ+4*w}:{hQ+4*w+3}], v{hW} offset:{L_STGML + 64*w}")
for c in range(2):
    for w in range(4):
        e(f"ds_read_b128 v[{hD+16*c+4*w}:{hD+16*c+4*w+3}], v{hSA} offset:{L_STG + WSZ*w + RS*c}")
e("s_waitcnt lgkmcnt(8)")
for c in range(2):
    m = [hQ+4*w+2*c for w in range(4)]
    M, L = hMA, hLA
    e(f"v_max3_f32 v{M}, v{m[0]}, v{m[1]}, v{m[2]}")
    e(f"v_max_f32 v{M}, v{M}, v{m[3]}")
    for w in range(4): e(f"v_sub_f32 v{m[w]}, v{m[w]}, v{M}")
    for w in range(4): e(f"v_exp_f32 v{m[w]}, v{m[w]}")
    e(f"v_mul_f32 v{L}, v{m[0]}, v{m[0]+1}")
    for w in range(1, 4): e(f"v_fmac_f32 v{L}, v{m[w]}, v{m[w]+1}")
    e(f"s_waitcnt lgkmcnt({4-4*c})")
    for i in range(4): e(f"v_mul_f32 v{hR+4*c+i}, v{m[0]}, v{hD+16*c+i}")
    for w in range(1, 4):
        for i in range(4): e(f"v_fmac_f32 v{hR+4*c+i}, v{m[w]}, v{hD+16*c+4*w+i}")
    e(f"v_cndmask_b32_e64 v{hR+4*c}, v{hR+4*c}, v{M}, {pr(36)}")
    e(f"v_cndmask_b32_e64 v{hR+4*c+1}, v{hR+4*c+1}, v{L}, {pr(36)}")
    for i in range(4): e(f"v_min_u32 v{hR+4*c+i}, -2, v{hR+4*c+i}")
    e(f"buffer_store_dwordx4 v[{hR+4*c}:{hR+4*c+3}], v{hFL}, s[{SRDW}:{SRDW+3}], s{sDS if c == 0 else sCNT} offen sc1")
e(f"s_cmp_eq_u32 s{sI}, 0")
e("s_cbranch_scc1 H_start")
e("s_endpgm")

lab("H_start")
prof(3)
e(f"s_mul_i32 s{hsO}, s2, {8*RW}")
e(f"s_lshl_b32 s{hsP}, 1, s{sB0}")
e(f"s_xor_b32 s{hsP}, s{hsP}, 0xff")
e(f"s_mov_b32 s{sSPIN}, 0")
for i in range(32): e(f"v_mov_b32 v{hD+i}, 0")
lab("H_poll")
for s_ in range(8):
    e(f"s_bitcmp1_b32 s{hsP}, {s_}")
    e(f"s_cbranch_scc0 H_sk{s_}")
    if s_*RW < 4096:
        e(f"buffer_load_dwordx4 v[{hD+4*s_}:{hD+4*s_+3}], v{hFL}, s[{SRDW}:{SRDW+3}], s{hsO} offen offset:{s_*RW} sc1")
    else:
        e(f"s_add_u32 s{hsT}, s{hsO}, {s_*RW}")
        e(f"buffer_load_dwordx4 v[{hD+4*s_}:{hD+4*s_+3}], v{hFL}, s[{SRDW}:{SRDW+3}], s{hsT} offen sc1")
    lab(f"H_sk{s_}")
e(f"s_add_u32 s{sSPIN}, s{sSPIN}, 1")
e(f"s_mov_b32 s{hsP}, 0")
e("s_waitcnt vmcnt(0)")
for s_ in range(8):
    e(f"v_max3_u32 v{hQ+s_}, v{hD+4*s_}, v{hD+4*s_+1}, v{hD+4*s_+2}")
for s_ in range(8):
    e(f"v_max_u32 v{hQ+s_}, v{hQ+s_}, v{hD+4*s_+3}")
for s_ in range(8):
    e(f"v_cmp_eq_u32_e64 {pr(hsML+2*s_)}, -1, v{hQ+s_}")
for s_ in range(8):
    e(f"s_cmp_lg_u64 {pr(hsML+2*s_)}, 0")
    e(f"s_cselect_b32 s{hsT}, {1 << s_}, 0")
    e(f"s_or_b32 s{hsP}, s{hsP}, s{hsT}")
e("s_cbranch_scc0 H_gath")
e(f"s_cmp_ge_u32 s{sSPIN}, {SPIN_MAX}")
if cfg.PSLEEP:
    e("s_cbranch_scc1 H_gath")
    e(f"s_sleep {cfg.PSLEEP}")
    e("s_branch H_poll")
else:
    e("s_cbranch_scc0 H_poll")
lab("H_gath")
prof(4)
for s_ in range(8):
    e(f"v_readlane_b32 s{hsML+2*s_}, v{hD+4*s_}, 48")
    e(f"v_readlane_b32 s{hsML+2*s_+1}, v{hD+4*s_+1}, 48")
for s_ in range(8):
    e(f"s_cmp_eq_u32 s{sB0}, {s_}")
    e(f"s_cselect_b32 s{hsML+2*s_}, 0x{NEG:08x}, s{hsML+2*s_}")
e(f"v_mov_b32 v{hMA}, s{hsML}")
for s_ in range(1, 8):
    e(f"v_max_f32 v{hMA}, s{hsML+2*s_}, v{hMA}")
for s_ in range(8):
    e(f"v_sub_f32 v{hQ+s_}, s{hsML+2*s_}, v{hMA}")
for s_ in range(8):
    e(f"v_exp_f32 v{hQ+s_}, v{hQ+s_}")
e(f"v_mul_f32 v{hLA}, s{hsML+1}, v{hQ}")
for s_ in range(1, 8):
    e(f"v_fmac_f32 v{hLA}, s{hsML+2*s_+1}, v{hQ+s_}")
for i in range(4): e(f"v_mul_f32 v{hACC+i}, v{hQ}, v{hD+i}")
for s_ in range(1, 8):
    for i in range(4): e(f"v_fmac_f32 v{hACC+i}, v{hQ+s_}, v{hD+4*s_+i}")
e(f"s_lshl_b32 s{sT0}, s{sB0}, 5")
e(f"s_add_u32 s{sT0}, s{sT0}, s{sHEAD}")
e(f"s_mul_i32 s{sT0}, s{sT0}, 384")
lds_wait("H_wb", L_FB, 0)
prof(5)
e(f"ds_read_b128 v[{hQ}:{hQ+3}], v{hZ} offset:{L_STBML}")
e(f"ds_read_b128 v[{hQ+4}:{hQ+7}], v{hZ} offset:{L_STBML+16}")
for w in range(4):
    e(f"ds_read_b128 v[{hD+4*w}:{hD+4*w+3}], v{hL16} offset:{L_STB + 768*w}")
e("s_waitcnt lgkmcnt(4)")
e(f"v_max3_f32 v{hW}, v{hQ}, v{hQ+2}, v{hMA}")
e(f"v_max3_f32 v{hW}, v{hQ+4}, v{hQ+6}, v{hW}")
e(f"v_sub_f32 v{hMA}, v{hMA}, v{hW}")
for w in range(4):
    e(f"v_sub_f32 v{hQ+2*w}, v{hQ+2*w}, v{hW}")
e(f"v_exp_f32 v{hMA}, v{hMA}")
for w in range(4):
    e(f"v_exp_f32 v{hQ+2*w}, v{hQ+2*w}")
e(f"v_mul_f32 v{hLA}, v{hLA}, v{hMA}")
for w in range(4):
    e(f"v_fmac_f32 v{hLA}, v{hQ+2*w}, v{hQ+2*w+1}")
for i in range(4):
    e(f"v_mul_f32 v{hACC+i}, v{hACC+i}, v{hMA}")
e(f"v_rcp_f32 v{hLA}, v{hLA}")
e("s_waitcnt lgkmcnt(0)")
for w in range(4):
    for i in range(4):
        e(f"v_fmac_f32 v{hACC+i}, v{hQ+2*w}, v{hD+4*w+i}")
for i in range(4):
    e(f"v_mul_f32 v{hACC+i}, v{hACC+i}, v{hLA}")
e(f"v_cvt_pk_bf16_f32 v{hA}, v{hACC}, v{hACC+1}")
e(f"v_cvt_pk_bf16_f32 v{hB}, v{hACC+2}, v{hACC+3}")
e(f"buffer_store_short v{hA}, v{hO0}, s[{SRDO}:{SRDO+3}], s{sT0} offen {cfg.OSC}")
e(f"buffer_store_short_d16_hi v{hA}, v{hO1}, s[{SRDO}:{SRDO+3}], s{sT0} offen {cfg.OSC}")
e(f"buffer_store_short v{hB}, v{hO2}, s[{SRDO}:{SRDO+3}], s{sT0} offen {cfg.OSC}")
e(f"buffer_store_short_d16_hi v{hB}, v{hO3}, s[{SRDO}:{SRDO+3}], s{sT0} offen {cfg.OSC}")
prof(6)
prof(7)
dump_prof()
if cfg.STAMPS and not cfg.MIDST:
    e("s_waitcnt vmcnt(0)")
    e(f"s_memrealtime {pr(sST+2)}")
    dump_stamps()
if cfg.SPINTO:
    lab("H_spin")
    e(f"s_memrealtime {pr(sST+2)}")
    e("s_waitcnt lgkmcnt(0)")
    e(f"s_sub_u32 s{sT0}, s{sST+2}, s{sST}")
    e(f"s_cmp_lt_u32 s{sT0}, {cfg.SPINTO}")
    e("s_cbranch_scc1 H_spin")
e("s_endpgm")
lab("K_end")

raw('.section .rodata,"a"')
raw(f""".p2align 6
.amdhsa_kernel {NAME}_kernel
  .amdhsa_next_free_vgpr {NFV}
  .amdhsa_next_free_sgpr 102
  .amdhsa_accum_offset {ACC}
  .amdhsa_group_segment_fixed_size 0
  .amdhsa_kernarg_size 64
  .amdhsa_user_sgpr_count 2
  .amdhsa_user_sgpr_kernarg_segment_ptr 1
  .amdhsa_system_sgpr_workgroup_id_x 1
.end_amdhsa_kernel""")
open(sys.argv[1], 'w').write("\n".join(out) + "\n")
print("LDS", LDS_BYTES, "NV", NV, "NFV", NFV)
```
